```python
import torch

def _softmax(x, axis=-1):
    return torch.softmax(x, dim=axis)
def _gelu(x):
    return torch.nn.functional.gelu(x, approximate="tanh")
def _silu(x):
    return torch.nn.functional.silu(x)
def _sigmoid(x):
    return torch.sigmoid(x)
def _layernorm(x, axis=-1, eps=1e-5):
    m = x.mean(dim=axis, keepdim=True)
    v = x.var(dim=axis, keepdim=True, unbiased=False)
    return (x - m) / torch.sqrt(v + eps)
def _scatter_add(tgt, idx, src, axis=0):
    return tgt.clone().index_add_(axis, idx, src)
def _segment_sum(src, seg, n):
    out = torch.zeros((n,) + src.shape[1:], dtype=src.dtype)
    return out.index_add_(0, seg, src)
def _pad(x, pw):
    flat = tuple(v for pair in reversed(pw) for v in pair)
    return torch.nn.functional.pad(x, flat)

kernel_name = 'sequential_preLN__sliding_block__mixer_s_mlp__prompt'

def setup_inputs():

    _w = (lambda a: (lambda t: t.to(torch.bfloat16) if t.is_floating_point() else t)(torch.as_tensor(a)))
    def _A_setup():
        B, S, D = 1, 2048, 576
        return {
            "x": _w((lambda *s: torch.randn(*s, dtype=torch.bfloat16) * 0.05)(B, S, D)),
            "wqkv": _w((lambda *s: torch.randn(*s, dtype=torch.bfloat16) * 0.05)(D, 3 * D)),
            "wo": _w((lambda *s: torch.randn(*s, dtype=torch.bfloat16) * 0.05)(D, D)),
        }
    _A_in = _A_setup()

    def _B_setup():
        B, S, D, F = 1, 2048, 576, 4608
        return {
            "x":  _w((lambda *s: torch.randn(*s, dtype=torch.bfloat16) * 0.05)(B, S, D)),
            "w1": _w((lambda *s: torch.randn(*s, dtype=torch.bfloat16) * 3.2)(D, D) * (D ** -0.5)),
            "w2": _w((lambda *s: torch.randn(*s, dtype=torch.bfloat16) * 3.2)(D, D) * (D ** -0.5)),
            "w3": _w((lambda *s: torch.randn(*s, dtype=torch.bfloat16) * 3.2)(D, F) * (D ** -0.5)),
            "w4": _w((lambda *s: torch.randn(*s, dtype=torch.bfloat16) * 3.2)(F, D) * (F ** -0.5)),
        }
    _B_in = _B_setup()

    return {
        "A_x": _A_in["x"],
        "A_wqkv": _A_in["wqkv"],
        "A_wo": _A_in["wo"],
        "B_x": _B_in["x"],
        "B_w1": _B_in["w1"],
        "B_w2": _B_in["w2"],
        "B_w3": _B_in["w3"],
        "B_w4": _B_in["w4"],
    }

def reference(A_x, A_wqkv, A_wo, B_x, B_w1, B_w2, B_w3, B_w4):
    def _A_ref(x, wqkv, wo):
        B, S, D = x.shape
        H = 32; Dh = D // H; W = 256
        qkv = (lambda x, *d: x.permute(*d))((x @ wqkv).reshape(B, S, 3, H, Dh), 2, 0, 3, 1, 4)
        q, k, v = qkv[0], qkv[1], qkv[2]
        scores = torch.einsum("bhqd,bhkd->bhqk", q, k) * (Dh ** -0.5)
        idx = torch.arange(S)
        mask = (idx[:, None] - idx[None, :] >= 0) & (idx[:, None] - idx[None, :] < W)
        scores = torch.where(mask[None, None], scores, -1e9)
        p = _softmax(scores, axis=-1)
        o = torch.einsum("bhqk,bhkd->bhqd", p, v)
        return (lambda x, *d: x.permute(*d))(o, 0, 2, 1, 3).reshape(B, S, D) @ wo

    def _B_ref(x, w1, w2, w3, w4):
        B, S, D = x.shape
        h = _gelu(_layernorm(x, axis=-1) @ w1)
        c = D // 4
        g0 = _pad(h[:, :, 0*c:1*c], ((0, 0), (1, 0), (0, 0)))[:, :S, :]
        g1 = _pad(h[:, :, 1*c:2*c], ((0, 0), (0, 1), (0, 0)))[:, 1:, :]
        g2 = _pad(h[:, :, 2*c:3*c], ((0, 0), (2, 0), (0, 0)))[:, :S, :]
        g3 = _pad(h[:, :, 3*c:   ], ((0, 0), (0, 2), (0, 0)))[:, 2:, :]
        hs = torch.concatenate([g0, g1, g2, g3], axis=-1) @ w2
        x1 = x + hs
        h2 = _gelu(_layernorm(x1, axis=-1) @ w3) @ w4
        return x1 + h2

    x = A_x
    h = x + _A_ref(_layernorm(x, axis=-1), A_wqkv, A_wo)
    h2 = h + _B_ref(_layernorm(h, axis=-1), B_w1, B_w2, B_w3, B_w4)
    return h2
```

```python
import re

TRANS = ("v_exp_f32", "v_log_f32", "v_rcp_f32", "v_rsq_f32", "v_sqrt_f32", "v_sin_f32", "v_cos_f32")
_reg_re = re.compile(r"^-?\|?(?:abs\()?([vas])(?:(\d+)|\[(\d+):(\d+)\])\)?\|?$")


def regs_of(tok):
    tok = tok.strip()
    if tok in ("vcc", "vcc_lo", "vcc_hi"):
        return {("s", "vcc")}
    if tok == "exec":
        return {("s", "exec")}
    if tok == "m0":
        return {("s", "m0")}
    m = _reg_re.match(tok)
    if not m:
        return set()
    k = m.group(1)
    if m.group(2) is not None:
        return {(k, int(m.group(2)))}
    return {(k, i) for i in range(int(m.group(3)), int(m.group(4)) + 1)}


def split_ops(s):
    out, depth, cur = [], 0, ""
    for ch in s:
        if ch == "[":
            depth += 1
        if ch == "]":
            depth -= 1
        if ch == "," and depth == 0:
            out.append(cur.strip())
            cur = ""
        else:
            cur += ch
    if cur.strip():
        out.append(cur.strip())
    return out


class Ins:
    __slots__ = ("text", "op", "kind", "dst", "src", "srcA", "srcB", "srcC", "passes", "lds", "wide", "states", "dpp")

    def __init__(self, text):
        self.text = text
        t = text.split(";")[0].strip()
        self.dst = set()
        self.src = set()
        self.srcA = self.srcB = self.srcC = set()
        self.passes = 0
        self.lds = False
        self.wide = False
        self.states = 1
        self.dpp = False
        if not t or t.endswith(":") or t.startswith("."):
            self.op = t
            self.kind = "label" if t.endswith(":") else "dir"
            self.states = 0
            return
        sp = t.split(None, 1)
        op = sp[0]
        self.op = op
        rest = sp[1] if len(sp) > 1 else ""
        ops = split_ops(rest)
        mods = ""
        if ops:
            last = ops[-1].split(None, 1)
            ops[-1] = last[0]
            mods = last[1] if len(last) > 1 else ""
        R = [regs_of(o) for o in ops]
        un = lambda l: set().union(*l) if l else set()
        if op.startswith("v_mfma"):
            self.kind = "mfma"
            self.dst = R[0]
            self.srcA, self.srcB, self.srcC = R[1], R[2], R[3]
            self.src = R[1] | R[2] | R[3]
            self.passes = 8 if "32x32x16" in op else 4
        elif op.startswith("v_"):
            self.kind = "valu"
            self.dpp = "_dpp" in op
            if op.startswith("v_cmp"):
                self.dst = R[0]
                self.src = un(R[1:])
            elif "permlane" in op and "swap" in op:
                self.dst = R[0] | R[1]
                self.src = R[0] | R[1]
            elif op.startswith(("v_add_co", "v_sub_co", "v_addc_co", "v_subb_co")):
                self.dst = R[0] | R[1]
                self.src = un(R[2:])
            elif op.startswith(("v_fmac", "v_dot2c", "v_writelane")):
                self.dst = R[0]
                self.src = un(R)
            else:
                self.dst = R[0]
                self.src = un(R[1:])
        elif op.startswith("ds_"):
            self.kind = "ds"
            if op.startswith(("ds_read", "ds_bpermute", "ds_permute", "ds_swizzle")):
                self.dst = R[0]
                self.src = un(R[1:])
            else:
                self.src = un(R)
        elif op.startswith(("buffer_", "global_")):
            self.kind = "vmem"
            self.lds = bool(re.search(r"\blds\b", mods))
            if "load" in op and not self.lds:
                self.dst = R[0]
                self.src = un(R[1:])
            else:
                self.src = un(R)
                if "store" in op and ("x4" in op or "x3" in op):
                    self.wide = True
                    self.srcA = R[0] if op.startswith("buffer") else R[1]
            if self.lds:
                self.src = self.src | {("s", "m0")}
        elif op.startswith("s_"):
            self.kind = "salu"
            if op == "s_nop":
                self.states = int(ops[0], 0) + 1
            elif op.startswith(("s_load", "s_memtime", "s_memrealtime")):
                self.kind = "smem"
                self.dst = R[0]
                self.src = un(R[1:])
            elif op.startswith(("s_cmp", "s_waitcnt", "s_barrier", "s_branch", "s_cbranch", "s_sleep", "s_endpgm",
                                "s_setprio", "s_setpc")):
                self.src = un(R)
            elif "saveexec" in op:
                self.dst = R[0] | {("s", "exec")}
                self.src = un(R[1:])
            else:
                self.dst = R[0]
                self.src = un(R[1:])
        else:
            raise ValueError("unknown instruction: " + text)


def need_states(p, c):
    n = 0
    isv = lambda s: {r for r in s if r[0] in "va"}
    iss = lambda s: {r for r in s if r[0] == "s"}
    if p.kind == "valu":
        pv = isv(p.dst)
        ps = iss(p.dst)
        if c.kind == "mfma" and pv & c.src:
            n = max(n, 2)
        if c.kind == "valu":
            if p.op.startswith(TRANS) and not c.op.startswith(TRANS) and pv & c.src:
                n = max(n, 1)
            if p.op.startswith(TRANS) and c.op.startswith(TRANS) and pv & c.src:
                n = max(n, 1)
            if "permlane" in c.op and pv & c.src:
                n = max(n, 2)
            if c.op.startswith(("v_readlane", "v_readfirstlane")) and pv & c.src:
                n = max(n, 1)
            if c.dpp and pv & c.src:
                n = max(n, 2)
            if ps & c.src:
                n = max(n, 4 if c.op.startswith(("v_readlane", "v_writelane")) else 2)
            if p.op.startswith("v_dot") and pv & (c.src | c.dst):
                if c.op != p.op:
                    n = max(n, 3)
            if "_sdwa" in p.op and pv & (c.src | c.dst):
                n = max(n, 1)
        if p.op.startswith("v_dot") and c.kind in ("ds", "vmem", "mfma") and pv & (c.src | c.dst):
            n = max(n, 3)
        if c.kind == "vmem" and ps & c.src:
            n = max(n, 5)
        if c.kind in ("salu", "smem") and ps & c.src:
            n = max(n, 2)
    elif p.kind == "mfma":
        big = p.passes == 8
        if c.kind == "mfma":
            if p.dst & (c.srcA | c.srcB):
                n = max(n, 12 if big else 8)
            if p.dst & c.srcC:
                if not (p.dst == c.srcC and p.passes == c.passes):
                    n = max(n, 10 if big else 6)
            elif p.dst & c.dst:
                n = max(n, 12 if big else 8)
        elif c.kind in ("valu", "ds", "vmem"):
            if p.dst & (c.src | c.dst):
                n = max(n, 12 if big else 8)
            if c.kind == "valu" and p.srcC & c.dst:
                n = max(n, 7 if big else 3)
    elif p.kind == "salu":
        if ("s", "m0") in p.dst and c.kind == "vmem" and c.lds:
            n = max(n, 1)
        if ("s", "m0") in p.dst and c.op.startswith(("v_writelane", "v_readlane")):
            n = max(n, 1)
    elif p.kind == "vmem":
        if p.wide and p.srcA & c.dst and c.kind in ("valu", "mfma"):
            n = max(n, 2)
        elif p.wide and p.srcA & c.dst:
            n = max(n, 1)
    return n


class Cnt:
    def __init__(self, name, maxn):
        self.name, self.maxn = name, maxn
        self.n = 0
        self.done = 0
        self.pend = {}
        self.tags = {}

    def clone(self):
        c = Cnt(self.name, self.maxn)
        c.n, c.done, c.pend, c.tags = self.n, self.done, dict(self.pend), dict(self.tags)
        return c


class Prog:
    def __init__(self):
        self.out = []
        self.hist = []
        self.saved = {}
        self.vm = Cnt("vmcnt", 63)
        self.lg = Cnt("lgkmcnt", 15)
        self.smem_pend = set()
        self.nnop = 0
        self.uid = 0
        self.nwait_auto = 0

    def label(self, base):
        self.uid += 1
        return f"L_{base}_{self.uid}"

    def _emit(self, ins):
        if ins.kind == "label":
            name = ins.op[:-1]
            for h in self.saved.pop(name, []):
                self.hist = self.hist + h
            self.out.append(ins.text)
            return
        if ins.kind == "dir":
            self.out.append(ins.text)
            return
        need = 0
        for p, age in self.hist:
            n = need_states(p, ins)
            if n > age:
                need = max(need, n - age)
        while need > 0:
            k = min(need, 16)
            self.out.append(f"    s_nop {k-1}")
            self.nnop += 1
            self._age(k)
            need -= k
        self.out.append("    " + ins.text)
        self._age(ins.states)
        if ins.op != "s_nop":
            self.hist.append((ins, 0))
        if ins.op.startswith(("s_branch", "s_cbranch")):
            tgt = ins.text.split()[1]
            self.saved.setdefault(tgt, []).append(list(self.hist))

    def _age(self, k):
        self.hist = [(p, a + k) for p, a in self.hist if a + k < 24]

    def _wait(self, c, upto):
        if upto <= c.done:
            return
        n = c.n - upto
        assert n >= 0
        n = min(n, c.maxn)
        self._emit(Ins(f"s_waitcnt {c.name}({n})"))
        c.done = max(c.done, c.n - n)
        c.pend = {r: i for r, i in c.pend.items() if i >= c.done}

    def __call__(self, text, tag=None):
        for line in text.split("\n"):
            line = line.strip()
            if not line:
                continue
            if line.startswith(";"):
                self.out.append("    " + line)
                continue
            self._one(line, tag)

    def _one(self, line, tag):
        ins = Ins(line)
        if ins.kind in ("label", "dir"):
            self._emit(ins)
            return
        touched = ins.src | ins.dst
        if ins.op == "s_waitcnt":
            m = re.search(r"vmcnt\((\d+)\)", line)
            if m:
                c = self.vm
                c.done = max(c.done, c.n - int(m.group(1)))
                c.pend = {r: i for r, i in c.pend.items() if i >= c.done}
            m = re.search(r"lgkmcnt\((\d+)\)", line)
            if m:
                c = self.lg
                if int(m.group(1)) == 0:
                    self.smem_pend = set()
                if not self.smem_pend:
                    c.done = max(c.done, c.n - int(m.group(1)))
                    c.pend = {r: i for r, i in c.pend.items() if i >= c.done}
            self._emit(ins)
            return
        if self.smem_pend & touched:
            self._one("s_waitcnt lgkmcnt(0)", None)
        for c in (self.vm, self.lg):
            need = [c.pend[r] for r in touched if r in c.pend]
            if need:
                if c is self.lg and self.smem_pend:
                    self._one("s_waitcnt lgkmcnt(0)", None)
                else:
                    self.nwait_auto += 1
                    self._wait(c, max(need) + 1)
        self._emit(ins)
        if ins.kind == "vmem":
            c = self.vm
        elif ins.kind == "ds":
            c = self.lg
        else:
            c = None
        if c is not None:
            for r in ins.dst:
                c.pend[r] = c.n
            if tag is not None:
                c.tags[tag] = c.n
            c.n += 1
            if c.n - c.done > c.maxn and c is self.vm:
                pass
        if ins.kind == "smem":
            self.smem_pend |= ins.dst

    def wait_vm(self, tag=None):
        c = self.vm
        self._wait(c, c.n if tag is None else c.tags[tag] + 1)

    def wait_lg(self, tag=None):
        c = self.lg
        if self.smem_pend:
            self._one("s_waitcnt lgkmcnt(0)", None)
            return
        self._wait(c, c.n if tag is None else c.tags[tag] + 1)

    def wait_regs(self, spec):
        rs = regs_of(spec)
        for c in (self.vm, self.lg):
            need = [c.pend[r] for r in rs if r in c.pend]
            if need:
                self._wait(c, max(need) + 1)

    def side_begin(self):
        st = (self.vm, self.lg)
        self.vm, self.lg = self.vm.clone(), self.lg.clone()
        return st

    def side_end(self, st):
        ovm, olg = st
        for c, o in ((self.vm, ovm), (self.lg, olg)):
            new = {r: i for r, i in c.pend.items() if i >= o.n}
            assert not new, f"side block leaves loads pending: {new}"
        self.vm, self.lg = ovm, olg

    def text(self):
        return "\n".join(self.out) + "\n"


def vr(base, n=1, k="v"):
    return f"{k}{base}" if n == 1 else f"{k}[{base}:{base+n-1}]"


def ar(base, n=1):
    return vr(base, n, "a")


def sr(base, n=1):
    return vr(base, n, "s")
```

```python
from asmgen import *
import struct


def f2u(x):
    return struct.unpack("<I", struct.pack("<f", x))[0]


def hx(x):
    return f"0x{x & 0xffffffff:x}"


KNAME = "sequential_preLN__sliding_block__mixer_s_mlp__prompt_kernel"

F1, F2, F5, F3, F4, F6 = 0x0000, 0x0800, 0x1800, 0x2000, 0x4000, 0x6000
FLAG_BYTES = 0x8000
QK = 0x100000
VT = 0x600000
OB = 0x900000
HB = 0xC00000
H1 = 0xF00000
X1 = 0x1200000
ST3 = 0x1500000
ST5 = 0x1580000
STAMP = 0x1600000
PART = 0x2000000
WS_REC = 0x8000000
OOB = 0x8000000

LDS_BYTES = 163840

S_X, S_WQKV, S_WO, S_BX, S_W1, S_W2, S_W3, S_W4, S_OUT, S_DBG, S_WS = 4, 6, 8, 10, 12, 14, 16, 18, 20, 22, 24
R_WS, R_A, R_B, R_C = 28, 32, 36, 40
WS, RA, RB, RC = "s[28:31]", "s[32:35]", "s[36:39]", "s[40:43]"
sX, sL, sW = "s44", "s45", "s46"
sONE = "s47"
SPIN_MAX = 400000

ONES = 0x3F803F80
EPS = 1e-5


def srd(p, r, ptr, nbytes):
    p(f"s_mov_b32 s{r}, s{ptr}")
    p(f"s_mov_b32 s{r+1}, s{ptr+1}")
    p(f"s_mov_b32 s{r+2}, {hx(nbytes)}")
    p(f"s_mov_b32 s{r+3}, 0x20000")


def xhalf(p, op, a, t):
    p(f"v_mov_b32 {t}, {a}")
    p(f"v_permlane32_swap_b32 {a}, {t}")
    p(f"{op} {a}, {a}, {t}")


class Stamps:
    def __init__(self, on):
        self.on = on
        self.names = []

    def __call__(self, p, name):
        if not self.on:
            return
        k = len(self.names)
        assert k < 16
        self.names.append(name)
        if k == 0:
            for q in range(1, 16):
                p(f"s_mov_b32 s{70+2*q}, 0")
        p(f"{'s_memtime' if self.on == 2 else 's_memrealtime'} s[{70+2*k}:{71+2*k}]")

    def flush(self, p):
        if not self.on:
            return
        p("s_waitcnt lgkmcnt(0)")
        p("v_mov_b32 v2, 0")
        for k in range(len(self.names)):
            p(f"v_writelane_b32 v2, s{70+2*k}, {k}")
        p("v_and_b32 v3, 63, v0")
        p("v_lshlrev_b32 v3, 2, v3")
        p(f"s_lshl_b32 s48, s2, 2")
        p(f"s_add_u32 s48, s48, {sW}")
        p(f"s_lshl_b32 s48, s48, 6")
        p(f"s_add_u32 s48, s48, {hx(STAMP)}")
        p("s_mov_b64 exec, 0xffff")
        p(f"buffer_store_dword v2, v3, {WS}, s48 offen")
        p("s_mov_b64 exec, -1")


def set_flag(p, vaddr_tmp, vdata_tmp, s_off, val=1):
    p(f"v_mov_b32 {vaddr_tmp}, 0")
    p(f"v_mov_b32 {vdata_tmp}, {val}")
    p("s_mov_b64 exec, 1")
    p(f"buffer_store_dword {vdata_tmp}, {vaddr_tmp}, {WS}, {s_off} offen sc1")
    p("s_mov_b64 exec, -1")


def poll(p, vaddr, vtmp, nlanes, val=1, srd_=WS, scnt="s69"):
    lp, out = p.label("poll"), p.label("pollout")
    mask = (1 << nlanes) - 1
    if nlanes <= 32:
        p(f"s_mov_b32 exec_lo, {hx(mask)}")
        p("s_mov_b32 exec_hi, 0")
    else:
        p(f"s_mov_b32 exec_hi, {hx(mask >> 32)}")
    p(f"s_mov_b32 {scnt}, 0")
    p(f"{lp}:")
    p(f"buffer_load_dword {vtmp}, {vaddr}, {srd_}, 0 offen sc1")
    p(f"s_add_u32 {scnt}, {scnt}, 1")
    p(f"s_cmp_gt_u32 {scnt}, {SPIN_MAX}")
    p("s_waitcnt vmcnt(0)")
    p(f"s_cbranch_scc1 {out}")
    p(f"v_cmp_gt_u32 vcc, {val}, {vtmp}")
    p("s_nop 1")
    p(f"s_cbranch_vccnz {lp}")
    p(f"{out}:")
    p("s_mov_b64 exec, -1")
```

```python
from common import *

sI, sJ, sKC, sXB, sWB, sT0, sT1, sM = "s48", "s49", "s50", "s51", "s52", "s53", "s54", "s55"
vX, vW, vB, vA = 2, 6, 10, 14
vS, vQ, vC = "v18", "v19", "v20"
XF, W0F, ACC = 32, 48, 64
QSCALE = (18 ** -0.5) * 1.4426950408889634


def p1_ids(p):
    p(f"s_and_b32 {sT0}, {sL}, 3")
    p(f"s_lshr_b32 {sT1}, {sL}, 2")
    p(f"s_and_b32 {sI}, {sX}, 3")
    p(f"s_lshl_b32 {sI}, {sI}, 2")
    p(f"s_add_u32 {sI}, {sI}, {sT0}")
    p(f"s_lshr_b32 {sJ}, {sX}, 2")
    p(f"s_mul_i32 {sJ}, {sJ}, 7")
    p(f"s_add_u32 {sJ}, {sJ}, {sT1}")
    p(f"s_lshl_b32 {sT1}, {sT1}, 2")
    p(f"s_mul_i32 {sT0}, {sT0}, 7")
    p(f"s_add_u32 {sKC}, {sT0}, {sT1}")
    p(f"s_add_u32 {sKC}, {sKC}, {sX}")
    p(f"s_mul_i32 {sT0}, {sKC}, 57")
    p(f"s_lshr_b32 {sT0}, {sT0}, 9")
    p(f"s_mul_i32 {sT0}, {sT0}, 9")
    p(f"s_sub_u32 {sKC}, {sKC}, {sT0}")
    p(f"s_lshl_b32 {sXB}, {sI}, 2")
    p(f"s_add_u32 {sXB}, {sXB}, {sW}")
    p(f"s_mul_i32 {sXB}, {sXB}, 36864")
    p(f"s_mul_i32 {sWB}, {sW}, {16*3456}")
    p(f"s_lshl_b32 {sT0}, {sJ}, 8")
    p(f"s_add_u32 {sWB}, {sWB}, {sT0}")
    p(f"s_lshl_b32 {sM}, {sW}, 12")


def p1_dma_addr(p):
    p("v_lshrrev_b32 v21, 3, v1")
    p("v_mul_u32_u24 v21, 1152, v21")
    p("v_lshrrev_b32 v22, 4, v1")
    p("v_and_b32 v23, 7, v1")
    p("v_xor_b32 v23, v23, v22")
    p(f"v_lshl_add_u32 v{vX}, v23, 4, v21")
    p("v_xor_b32 v23, 4, v23")
    p(f"v_lshl_add_u32 v{vX+1}, v23, 4, v21")
    p(f"v_add_u32 v{vX+2}, {2*8192}, v{vX}")
    p(f"v_add_u32 v{vX+3}, {3*8192}, v{vX+1}")
    p(f"v_add_u32 v{vX+1}, {8192}, v{vX+1}")
    p("v_bfe_u32 v23, v1, 2, 2")
    p("v_xor_b32 v23, v23, v22")
    p("v_mul_u32_u24 v22, 3456, v22")
    p("v_lshl_add_u32 v22, v23, 6, v22")
    p("v_and_b32 v23, 3, v1")
    p(f"v_lshl_add_u32 v{vW}, v23, 4, v22")
    for q in range(1, 4):
        p(f"v_add_u32 v{vW+q}, {q*(4*3456-1024)}, v{vW}")


def p1_dma_ops(c):
    o = []
    slot = (c % 5) * 32768
    o.append(f"s_lshl_b32 {sT0}, {sKC}, 7")
    o.append(f"s_add_u32 {sT0}, {sT0}, {sXB}")
    o.append(f"s_add_u32 m0, {sM}, {slot}")
    o.append(f"s_mul_i32 {sT1}, {sKC}, {64*3456}")
    for q in range(4):
        o.append(f"buffer_load_dwordx4 v{vX+q}, {RB}, {sT0} offen offset:{q*1024} lds")
    o.append(f"s_add_u32 m0, {sM}, {slot+16384}")
    o.append(f"s_add_u32 {sT1}, {sT1}, {sWB}")
    for q in range(4):
        o.append(f"buffer_load_dwordx4 v{vW+q}, {RA}, {sT1} offen offset:{q*1024} lds")
    o.append(f"s_add_u32 {sKC}, {sKC}, 1")
    o.append(f"s_cmp_eq_u32 {sKC}, 9")
    o.append(f"s_cselect_b32 {sKC}, 0, {sKC}")
    return o


def emit_dma(p, c):
    ops = p1_dma_ops(c)
    last = max(k for k, o in enumerate(ops) if o.startswith("buffer"))
    for k, o in enumerate(ops):
        p(o, tag=f"p1c{c}" if k == last else None)


def p1_read_addr(p, vmode):
    p("v_and_b32 v21, 31, v1")
    p("v_lshlrev_b32 v21, 7, v21")
    p(f"v_add_u32 v21, {sM}, v21")
    p("v_bfe_u32 v22, v1, 1, 3")
    p("v_lshrrev_b32 v23, 5, v1")
    p("v_xor_b32 v22, v22, v23")
    for s in range(4):
        p(f"v_xor_b32 v24, {2*s}, v22")
        p(f"v_lshl_add_u32 v{vB+s}, v24, 4, v21")
    p("v_bfe_u32 v21, v1, 2, 2")
    p("v_lshl_add_u32 v22, v23, 3, v21")
    p("v_lshlrev_b32 v22, 8, v22")
    p("v_bfe_u32 v24, v1, 4, 1")
    p("v_lshl_add_u32 v22, v24, 5, v22")
    if vmode:
        p("v_and_b32 v24, 3, v1")
        p("v_lshl_add_u32 v22, v24, 3, v22")
    else:
        p("v_and_b32 v24, 1, v1")
        p("v_lshl_add_u32 v22, v24, 4, v22")
        p("v_bfe_u32 v24, v1, 1, 1")
        p("v_lshl_add_u32 v22, v24, 3, v22")
    for t in range(4):
        p(f"s_add_u32 {sT0}, {sW}, {t}")
        p(f"s_and_b32 {sT0}, {sT0}, 3")
        p(f"v_xor_b32 v24, {sT0}, v21")
        p(f"v_lshl_add_u32 v{vA+t}, v24, 6, v22")


def afrag(g, t):
    pb = g & 1
    return (W0F + 4 * (g & 3), "v") if t == 0 else (12 * pb + 4 * (t - 1), "a")


def reads(g):
    c, s = divmod(g, 4)
    so = ((c % 5) % 2) * 32768
    out = [[f"ds_read_b128 {vr(XF+4*(g&3),4)}, v{vB+s} offset:{so}"], [], [], []]
    for t in range(4):
        b, k = afrag(g, t)
        for q in range(2):
            out[t].append(f"ds_read_b64_tr_b16 {vr(b+2*q,2,k)}, v{vA+t} offset:{so+16384+s*4096+q*1024}")
    return out


def p1_main(p, vmode, st=None, first=3):
    p(f"v_mov_b32 {vS}, 0")
    p(f"v_mov_b32 {vQ}, 0")
    p(f"v_mov_b32 {vC}, 0")
    p.wait_vm("p1c0")
    p("s_barrier")
    for grp in reads(0):
        for o in grp:
            p(o)
    pend = []
    nxt_chunk = first
    for g in range(36):
        c, s = divmod(g, 4)
        xf = XF + 4 * (g & 3)
        nxt = reads(g + 1) if g < 35 else [[], [], [], []]
        if s == 0 and nxt_chunk < 5:
            for cc in range(nxt_chunk, 5):
                pend += [(o, cc) for o in p1_dma_ops(cc)]
            nxt_chunk = 5
        for t in range(4):
            b, k = afrag(g, t)
            acc = vr(ACC + 16 * t, 16)
            cin = "0" if g == 0 else acc
            A, B = vr(b, 4, k), vr(xf, 4)
            if vmode:
                A, B = B, A
            if t == 0 and s == 3:
                p.wait_lg()
                for kk in range(16):
                    p(f"v_dot2c_f32_bf16 {vS}, {sONE}, v{XF+kk}")
                    p(f"v_dot2c_f32_bf16 {vQ}, v{XF+kk}, v{XF+kk}")
                    p(f"v_dot2c_f32_bf16 {vC}, {sONE}, v{W0F+kk}")
            p(f"v_mfma_f32_32x32x16_bf16 {acc}, {A}, {B}, {cin}")
            if t == 0 and s == 3 and c < 8:
                assert not any(cc <= c + 1 for _, cc in pend)
                p.wait_vm(f"p1c{c+1}")
                p("s_barrier")
                pass
                w0, w1 = (c % 5) // 2, ((c + 1) % 5) // 2
                if w0 != w1:
                    for r in list(range(vB, vB + 4)) + list(range(vA, vA + 4)):
                        p(f"v_add_u32 v{r}, {hx((w1-w0)*65536)}, v{r}")
                if nxt_chunk < 9:
                    pend += [(o, nxt_chunk) for o in p1_dma_ops(nxt_chunk)]
                    nxt_chunk += 1
            for o in nxt[t]:
                p(o)
            nb = 2 if c == 0 else 1
            while pend and nb > 0:
                o, cc = pend.pop(0)
                isb = o.startswith("buffer")
                last = isb and not any(x.startswith("buffer") and c2 == cc for x, c2 in pend)
                p(o, tag=f"p1c{cc}" if last else None)
                if isb:
                    nb -= 1
            while pend and not pend[0][0].startswith("buffer") and not any(x.startswith("buffer") and c2 == pend[0][1] for x, c2 in pend):
                p(pend.pop(0)[0])
    assert not pend


def p1_epilogue(p, vmode):
    CSL = 131072
    xhalf(p, "v_add_f32", vC, "v21")
    p("v_and_b32 v22, 31, v1")
    p("v_lshlrev_b32 v22, 2, v22")
    p(f"s_lshl_b32 {sT0}, {sW}, 7")
    p(f"s_add_u32 {sT0}, {sT0}, {CSL}")
    p(f"v_add_u32 v23, {sT0}, v22")
    p(f"ds_write_b32 v23, {vC}")
    xhalf(p, "v_add_f32", vS, "v21")
    xhalf(p, "v_add_f32", vQ, "v24")
    p.wait_lg()
    p("s_barrier")
    for t in range(4):
        p(f"s_add_u32 {sT0}, {sW}, {t}")
        p(f"s_and_b32 {sT0}, {sT0}, 3")
        p(f"s_lshl_b32 {sT0}, {sT0}, 7")
        p(f"s_add_u32 {sT0}, {sT0}, {CSL}")
        p(f"v_add_u32 v23, {sT0}, v22")
        p(f"ds_read_b32 v{28+t}, v23")
    p(f"v_mul_f32 {vS}, {hx(f2u(-1.0/576))}, {vS}")
    p(f"v_mul_f32 {vQ}, {hx(f2u(1.0/576))}, {vQ}")
    p(f"v_fma_f32 {vQ}, -{vS}, {vS}, {vQ}")
    p(f"v_max_f32 {vQ}, 0, {vQ}")
    p(f"v_add_f32 {vQ}, {hx(f2u(EPS))}, {vQ}")
    p(f"v_rsq_f32 {vQ}, {vQ}")
    p("v_cmp_gt_u32 vcc, 32, v1")
    p(f"v_cndmask_b32 {vS}, 0, {vS}, vcc")
    MU = 32
    p(f"v_cvt_pk_bf16_f32 v{MU}, {vS}, {vS}")
    p(f"v_mov_b32 v{MU+2}, 0")
    p(f"v_mov_b32 v{MU+3}, 0")
    p(f"v_and_b32 v24, 0xffff0000, v{MU}")
    p(f"v_sub_f32 v24, {vS}, v24")
    p(f"v_cvt_pk_bf16_f32 v{MU+1}, v24, 0")
    CSF = 40
    for t in range(4):
        b = CSF + 4 * t
        p(f"v_cvt_pk_bf16_f32 v{b+1}, v{28+t}, 0")
        p(f"v_mov_b32 v{b+2}, 0")
        p(f"v_lshlrev_b32 v24, 16, v{b+1}")
        p(f"v_sub_f32 v24, v{28+t}, v24")
        p(f"v_mov_b32 v{b+3}, 0")
        p(f"v_cvt_pk_bf16_f32 v{b}, v{28+t}, v24")
    for t in range(4):
        acc = vr(ACC + 16 * t, 16)
        A, B = vr(CSF + 4 * t, 4), vr(MU, 4)
        if vmode:
            A, B = B, A
        p(f"v_mfma_f32_32x32x16_bf16 {acc}, {A}, {B}, {acc}")
    RBC = 128
    if vmode:
        p(f"v_cndmask_b32 v24, 0, {vQ}, vcc")
        p(f"v_cvt_pk_bf16_f32 v25, v24, 0")
        p(f"v_lshlrev_b32 v25, 16, v25")
        p(f"v_sub_f32 v25, v24, v25")
        p(f"v_cvt_pk_bf16_f32 v36, v24, v25")
        p(f"v_and_b32 v26, 0xffff0000, v36")
        p(f"v_sub_f32 v26, v25, v26")
        p(f"v_cvt_pk_bf16_f32 v37, v26, 0")
        p("v_mov_b32 v38, 0")
        p("v_mov_b32 v39, 0")
        for k in range(4):
            p(f"v_mov_b32 v{56+k}, {sONE}")
        p(f"v_mfma_f32_32x32x16_bf16 {vr(RBC,16)}, v[36:39], v[56:59], 0")
        p("v_and_b32 v22, 31, v1")
        p("v_lshlrev_b32 v22, 5, v22")
        p("v_lshrrev_b32 v23, 5, v1")
        p("v_lshl_add_u32 v22, v23, 4, v22")
        p("v_add_u32 v23, 18432, v22")
    else:
        p("v_lshlrev_b32 v22, 4, v1")
    p(f"s_lshl_b32 {sXB}, {sI}, 2")
    p(f"s_add_u32 {sXB}, {sXB}, {sW}")
    p(f"s_mul_i32 {sXB}, {sXB}, {36864 if vmode else 144*512}")
    p(f"s_add_u32 {sXB}, {sXB}, {hx(VT - 36*1024 if vmode else QK)}")
    for t in range(4):
        a = ACC + 16 * t
        p(f"s_add_u32 {sT0}, {sW}, {t}")
        p(f"s_and_b32 {sT0}, {sT0}, 3")
        p(f"s_lshl_b32 {sT1}, {sJ}, 2")
        p(f"s_add_u32 {sT0}, {sT0}, {sT1}")
        if vmode:
            for k in range(0, 16, 2):
                p(f"v_pk_mul_f32 {vr(a+k,2)}, {vr(a+k,2)}, {vr(RBC+k,2)}")
            p(f"s_lshl_b32 {sT1}, {sT0}, 10")
        else:
            p(f"s_cmp_lt_u32 {sT0}, 18")
            p(f"s_cselect_b32 {sT1}, {hx(f2u(QSCALE))}, 1.0")
            p(f"v_mul_f32 v24, {sT1}, {vQ}")
            for k in range(0, 16, 2):
                p(f"v_pk_mul_f32 {vr(a+k,2)}, {vr(a+k,2)}, v[24:25] op_sel_hi:[1,0]")
            p(f"s_lshl_b32 {sT1}, {sT0}, 11")
        for k in range(8):
            p(f"v_cvt_pk_bf16_f32 v{a+k}, v{a+2*k}, v{a+2*k+1}")
        p(f"s_add_u32 {sT1}, {sT1}, {sXB}")
        if vmode:
            p(f"s_cmp_lt_u32 {sT0}, 54")
            p(f"s_cselect_b32 {sT1}, {sT1}, {hx(OOB)}")
            p(f"buffer_store_dwordx4 {vr(a,4)}, v22, {WS}, {sT1} offen sc1")
            p(f"buffer_store_dwordx4 {vr(a+4,4)}, v23, {WS}, {sT1} offen sc1")
        else:
            p(f"buffer_store_dwordx4 {vr(a,4)}, v22, {WS}, {sT1} offen sc1")
            p(f"buffer_store_dwordx4 {vr(a+4,4)}, v22, {WS}, {sT1} offen offset:1024 sc1")
```

```python
from common import *

sB, sU, sH, sG0, sO2, sT0, sT1, sKO, sVO = "s48", "s49", "s50", "s51", "s52", "s53", "s54", "s55", "s56"
KA, VA = 0, 80
vLN, vV0, vV1, vPL = "v2", "v3", "v4", "v5"
QF = 16
CD, CO = 32, 48
SB = 64
PB = 96
OA = 112
vM0, vM1 = "v10", "v11"
HI = "0xffffffff00000000"
NEG_INF = 0xFF800000


def exec_lo(p):
    p("s_mov_b32 exec_hi, 0")


def exec_hi(p):
    p("s_mov_b64 exec, -1")
    p("s_mov_b32 exec_lo, 0")


def exec_all(p):
    p("s_mov_b64 exec, -1")


def p2_setup(p):
    p(f"s_and_b32 {sB}, {sL}, 3")
    p(f"s_lshl_b32 {sT0}, {sX}, 2")
    p(f"s_add_u32 {sB}, {sB}, {sT0}")
    p(f"s_lshr_b32 {sU}, {sL}, 2")
    p(f"s_lshl_b32 {sH}, {sU}, 2")
    p(f"s_add_u32 {sH}, {sH}, {sW}")
    p(f"s_mul_i32 {sG0}, {sH}, 18")
    p(f"s_lshr_b32 {sG0}, {sG0}, 3")
    p(f"s_and_b32 {sO2}, {sH}, 3")
    p(f"v_lshlrev_b32 {vLN}, 4, v1")
    p("v_and_b32 v6, 0x13, v1")
    p("v_bfe_u32 v7, v1, 2, 1")
    p("v_lshl_add_u32 v6, v7, 3, v6")
    p("v_bfe_u32 v7, v1, 3, 1")
    p("v_lshl_add_u32 v6, v7, 2, v6")
    p("v_lshrrev_b32 v7, 5, v1")
    p("v_lshlrev_b32 v8, 4, v7")
    p(f"v_lshl_add_u32 {vV0}, v6, 5, v8")
    p(f"v_add_u32 {vV1}, 18432, {vV0}")
    p("v_and_b32 v6, 31, v1")
    p("v_lshlrev_b32 v7, 2, v7")
    p("v_sub_u32 v6, v6, v7")
    p(f"v_mov_b32 v8, {hx(NEG_INF)}")
    p("v_mov_b32 v9, 0")
    for r in range(16):
        c = 8 * (r // 4) + r % 4
        p(f"v_cmp_le_i32 vcc, {c}, v6")
        p(f"v_cndmask_b32 v{CD+r}, v8, v9, vcc")
        p(f"v_cndmask_b32 v{CO+r}, v9, v8, vcc")
    p("v_and_b32 v6, 27, v1")
    p("v_cmp_eq_u32 vcc, 18, v6")
    p(f"v_mov_b32 v7, {sONE}")
    p("v_cndmask_b32 v6, 0, v7, vcc")
    p("s_mov_b32 exec_lo, 0xfffc0000")
    p("s_mov_b32 exec_hi, 0xfffc0000")
    for r in range(80):
        p(f"v_accvgpr_write_b32 a{VA+r}, v6")
    exec_hi(p)
    p(f"s_lshl_b32 {sT0}, {sB}, 1")
    for k in range(10):
        p(f"s_cmp_ge_u32 {sT0}, {max(8-k,0)}")
        p(f"s_cselect_b32 {sT1}, 0x3f800000, 0x3f80ff80")
        p(f"v_accvgpr_write_b32 a{KA+8*k+4}, {sT1}")
        p(f"v_accvgpr_write_b32 a{KA+8*k+5}, {sONE}")
        p(f"v_accvgpr_write_b32 a{KA+8*k+6}, 0")
        p(f"v_accvgpr_write_b32 a{KA+8*k+7}, 0")
    for a in range(2):
        p(f"v_mov_b32 v{QF+8*a+4}, 0x3f80")
        for r in range(5, 8):
            p(f"v_mov_b32 v{QF+8*a+r}, 0")
    exec_all(p)
    p("v_mul_u32_u24 v6, 43, v1")
    p("v_lshrrev_b32 v6, 8, v6")
    p("v_mul_u32_u24 v7, 6, v6")
    p("v_sub_u32 v7, v1, v7")
    p(f"s_lshr_b32 {sT0}, {sB}, 1")
    p(f"v_sub_u32 v6, {sT0}, v6")
    p("v_max_i32 v6, 0, v6")
    p("v_lshrrev_b32 v8, 1, v7")
    p("v_mul_u32_u24 v8, 576, v8")
    p("v_and_b32 v7, 1, v7")
    p("v_mul_u32_u24 v7, 71, v7")
    p(f"s_mul_i32 {sT0}, {sU}, 72")
    p(f"v_add3_u32 v7, v7, v8, {sT0}")
    p("v_lshrrev_b32 v7, 7, v7")
    p("v_lshlrev_b32 v7, 3, v7")
    p(f"v_lshl_add_u32 {vPL}, v6, 7, v7")
    assert F1 == 0


def p2_loads(p):
    p(f"s_mul_i32 {sT0}, {sB}, {2*144}")
    p(f"s_add_u32 {sT0}, {sT0}, {sG0}")
    p(f"s_lshl_b32 {sT0}, {sT0}, 9")
    p(f"s_add_u32 {sT0}, {sT0}, {hx(QK)}")
    p(f"s_add_u32 {sT1}, {sT0}, {144*512}")
    p(f"s_add_u32 {sKO}, {sT0}, {hx(72*512 - 8*144*512)}")
    p(f"s_mul_i32 {sVO}, {sB}, {2*36864}")
    p(f"s_mul_i32 s57, {sH}, {18*32}")
    p(f"s_add_u32 {sVO}, {sVO}, s57")
    p(f"s_add_u32 {sVO}, {sVO}, {hx(VT - 8*36864)}")
    p(f"s_lshl_b32 s58, {sB}, 1")

    def koff(k):
        p(f"s_add_u32 s57, {sKO}, {k*144*512}")
        if k < 8:
            p(f"s_cmp_ge_u32 s58, {8-k}")
            p(f"s_cselect_b32 s57, s57, {hx(OOB)}")

    p(f"buffer_load_dwordx4 {vr(QF,4)}, {vLN}, {WS}, {sT0} offen sc1")
    exec_lo(p)
    p(f"buffer_load_dwordx4 {vr(QF+4,4)}, {vLN}, {WS}, {sT0} offen offset:1024 sc1")
    exec_all(p)
    for k in range(10):
        koff(k)
        p(f"buffer_load_dwordx4 {ar(KA+8*k,4)}, {vLN}, {WS}, s57 offen sc1")
        exec_lo(p)
        p(f"buffer_load_dwordx4 {ar(KA+8*k+4,4)}, {vLN}, {WS}, s57 offen offset:1024 sc1")
        exec_all(p)
        if k == 0:
            p(f"buffer_load_dwordx4 {vr(QF+8,4)}, {vLN}, {WS}, {sT1} offen sc1")
            exec_lo(p)
            p(f"buffer_load_dwordx4 {vr(QF+12,4)}, {vLN}, {WS}, {sT1} offen offset:1024 sc1")
            exec_all(p)
    p("s_mov_b32 exec_lo, 0x3ffff")
    p("s_mov_b32 exec_hi, 0x3ffff")
    for k in range(10):
        p(f"s_add_u32 s57, {sVO}, {k*36864}")
        if k < 8:
            p(f"s_cmp_ge_u32 s58, {8-k}")
            p(f"s_cselect_b32 s57, s57, {hx(OOB)}")
        p(f"buffer_load_dwordx4 {ar(VA+8*k,4)}, {vV0}, {WS}, s57 offen sc1")
        p(f"buffer_load_dwordx4 {ar(VA+8*k+4,4)}, {vV1}, {WS}, s57 offen sc1")
    exec_all(p)


def q_mask(p, a):
    q = QF + 8 * a
    exec_lo(p)
    for d in range(3):
        p(f"s_cmp_gt_u32 {sO2}, {d}")
        p(f"s_cselect_b32 {sT0}, 0, -1")
        p(f"v_and_b32 v{q+d}, {sT0}, v{q+d}")
    for d in range(1, 4):
        p(f"s_cmp_ge_u32 {sO2}, {d}")
        p(f"s_cselect_b32 {sT0}, -1, 0")
        p(f"v_and_b32 v{q+4+d}, {sT0}, v{q+4+d}")
    exec_all(p)


def s_mfmas(a, bi):
    k = a + bi
    s = vr(SB + 16 * (bi & 1), 16)
    c = vr(CO, 16) if bi == 0 else (vr(CD, 16) if bi == 8 else "0")
    q = QF + 8 * a
    return [f"v_mfma_f32_32x32x16_bf16 {s}, {ar(KA+8*k,4)}, {vr(q,4)}, {c}",
            f"v_mfma_f32_32x32x16_bf16 {s}, {ar(KA+8*k+4,4)}, {vr(q+4,4)}, {s}"]


def pass1(p, a):
    for o in s_mfmas(a, 0):
        p(o)
    for bi in range(9):
        s = SB + 16 * (bi & 1)
        if bi < 8:
            for o in s_mfmas(a, bi + 1):
                p(o)
        for k in range(8):
            m = vM0 if k % 2 == 0 else vM1
            if bi == 0 and k < 2:
                p(f"v_max_f32 {m}, v{s+2*k}, v{s+2*k+1}")
            else:
                p(f"v_max3_f32 {m}, v{s+2*k}, v{s+2*k+1}, {m}")
    p(f"v_max_f32 {vM0}, {vM0}, {vM1}")
    xhalf(p, "v_max_f32", vM0, vM1)
    q = QF + 8 * a + 4
    p(f"v_sub_f32 {vM0}, 0, {vM0}")
    p(f"v_cvt_pk_bf16_f32 v12, {vM0}, {vM0}")
    p(f"v_and_b32 v12, 0xffff0000, v12")
    p(f"v_sub_f32 v13, {vM0}, v12")
    p(f"v_cvt_pk_bf16_f32 v14, v13, v13")
    p(f"v_and_b32 v14, 0xffff0000, v14")
    p(f"v_sub_f32 v14, v13, v14")
    exec_hi(p)
    p(f"v_or_b32 v{q}, 0x3f80, v12")
    p(f"v_cvt_pk_bf16_f32 v{q+1}, v13, v14")
    exec_all(p)


def pv_mfmas(a, bi):
    k = a + bi
    o = vr(OA + 16 * a, 16)
    pb = PB + 8 * (bi & 1)
    return [f"v_mfma_f32_32x32x16_bf16 {o}, {ar(VA+8*k,4)}, {vr(pb,4)}, {'0' if bi == 0 else o}",
            f"v_mfma_f32_32x32x16_bf16 {o}, {ar(VA+8*k+4,4)}, {vr(pb+4,4)}, {o}"]


def pass2(p, a, fill=None):
    fill = fill if fill is not None else []
    for o in s_mfmas(a, 0):
        p(o)
    for bi in range(9):
        s = SB + 16 * (bi & 1)
        pb = PB + 8 * (bi & 1)
        mf = (s_mfmas(a, bi + 1) if bi < 8 else [None, None]) + (pv_mfmas(a, bi - 1) if bi > 0 else [None, None])
        ex = lambda r: p(f"v_exp_f32 v{s+r}, v{s+r}")
        cv = lambda k: p(f"v_cvt_pk_bf16_f32 v{pb+k}, v{s+2*k}, v{s+2*k+1}")
        plan = [([0, 1, 2, 3], []), ([4, 5, 6, 7, 8], [0]), ([9, 10, 11, 12], [1, 2, 3]), ([13, 14, 15], [4, 5, 6, 7])]
        for j in range(4):
            if mf[j]:
                p(mf[j])
            if fill:
                p(fill.pop(0))
            es, cs = plan[j]
            if j == 3:
                for r in es:
                    ex(r)
                for k in cs:
                    cv(k)
            else:
                for k in cs:
                    cv(k)
                for r in es:
                    ex(r)
    for o in pv_mfmas(a, 8):
        p(o)


def o_store(p, a):
    o = OA + 16 * a
    p(f"v_rcp_f32 v12, v{o+10}")
    p(f"s_lshl_b32 {sT0}, {sB}, 1")
    p(f"s_add_u32 {sT0}, {sT0}, {a}")
    p(f"s_mul_i32 {sT0}, {sT0}, 36")
    p(f"s_add_u32 {sT1}, {sT0}, {sH}")
    p(f"s_lshl_b32 {sT1}, {sT1}, 10")
    p(f"s_add_u32 {sT1}, {sT1}, {hx(OB)}")
    for r in range(10):
        p(f"v_mul_f32 v{o+r}, v{o+r}, v12")
    for k in range(5):
        p(f"v_cvt_pk_bf16_f32 v{o+k}, v{o+2*k}, v{o+2*k+1}")
    p(f"buffer_store_dwordx4 {vr(o,4)}, {vLN}, {WS}, {sT1} offen sc1")
    p(f"s_add_u32 {sT0}, {sT0}, 32")
    p(f"s_lshl_b32 {sT0}, {sT0}, 10")
    p(f"s_lshr_b32 {sT1}, {sH}, 2")
    p(f"s_lshl_b32 {sT1}, {sT1}, 9")
    p(f"s_add_u32 {sT0}, {sT0}, {sT1}")
    p(f"s_lshl_b32 {sT1}, {sO2}, 2")
    p(f"s_add_u32 {sT0}, {sT0}, {sT1}")
    p(f"s_add_u32 {sT0}, {sT0}, {hx(OB)}")
    exec_lo(p)
    p(f"buffer_store_dword v{o+4}, {vLN}, {WS}, {sT0} offen sc1")
    exec_all(p)


def p2(p, st, opts):
    p2_setup(p)
    L = p.label("p2go")
    p(f"s_cmp_lg_u32 {sW}, 0")
    p(f"s_cbranch_scc1 {L}")
    s = p.side_begin()
    poll(p, vPL, "v6", 18)
    p.side_end(s)
    p(f"{L}:")
    p("s_barrier")
    st(p, "f1seen")
    p2_loads(p)
    q_mask(p, 0)
    pass1(p, 0)
    q_mask(p, 1)
    pass1(p, 1)
    pass2(p, 0)
    o_store(p, 0)
    pass2(p, 1)
    o_store(p, 1)
    p.wait_vm()
    p("s_barrier")
    L = p.label("f2")
    p(f"s_cmp_lg_u32 {sW}, 0")
    p(f"s_cbranch_scc1 {L}")
    s = p.side_begin()
    p(f"s_lshl_b32 {sT0}, {sB}, 7")
    p(f"s_lshl_b32 {sT1}, {sU}, 4")
    p(f"s_add_u32 {sT0}, {sT0}, {sT1}")
    p(f"s_add_u32 {sT0}, {sT0}, {F2}")
    set_flag(p, "v6", "v7", sT0)
    p.side_end(s)
    p(f"{L}:")
    st(p, "p2stored")
```

```python
from common import *
from sg import gelu_ops, interleave, GK

sI, sMm, sC, sFO, sFH, sT0, sT1, sLW, sDA, sDB, sPB, sFL, sT2, sCNT = (
    "s48", "s49", "s50", "s51", "s52", "s53", "s54", "s55", "s56", "s57", "s58", "s59", "s60", "s61")
vLN, vF6, vF68, vH0, vZ = "v2", "v3", "v4", "v5", "v6"
AB = 8
DO = 16
vCA, vCB = "v25", "v26"
GT = 27
vHS = 31
ID0, ID1, IDX = 32, 36, 40
vFL, vFL8 = "v44", "v45"
ST = 46
ACC = [80, 96, 64]
ACC8 = 112
CV = [128, 136]
XB = 112
HB_ = 0
AFR, NAF = 72, 7
PL = 100
PL8 = PL + 17 * 8
SLOT = 36864
PD = NAF - 1


def ids(p):
    p(f"s_and_b32 {sMm}, {sL}, 1")
    p(f"s_lshl_b32 {sT0}, {sX}, 1")
    p(f"s_add_u32 {sMm}, {sMm}, {sT0}")
    p(f"s_lshr_b32 {sI}, {sL}, 1")
    p(f"s_mov_b32 {sC}, {sX}")
    p(f"s_mul_i32 {sFO}, {sMm}, 288")
    p(f"s_bitcmp1_b32 {sMm}, 0")
    p(f"s_cselect_b32 {sT0}, 0, 256")
    p(f"s_cselect_b32 {sT1}, 32, 0")
    p(f"s_add_u32 {sFH}, {sFO}, {sT0}")
    p(f"s_add_u32 {sFO}, {sFO}, {sT1}")
    p(f"s_mul_i32 {sLW}, {sW}, 9216")
    p(f"v_lshlrev_b32 {vLN}, 4, v1")
    srd(p, R_A, S_W3, 576 * 9216)
    srd(p, R_B, S_W4, 4608 * 1152)


def dma_pattern(p, kind):
    t, u = f"v{GT}", f"v{GT+1}"
    if kind == "half":
        p(f"v_lshrrev_b32 {t}, 2, v1")
        p(f"v_mul_u32_u24 {t}, 9216, {t}")
        p(f"v_and_b32 {u}, 3, v1")
        p(f"v_lshl_add_u32 v{DO}, {u}, 4, {t}")
        step = 16 * 9216
    else:
        stride = 9216 if kind == "w3" else 1152
        p(f"v_lshrrev_b32 {t}, 3, v1")
        p(f"v_mul_u32_u24 {t}, {stride}, {t}")
        p(f"v_bfe_u32 {u}, v1, 4, 1")
        p(f"v_lshlrev_b32 {u}, 2, {u}")
        p(f"v_xor_b32 {u}, {u}, v1")
        p(f"v_and_b32 {u}, 7, {u}")
        p(f"v_lshl_add_u32 v{DO}, {u}, 4, {t}")
        step = 8 * stride
    k0 = lambda k: k - 4 if (kind == "w4" and k >= 4) else k
    return [f"v_add_u32 v{DO+k}, {k0(k)*step - (k%4)*1024}, v{DO}" for k in range(1, 9)]


def stage_dma(tau):
    o = []
    slot = (tau % 4) * SLOT
    if tau == 0:
        o += [f"s_mul_i32 {sDA}, {sW}, {144*9216}", f"s_lshl_b32 {sT0}, {sFH}, 1", f"s_add_u32 {sDA}, {sDA}, {sT0}"]
        so = lambda k: sDA
        r = RA
    elif tau < 9:
        cc, kh = divmod(tau - 1, 2)
        o += [f"s_mul_i32 {sDA}, {sW}, {72*9216}", f"s_lshl_b32 {sT0}, {sFO}, 1", f"s_add_u32 {sDA}, {sDA}, {sT0}"]
        if kh or cc:
            o += [f"s_add_u32 {sDA}, {sDA}, {kh*288*9216 + cc*128}"]
        so = lambda k: sDA
        r = RA
    else:
        sg = tau - 9
        if sg == 0:
            o += [f"s_mov_b32 {sT0}, {8*128}"]
        else:
            o += [f"s_add_u32 {sT0}, {sC}, {sg}", f"s_and_b32 {sT0}, {sT0}, 7", f"s_lshl_b32 {sT0}, {sT0}, 7"]
        o += [f"s_add_u32 {sDA}, s62, {sT0}", f"s_add_u32 {sDB}, s63, {sT0}"]
        so = lambda k: sDA if k < 4 else sDB
        r = RB
    o = ["\n".join(o)]
    for k in range(9):
        if k % 4 == 0:
            o.append(f"s_add_u32 m0, {sLW}, {slot + k*1024}")
        o.append(f"buffer_load_dwordx4 v{DO+k}, {r}, {so(k)} offen offset:{(k%4)*1024} lds")
    return o


def w4_bases():
    return ["\n".join([f"s_sub_u32 s63, {sFO}, 32", f"s_cmp_eq_u32 {sW}, 0", f"s_cselect_b32 s62, {sFH}, s63",
                       f"s_mul_i32 {sT0}, {sW}, 72", f"s_add_u32 s62, s62, {sT0}", f"s_add_u32 s63, {sFO}, {sT0}",
                       f"s_mul_i32 s62, s62, 1152", f"s_mul_i32 s63, s63, 1152"])]


def emit_list(p, ops, tag):
    last = max(k for k, o in enumerate(ops) if o.startswith("buffer"))
    for k, o in enumerate(ops):
        p(o, tag=tag if k == last else None)


def prefill(p):
    for o in dma_pattern(p, "half"):
        p(o)
    emit_list(p, stage_dma(0), "st0")
    for o in dma_pattern(p, "w3"):
        p(o)
    for tau in (1, 2, 3):
        emit_list(p, stage_dma(tau), f"st{tau}")


def setup(p):
    t, u, d = f"v{GT}", f"v{GT+1}", f"v{GT+2}"
    p(f"v_bfe_u32 {t}, v1, 4, 1")
    p(f"v_lshlrev_b32 {t}, 5, {t}")
    p(f"v_and_b32 {u}, 1, v1")
    p(f"v_lshl_add_u32 {t}, {u}, 4, {t}")
    p(f"v_bfe_u32 {u}, v1, 1, 1")
    p(f"v_lshl_add_u32 {t}, {u}, 3, {t}")
    p(f"v_bfe_u32 {u}, v1, 2, 2")
    p(f"v_lshrrev_b32 {d}, 5, v1")
    p(f"v_lshl_add_u32 {u}, {d}, 3, {u}")
    p(f"v_lshl_add_u32 {vH0}, {u}, 6, {t}")
    p(f"v_lshl_add_u32 {t}, {u}, 7, {t}")
    p(f"v_bfe_u32 {u}, v1, 3, 1")
    p(f"v_lshl_add_u32 v{AB}, {u}, 6, {t}")
    p(f"v_xor_b32 v{AB+1}, 64, v{AB}")
    for s in range(1, 4):
        p(f"v_add_u32 v{AB+2*s}, {s*SLOT}, v{AB}")
        p(f"v_add_u32 v{AB+2*s+1}, {s*SLOT}, v{AB+1}")
    p(f"v_mov_b32 {vCA}, {hx(f2u(-GK))}")
    p(f"v_mov_b32 {vCB}, {hx(f2u(-GK*0.044715))}")
    p(f"v_and_b32 {t}, 0x13, v1")
    p(f"v_bfe_u32 {u}, v1, 2, 1")
    p(f"v_lshl_add_u32 {t}, {u}, 3, {t}")
    p(f"v_bfe_u32 {u}, v1, 3, 1")
    p(f"v_lshl_add_u32 {t}, {u}, 2, {t}")
    p(f"v_lshlrev_b32 {d}, 3, {d}")
    p(f"v_sub_u32 {t}, {t}, {d}")
    p(f"v_and_b32 {u}, 31, v1")
    p(f"v_mov_b32 v{ST}, 0x3f80")
    p(f"v_mov_b32 v{ST+1}, 0x3f800000")
    for base, src, sub in ((ID0, t, 0), (ID1, t, 16), (IDX, u, 0)):
        for k in range(4):
            p(f"v_cmp_eq_u32 vcc, {sub+2*k}, {src}")
            p(f"v_cndmask_b32 v{base+k}, 0, v{ST}, vcc")
            p(f"v_cmp_eq_u32 vcc, {sub+2*k+1}, {src}")
            p(f"v_cndmask_b32 v{base+k}, v{base+k}, v{ST+1}, vcc")
    p(f"s_lshl_b32 {sT0}, {sI}, 2")
    p(f"s_add_u32 {sT1}, {sT0}, {sW}")
    p(f"s_lshl_b32 {sT1}, {sT1}, 7")
    p(f"s_add_u32 {sT1}, {sT1}, {F6}")
    p(f"v_and_b32 {u}, 15, v1")
    p(f"v_lshl_add_u32 {vF6}, {u}, 3, {sT1}")
    p(f"s_lshl_b32 {sFL}, {sMm}, 3")
    p(f"s_add_u32 {sFL}, {sFL}, {sT1}")
    p(f"s_lshr_b32 {sT1}, {sMm}, 2")
    p(f"s_add_u32 {sT1}, {sT1}, {sT0}")
    p(f"s_lshl_b32 {sT1}, {sT1}, 7")
    p(f"s_add_u32 {sT1}, {sT1}, {F6}")
    p(f"v_lshl_add_u32 {vF68}, {u}, 3, {sT1}")
    p(f"v_mov_b32 {vZ}, 0")
    p(f"s_mul_i32 {sPB}, {sI}, 72")
    p(f"s_add_u32 {sPB}, {sPB}, {sW}")
    p(f"s_lshl_b32 {sPB}, {sPB}, 15")
    p(f"s_add_u32 {sPB}, {sPB}, {hx(PART)}")


def x_loads(p):
    t = f"v{GT}"
    p(f"s_lshl_b32 {sT0}, {sI}, 2")
    p(f"s_add_u32 {sT0}, {sT0}, {sW}")
    p(f"s_lshl_b32 {sT1}, {sT0}, 12")
    p(f"s_add_u32 {sT1}, {sT1}, {hx(ST5)}")
    p(f"v_and_b32 {t}, 31, v1")
    p(f"v_lshlrev_b32 {t}, 3, {t}")
    p(f"v_lshrrev_b32 v{GT+1}, 5, v1")
    p(f"v_lshl_add_u32 {t}, v{GT+1}, 11, {t}")
    for k in range(8):
        p(f"buffer_load_dwordx2 {vr(ST+2*k,2)}, {t}, {WS}, {sT1} offen offset:{k*256} sc1")
    p(f"s_mul_i32 {sT0}, {sT0}, 36864")
    p(f"s_add_u32 {sT0}, {sT0}, {hx(X1)}")
    for s in range(36):
        if s and s % 4 == 0:
            p(f"s_add_u32 {sT0}, {sT0}, 4096")
        p(f"buffer_load_dwordx4 {vr(XB+4*s,4)}, {vLN}, {WS}, {sT0} offen offset:{(s%4)*1024} sc1")


vR, vNM = f"v{ST}", f"v{ST+1}"


def stats(p):
    R = ST
    for step in (8, 4, 2):
        for k in range(0, step, 2):
            p(f"v_add_f32 v{R+k}, v{R+k}, v{R+k+step}")
            p(f"v_add_f32 v{R+k+1}, v{R+k+1}, v{R+k+step+1}")
    S, Q = f"v{R}", f"v{R+1}"
    xhalf(p, "v_add_f32", S, f"v{R+2}")
    xhalf(p, "v_add_f32", Q, f"v{R+3}")
    p(f"v_mul_f32 v{R+2}, {hx(f2u(-1.0/576))}, {S}")
    p(f"v_mul_f32 {Q}, {hx(f2u(1.0/576))}, {Q}")
    p(f"v_fma_f32 {Q}, -v{R+2}, v{R+2}, {Q}")
    p(f"v_max_f32 {Q}, 0, {Q}")
    p(f"v_add_f32 {Q}, {hx(f2u(EPS))}, {Q}")
    p(f"v_rsq_f32 {vR}, {Q}")
    p(f"v_mul_f32 {vNM}, v{R+2}, {vR}")


def norm_ops(s):
    o = []
    for k in range(0, 4, 2):
        a, b = XB + 4 * s + k, XB + 4 * s + k + 1
        t = [ST + 2 + 4 * (k // 2) + j for j in range(4)]
        o += [f"v_lshlrev_b32 v{t[0]}, 16, v{a}", f"v_and_b32 v{t[1]}, 0xffff0000, v{a}",
              f"v_lshlrev_b32 v{t[2]}, 16, v{b}", f"v_and_b32 v{t[3]}, 0xffff0000, v{b}"]
        o += [f"v_fma_f32 v{x}, v{x}, {vR}, {vNM}" for x in t]
        o += [f"v_cvt_pk_bf16_f32 v{a}, v{t[0]}, v{t[1]}", f"v_cvt_pk_bf16_f32 v{b}, v{t[2]}, v{t[3]}"]
    return o


def gelu_list(acc, pos):
    o = []
    for e in range(0, 16, 2):
        x0, x1 = f"v{acc+e}", f"v{acc+e+1}"
        t0, t1 = f"v{GT+(e & 2)}", f"v{GT+1+(e & 2)}"
        o += interleave([gelu_ops(x0, t0, vCA, vCB), gelu_ops(x1, t1, vCA, vCB)])
        o += [f"v_cvt_pk_bf16_f32 {x0}, {x0}, {x1}"]
        o += [f"v_accvgpr_write_b32 a{HB_+8*pos+e//2}, {x0}"]
    return o


def part_store_list(acc, sg, par1, cv):
    o = [f"v_cvt_pk_bf16_f32 v{cv+k}, v{acc+2*k}, v{acc+2*k+1}" for k in range(8)]
    A = "s64"
    if sg == 0:
        q = [f"s_mov_b32 {A}, 16"]
    else:
        q = [f"s_add_u32 {A}, {sC}, {sg}", f"s_and_b32 {A}, {A}, 7", f"s_lshl_b32 {A}, {A}, 1"]
    q += [f"s_and_b32 {sT1}, {sMm}, 1"]
    if not par1:
        q += [f"s_xor_b32 {sT1}, {sT1}, 1"]
    q += [f"s_add_u32 {A}, {A}, {sT1}"]
    o.insert(2, "\n".join(q))
    o.insert(5, f"s_lshl_b32 {A}, {A}, 6\ns_add_u32 {A}, {A}, {sMm}")
    o.insert(8, f"s_lshl_b32 {A}, {A}, 11\ns_add_u32 {A}, {A}, {sPB}")
    o += [(f"buffer_store_dwordx4 {vr(cv,4)}, {vLN}, {WS}, {A} offen sc1", None),
          (f"buffer_store_dwordx4 {vr(cv+4,4)}, {vLN}, {WS}, {A} offen offset:1024 sc1", f"ps{sg}_{par1}")]
    return o


def flag_publish(p, val):
    p(f"v_mov_b32 v{GT}, {val}")
    p("s_mov_b64 exec, 1")
    p(f"buffer_store_dword v{GT}, {vZ}, {WS}, {sFL} offen sc1")
    p("s_mov_b64 exec, -1")


def flag_load(p, dst, addr):
    p(f"buffer_load_dword {dst}, {addr}, {WS}, 0 offen sc1")


def flag_check(p, reg, addr, val, mask):
    lp, ok = p.label("fc"), p.label("fcok")
    p.wait_regs(reg)
    p(f"s_mov_b32 {sCNT}, 0")
    p(f"{lp}:")
    p(f"v_cmp_gt_u32 vcc, {val}, {reg}")
    p(f"s_add_u32 {sCNT}, {sCNT}, 1")
    p(f"s_and_b32 {sT1}, vcc_lo, {mask}")
    p(f"s_cbranch_scc0 {ok}")
    s = p.side_begin()
    p(f"s_cmp_gt_u32 {sCNT}, {SPIN_MAX}")
    p(f"s_cbranch_scc1 {ok}")
    flag_load(p, reg, addr)
    p("s_waitcnt vmcnt(0)")
    p(f"s_branch {lp}")
    p.side_end(s)
    p(f"{ok}:")


def group_mask(p, sg):
    p(f"s_add_u32 {sT2}, {sC}, {8-sg}")
    p(f"s_and_b32 {sT2}, {sT2}, 7")
    p(f"s_lshl_b32 {sT2}, {sT2}, 1")
    p(f"s_lshl_b32 {sT0}, 3, {sT2}")
    return sT0


def group_loads(sg, slot):
    o = [f"s_lshl_b32 {sT0}, {sMm}, 6", f"s_add_u32 {sT0}, {sT0}, {sT2}", f"s_lshl_b32 {sT0}, {sT0}, 11",
         f"s_add_u32 {sT0}, {sT0}, {sPB}"]
    for k in range(4):
        o.append(f"buffer_load_dwordx4 {ar(PL+8*slot+4*k,4)}, {vLN}, {WS}, {sT0} offen offset:{k*1024} sc1")
    return o


def residual_loads():
    o = [f"s_lshl_b32 {sT0}, {sI}, 2", f"s_add_u32 {sT0}, {sT0}, {sW}", f"s_mul_i32 {sT0}, {sT0}, 36",
         f"s_lshl_b32 {sT1}, {sMm}, 1", f"s_add_u32 {sT0}, {sT0}, {sT1}", f"s_lshl_b32 {sT0}, {sT0}, 10",
         f"s_add_u32 {sT1}, {sT0}, {hx(HB)}", f"s_add_u32 {sT0}, {sT0}, {hx(X1)}"]
    for j, s in enumerate((sT1, sT0)):
        for k in range(2):
            o.append(f"buffer_load_dwordx4 {ar(PL+8*(15+j)+4*k,4)}, {vLN}, {WS}, {s} offen offset:{k*1024} sc1")
    return o


def c8_loads():
    t, u, a = f"v{ST+2}", f"v{ST+3}", f"v{ST+4}"
    o = [f"s_and_b32 {sT0}, {sW}, 1", f"s_lshl_b32 {sT0}, {sT0}, 5", f"s_lshr_b32 {sT1}, {sW}, 1",
         f"s_lshl_b32 {sT1}, {sT1}, 4", f"s_add_u32 {sT0}, {sT0}, {sT1}",
         f"v_and_b32 {t}, 15, v1", f"v_add_u32 {t}, {sT0}, {t}", f"v_lshlrev_b32 {t}, 4, {t}",
         f"v_bfe_u32 {u}, v1, 4, 1", f"v_lshlrev_b32 {u}, 1, {u}", f"v_lshrrev_b32 {a}, 5, v1",
         f"v_add_u32 {u}, {u}, {a}",
         f"v_lshl_add_u32 {a}, {u}, 11, {t}",
         f"s_mul_i32 {sT0}, {sI}, 18", f"s_bfe_u32 {sT1}, {sMm}, 0x10001", f"s_add_u32 {sT0}, {sT0}, {sT1}",
         f"s_add_u32 {sT0}, {sT0}, 16", f"s_lshl_b32 {sT0}, {sT0}, 2", f"s_lshr_b32 {sT1}, {sMm}, 2",
         f"s_add_u32 {sT0}, {sT0}, {sT1}", f"s_lshl_b32 {sT0}, {sT0}, 15", f"s_and_b32 {sT1}, {sMm}, 1",
         f"s_lshl_b32 {sT1}, {sT1}, 10", f"s_add_u32 {sT0}, {sT0}, {sT1}", f"s_add_u32 {sT0}, {sT0}, {hx(PART)}"]
    for k in range(4):
        o.append(f"buffer_load_dwordx4 {ar(PL8+4*k,4)}, {a}, {WS}, {sT0} offen sc1")
        if k < 3:
            o.append(f"s_add_u32 {sT0}, {sT0}, 8192")
    o += [f"v_mov_b32 {a}, {hx(X1-HB)}", f"v_mul_u32_u24 {a}, {u}, {a}" if False else f"v_mul_lo_u32 {a}, {u}, {a}",
          f"v_add_u32 {a}, {a}, {t}", f"v_mov_b32 {t}, {hx(OOB)}", f"v_cmp_gt_u32 vcc, 2, {u}",
          f"v_cndmask_b32 {a}, {t}, {a}, vcc",
          f"s_lshl_b32 {sT0}, {sI}, 2", f"s_lshr_b32 {sT1}, {sMm}, 2", f"s_add_u32 {sT0}, {sT0}, {sT1}",
          f"s_mul_i32 {sT0}, {sT0}, 36", f"s_and_b32 {sT1}, {sMm}, 3", f"s_add_u32 {sT0}, {sT0}, {sT1}",
          f"s_add_u32 {sT0}, {sT0}, 32", f"s_lshl_b32 {sT0}, {sT0}, 10", f"s_add_u32 {sT0}, {sT0}, {hx(HB)}",
          f"buffer_load_dwordx4 {ar(PL8+16,4)}, {a}, {WS}, {sT0} offen sc1"]
    return o


def build_sequence():
    seq = []
    for s in range(36):
        seq.append(dict(acc=ACC[0], first=s == 0, b=vr(XB + 4 * s, 4), base=vH0, off=(s * 1024, s * 1024 + 256), seg=0))
    for cc in range(4):
        for par in range(2):
            n = 1 + 2 * cc + par
            for s in range(36):
                slot = (1 + 2 * cc + s // 18) % 4
                o = (s % 18) * 2048
                seq.append(dict(acc=ACC[n % 2], first=s == 0, b=vr(XB + 4 * s, 4), base=f"v{AB+2*slot+par}",
                                off=(o, o + 512), seg=1 + cc))
    for sg in range(9):
        slot = (9 + sg) % 4
        if sg == 0:
            order = [(s, c) for s in range(18) for c in range(2)]
            accs = (ACC[1], ACC[2])
        else:
            order = [(s, c) for c in range(2) for s in range(18)]
            accs = (ACC[0], ACC[1])
        for s, c in order:
            seq.append(dict(acc=accs[c], first=s == 0, b=ar(HB_ + 4 * s, 4), base=f"v{AB+2*slot+c}",
                            off=(s * 2048, s * 2048 + 512), seg=5 + sg))
    return seq


def main_loop(p, st, opts):
    seq = build_sequence()
    N = len(seq)
    start = {}
    for j, e in enumerate(seq):
        start.setdefault(e["seg"], j)
    seg_stages = {0: [0], 1: [1, 2], 2: [3, 4], 3: [5, 6], 4: [7, 8]}
    for sg in range(9):
        seg_stages[5 + sg] = [9 + sg]
    dma_after = {1: [4], 2: [5, 6], 3: [7, 8], 4: [9, 10], 5: [11, 12]}
    for k in range(6, 11):
        dma_after[k] = [7 + k]
    swapped = [False]

    def rd(j):
        e = seq[j]
        if e["seg"] >= 5 and not swapped[0]:
            swapped[0] = True
            p(f"s_and_b32 {sT1}, {sMm}, 1")
            p(f"s_xor_b32 {sT1}, {sT1}, 1")
            p(f"s_lshl_b32 {sT1}, {sT1}, 6")
            for r in range(AB, AB + 8):
                p(f"v_xor_b32 v{r}, {sT1}, v{r}")
        d = AFR + 4 * (j % NAF)
        for q in range(2):
            p(f"ds_read_b64_tr_b16 {ar(d+2*q,2)}, {e['base']} offset:{e['off'][q]}")

    fills = []

    def add(j0, j1, ops):
        fills.append([j0, j1, list(ops), len(ops), 0])

    hooks = {}
    for n in range(9):
        e = 36 * (n + 1)
        add(e + 2, e + (34 if n < 8 else 29), gelu_list(ACC[n % 2], n))
    for k, taus in dma_after.items():
        ops = []
        for tau in taus:
            l = stage_dma(tau)
            if tau == 9:
                l = ["PATTERN_W4"] + w4_bases() + l
            last = max(q for q, o in enumerate(l) if o.startswith("buffer"))
            ops += [(o, f"st{tau}") if q == last else o for q, o in enumerate(l)]
        ln = 36 if k >= 5 else 72
        if k == 5:
            add(start[k] - 2, start[k] + 30, ops)
        else:
            add(start[k] - 2, start[k] + (ln * 2) // 3, ops)
    E0 = start[5]
    add(E0 + 38, E0 + 43, part_store_list(ACC[1], 0, 0, CV[0]))
    add(E0 + 44, E0 + 50, part_store_list(ACC[2], 0, 1, CV[1]))
    for sg in range(1, 9):
        e = start[5 + sg]
        add(e + 20, e + 25, part_store_list(ACC[0], sg, 0, CV[0]))
        if sg < 8:
            add(e + 38, e + 43, part_store_list(ACC[1], sg, 1, CV[1]))
    add(start[6] + 26, start[6] + 26, residual_loads())
    nslot = [0]
    for sg in range(1, 9):
        e = start[5 + sg]

        def pub(sg=sg):
            p.wait_vm(f"ps{sg-1}_1")
            flag_publish(p, sg)
        hooks.setdefault(e + (28 if sg < 8 else 20), []).append(pub)
        if sg >= 2:
            def ld(sg=sg):
                if sg == 2:
                    flag_load(p, vFL8, vF68)
                else:
                    flag_load(p, vFL, vF6)
            hooks.setdefault(e + 14, []).append(ld)

            def chk(sg=sg):
                if sg == 2:
                    flag_check(p, vFL8, vF68, 1, "0xffff")
                    for o in c8_loads():
                        p(o)
                else:
                    m = group_mask(p, sg - 2)
                    flag_check(p, vFL, vF6, sg - 1, m)
                    for o in group_loads(sg - 2, nslot[0]):
                        p(o)
                    nslot[0] += 2
            hooks.setdefault(e + 30, []).append(chk)

    def run_fills(j):
        for f in fills:
            j0, j1, ops, n, done = f
            if j < j0 or not ops:
                continue
            want = n if j >= j1 else ((j - j0 + 1) * n + (j1 - j0)) // (j1 - j0 + 1)
            while f[4] < want and ops:
                o = ops.pop(0)
                f[4] += 1
                if o == "PATTERN_W4":
                    for x in dma_pattern(p, "w4"):
                        p(x)
                elif isinstance(o, tuple):
                    p(o[0], tag=o[1])
                else:
                    p(o)

    stats(p)
    p.wait_vm("st0")
    p("s_barrier")
    for j in range(PD):
        rd(j)
    for o in norm_ops(0):
        p(o)
    issued = PD
    bounds = sorted(start.values())[1:]
    for j, e in enumerate(seq):
        d = AFR + 4 * (j % NAF)
        acc = vr(e["acc"], 16)
        p(f"v_mfma_f32_32x32x16_bf16 {acc}, {ar(d,4)}, {e['b']}, {'0' if e['first'] else acc}")
        nb = next((b for b in bounds if b > j), None)
        if nb is not None and j == nb - 4:
            p.wait_lg()
            for tau in seg_stages[seq[nb]["seg"]]:
                p.wait_vm(f"st{tau}")
            p("s_barrier")
            if st and seq[nb]["seg"] in (1, 5):
                st(p, f"seg{seq[nb]['seg']}")
        lim = min(j + PD, N - 1)
        if nb is not None and j < nb - 4:
            lim = min(lim, nb - 1)
        if j < 35:
            for o in norm_ops(j + 1):
                p(o)
        while issued <= lim:
            rd(issued)
            issued += 1
        run_fills(j)
        for h in hooks.get(j, []):
            h()
    assert all(not f[2] for f in fills)
    return nslot[0]


def tail(p, st, nslot):
    acc = vr(ACC[1], 16)

    def addp(slot):
        p(f"v_mfma_f32_32x32x16_bf16 {acc}, {vr(ID0,4)}, {ar(PL+8*slot,4)}, {acc}")
        p(f"v_mfma_f32_32x32x16_bf16 {acc}, {vr(ID1,4)}, {ar(PL+8*slot+4,4)}, {acc}")

    a8 = vr(ACC8, 16)
    for k in range(5):
        p(f"v_mfma_f32_32x32x16_bf16 {a8}, {vr(IDX,4)}, {ar(PL8+4*k,4)}, {'0' if k == 0 else a8}")
    for s in (15, 16):
        addp(s)
    for s in range(2):
        addp(s)
    p.wait_vm("ps8_0")
    flag_publish(p, 9)
    flag_load(p, vFL, vF6)
    for s in range(2, 4):
        addp(s)
    m = group_mask(p, 7)
    flag_check(p, vFL, vF6, 8, m)
    for o in group_loads(7, nslot):
        p(o)
    flag_load(p, vFL, vF6)
    for s in range(4, nslot):
        addp(s)
    srd(p, R_C, S_OUT, 2048 * 1152)
    t = ST + 2
    for k in range(4):
        p(f"v_mov_b32 v{t+k}, v{ACC8+k}")
    for k in range(4):
        p(f"v_permlane16_swap_b32 v{ACC8+k}, v{t+k}")
    for k in range(4):
        p(f"v_add_f32 v{ACC8+k}, v{ACC8+k}, v{t+k}")
    p(f"v_cvt_pk_bf16_f32 v{ACC8}, v{ACC8}, v{ACC8+1}")
    p(f"v_cvt_pk_bf16_f32 v{ACC8+1}, v{ACC8+2}, v{ACC8+3}")
    p(f"v_and_b32 v{t}, 15, v1")
    p(f"v_mul_u32_u24 v{t}, 1152, v{t}")
    p(f"v_lshrrev_b32 v{t+1}, 5, v1")
    p(f"v_lshl_add_u32 v{t}, v{t+1}, 3, v{t}")
    p(f"s_lshl_b32 {sT0}, {sI}, 2")
    p(f"s_lshr_b32 {sT1}, {sMm}, 2")
    p(f"s_add_u32 {sT0}, {sT0}, {sT1}")
    p(f"s_lshl_b32 {sT0}, {sT0}, 1")
    p(f"s_lshr_b32 {sT1}, {sW}, 1")
    p(f"s_add_u32 {sT0}, {sT0}, {sT1}")
    p(f"s_mul_i32 {sT0}, {sT0}, {16*1152}")
    p(f"s_and_b32 {sT1}, {sMm}, 3")
    p(f"s_lshl_b32 {sT1}, {sT1}, 5")
    p(f"s_add_u32 {sT0}, {sT0}, {sT1}")
    p(f"s_and_b32 {sT1}, {sW}, 1")
    p(f"s_lshl_b32 {sT1}, {sT1}, 4")
    p(f"s_add_u32 {sT0}, {sT0}, {sT1}")
    p("s_mov_b32 exec_lo, 0xffff")
    p("s_mov_b32 exec_hi, 0xffff")
    p(f"buffer_store_dwordx2 {vr(ACC8,2)}, v{t}, {RC}, {sT0} offen offset:1024")
    p("s_mov_b64 exec, -1")
    p(f"s_xor_b32 {sT2}, {sMm}, 1")
    p(f"s_lshl_b32 {sT0}, 1, {sT2}")
    flag_check(p, vFL, vF6, 9, sT0)
    p(f"s_lshl_b32 {sT0}, {sMm}, 6")
    p(f"s_add_u32 {sT0}, {sT0}, {sT2}")
    p(f"s_lshl_b32 {sT0}, {sT0}, 11")
    p(f"s_add_u32 {sT0}, {sT0}, {sPB}")
    for k in range(2):
        p(f"buffer_load_dwordx4 {ar(PL+8*14+4*k,4)}, {vLN}, {WS}, {sT0} offen offset:{k*1024} sc1")
    p(f"v_and_b32 v{t}, 31, v1")
    p(f"v_mul_u32_u24 v{t}, 1152, v{t}")
    p(f"v_lshrrev_b32 v{t+1}, 5, v1")
    p(f"v_lshl_add_u32 v{t}, v{t+1}, 4, v{t}")
    p(f"s_lshl_b32 {sT0}, {sI}, 2")
    p(f"s_add_u32 {sT0}, {sT0}, {sW}")
    p(f"s_mul_i32 {sT0}, {sT0}, 36864")
    p(f"s_lshl_b32 {sT1}, {sMm}, 6")
    p(f"s_add_u32 {sT0}, {sT0}, {sT1}")
    for s in (nslot, nslot + 1, 14):
        addp(s)
    a = ACC[1]
    for k in range(8):
        p(f"v_cvt_pk_bf16_f32 v{a+k}, v{a+2*k}, v{a+2*k+1}")
    p(f"buffer_store_dwordx4 {vr(a,4)}, v{t}, {RC}, {sT0} offen")
    p(f"buffer_store_dwordx4 {vr(a+4,4)}, v{t}, {RC}, {sT0} offen offset:32")


def p6(p, st, opts):
    ids(p)
    prefill(p)
    setup(p)
    p(f"s_lshl_b32 {sT0}, {sI}, 7")
    p(f"s_add_u32 {sT0}, {sT0}, {F5}")
    p(f"v_lshl_add_u32 v{GT}, v1, 3, {sT0}")
    L = p.label("go6")
    p(f"s_cmp_lg_u32 {sW}, 0")
    p(f"s_cbranch_scc1 {L}")
    s = p.side_begin()
    poll(p, f"v{GT}", f"v{GT+1}", 16)
    p.side_end(s)
    p(f"{L}:")
    p("s_barrier")
    st(p, "f5seen")
    x_loads(p)
    nslot = main_loop(p, st, opts)
    assert nslot == 12
    st(p, "mlp")
    tail(p, st, nslot)
```

```python
from common import *

sT, sG, sT0, sT1, sBW, sM, sWS, sC = "s48", "s49", "s53", "s54", "s50", "s51", "s52", "s55"
vLN, vAF, vAH, vBQ, vPL, vSRC = "v2", "v3", "v4", "v5", "v6", "v7"
PAT = 16
ACC, ACCH, CS, CSH = 32, 48, 64, 80
BF, NBF = 96, 6
XR = 120
HK = 130
vMU, vR1, vR12 = "v139", "v140", "v141"
CSH2 = 142
PH = 144
TMP = 152
AF, AH = 0, 144

NP1 = 13
L_B = NP1 * 9216
L_ST = L_B + 36864
L_HP = 0


def sg_ids(p):
    p(f"s_lshr_b32 {sT}, {sL}, 2")
    p(f"s_lshl_b32 {sT0}, {sX}, 3")
    p(f"s_add_u32 {sT}, {sT}, {sT0}")
    p(f"s_and_b32 {sG}, {sL}, 3")
    p(f"s_lshl_b32 {sM}, {sW}, 10")
    p(f"v_lshlrev_b32 {vLN}, 4, v1")


def patterns(p, kind):
    for pi in range(9):
        d = f"v{PAT+pi}"
        p(f"v_add_u32 v{TMP}, {64*pi}, v1")
        p(f"v_mul_u32_u24 v{TMP+1}, 911, v{TMP}")
        p(f"v_lshrrev_b32 v{TMP+1}, 16, v{TMP+1}")
        p(f"v_mul_u32_u24 v{TMP+2}, 72, v{TMP+1}")
        p(f"v_sub_u32 v{TMP}, v{TMP}, v{TMP+2}")
        p(f"v_cmp_gt_u32 vcc, 64, v{TMP}")
        p(f"v_bfe_u32 v{TMP+2}, v{TMP}, 2, 2")
        p(f"v_bfe_u32 v{TMP+3}, v{TMP}, 1, 2")
        p(f"v_cndmask_b32 v{TMP+2}, v{TMP+3}, v{TMP+2}, vcc")
        p(f"v_lshl_add_u32 v{TMP+1}, v{TMP+1}, 2, v{TMP+2}")
        p(f"v_and_b32 v{TMP+2}, 3, v{TMP}")
        p(f"v_and_b32 v{TMP+3}, 1, v{TMP}")
        p(f"v_cndmask_b32 v{TMP+2}, v{TMP+3}, v{TMP+2}, vcc")
        p(f"v_lshrrev_b32 v{TMP}, 4, v{TMP}")
        p(f"v_lshlrev_b32 v{TMP}, 6, v{TMP}")
        p(f"v_lshl_add_u32 v{TMP}, v{TMP+2}, 4, v{TMP}")
        if kind == "wo":
            p(f"v_lshrrev_b32 v{TMP+2}, 4, v{TMP+1}")
            p(f"v_lshl_add_u32 v{TMP+1}, v{TMP+2}, 1, v{TMP+1}")
        elif kind == "wol":
            p(f"v_lshrrev_b32 v{TMP+2}, 1, v{TMP+1}")
            p(f"v_and_b32 v{TMP+1}, 1, v{TMP+1}")
            p(f"v_mad_u32_u24 v{TMP+1}, v{TMP+2}, 18, v{TMP+1}")
            p(f"v_add_u32 v{TMP+1}, 16, v{TMP+1}")
        p(f"v_mul_u32_u24 v{TMP+1}, 1152, v{TMP+1}")
        p(f"v_add_u32 {d}, v{TMP}, v{TMP+1}")


def stage_ops(per_src, slot0, nper, stride):
    groups = []
    for k in range((nper + 3) // 4):
        o = []
        o.append(f"s_add_u32 {sT0}, {sW}, {4*k}")
        o.append(f"s_mul_i32 {sT1}, {sT0}, 9216")
        o.append(f"s_mul_i32 {sT0}, {sT0}, {stride}")
        o.append(f"s_add_u32 {sT0}, {sT0}, {sBW}")
        if per_src:
            o.append(f"s_add_u32 {sT0}, {sT0}, {per_src}")
        for pi in range(9):
            o.append(f"s_add_u32 m0, {sT1}, {slot0*9216 + pi*1024}")
            o.append(f"buffer_load_dwordx4 v{PAT+pi}, {RA}, {sT0} offen lds")
        lim = nper - 4 * k
        groups.append((o, lim))
    return groups


def emit_stage(p, groups):
    for o, lim in groups:
        if lim >= 4:
            for x in o:
                p(x)
        else:
            L = p.label("skip")
            p(f"s_cmp_ge_u32 {sW}, {lim}")
            p(f"s_cbranch_scc1 {L}")
            s = p.side_begin()
            for x in o:
                p(x)
            p.side_end(s)
            p(f"{L}:")


def tr_addr(p):
    p(f"v_lshrrev_b32 v{TMP}, 5, v1")
    p(f"v_mul_u32_u24 v{TMP}, 2304, v{TMP}")
    p(f"v_and_b32 v{TMP+1}, 1, v1")
    p(f"v_lshl_add_u32 v{TMP}, v{TMP+1}, 4, v{TMP}")
    p(f"v_bfe_u32 v{TMP+1}, v1, 1, 1")
    p(f"v_lshl_add_u32 v{TMP}, v{TMP+1}, 3, v{TMP}")
    p(f"v_bfe_u32 v{TMP+1}, v1, 2, 2")
    p(f"v_lshl_add_u32 {vAH}, v{TMP+1}, 5, v{TMP}")
    p(f"v_lshl_add_u32 v{TMP}, v{TMP+1}, 6, v{TMP}")
    p(f"v_bfe_u32 v{TMP+1}, v1, 4, 1")
    p(f"v_lshl_add_u32 v{TMP}, v{TMP+1}, 5, v{TMP}")
    p(f"s_lshl_b32 {sT0}, {sW}, 8")
    p(f"v_add_u32 {vAF}, {sT0}, v{TMP}")
    p(f"s_mul_i32 {sT0}, {sW}, {9*4608}")
    p(f"s_add_u32 {sT0}, {sT0}, 1024")
    p(f"v_add_u32 {vAH}, {sT0}, {vAH}")
    p(f"s_mul_i32 {sT0}, {sW}, 9216")
    p(f"s_add_u32 {sT0}, {sT0}, {L_B}")
    p(f"v_add_u32 {vBQ}, {sT0}, {vLN}")


def tr_full(p, s0, s1, sub):
    hi = f"v{TMP+4}"
    p(f"v_add_u32 {hi}, {14*4608}, {vAF}")
    for s in range(s0, s1):
        ls = s - sub
        base, off = (vAF, ls * 4608) if ls < 14 else (hi, (ls - 14) * 4608)
        for q in range(2):
            p(f"ds_read_b64_tr_b16 {ar(AF+4*s+2*q,2)}, {base} offset:{off+q*1152}")


def tr_half(p, js, sub):
    base, j0 = vAH, 0
    if sub:
        base, j0 = f"v{TMP+5}", min(js)
        p(f"v_subrev_u32 {base}, {(sub-j0)*4608}, {vAH}")
    for j in js:
        for q in range(2):
            p(f"ds_read_b64_tr_b16 {ar(AH+4*j+2*q,2)}, {base} offset:{(j-j0)*4608+q*1152}")


def tr_round1(p):
    tr_full(p, 0, 26, 0)
    L = p.label("h1")
    p(f"s_cmp_ge_u32 {sW}, 3")
    p(f"s_cbranch_scc1 {L}")
    s = p.side_begin()
    tr_half(p, range(8), 0)
    p(f"s_cmp_ge_u32 {sW}, 2")
    L2 = p.label("h1b")
    p(f"s_cbranch_scc1 {L2}")
    tr_half(p, [8], 0)
    p(f"{L2}:")
    p("s_waitcnt lgkmcnt(0)")
    p.side_end(s)
    p(f"{L}:")


def tr_round2(p):
    tr_full(p, 26, 36, 26)
    L = p.label("h2")
    p(f"s_cmp_lt_u32 {sW}, 2")
    p(f"s_cbranch_scc1 {L}")
    s = p.side_begin()
    tr_half(p, [8], 26)
    p(f"s_cmp_lt_u32 {sW}, 3")
    L2 = p.label("h2b")
    p(f"s_cbranch_scc1 {L2}")
    tr_half(p, range(8), 26)
    p(f"{L2}:")
    p("s_waitcnt lgkmcnt(0)")
    p.side_end(s)
    p(f"{L}:")


def stage_round1(p, ph):
    ptr = {3: S_WO, 4: S_W1, 5: S_W2}[ph]
    srd(p, R_A, ptr, 576 * 1152)
    p(f"s_mul_i32 {sBW}, {sG}, 288")
    if ph == 3:
        patterns(p, "wo")
    elif ph == 4:
        patterns(p, "lin")
    emit_stage(p, stage_ops(0, 0, NP1, 41472 if ph == 3 else 36864))


def stage_round2(p, ph):
    if ph == 3:
        emit_stage(p, stage_ops(NP1 * 41472, 0, 3, 41472))
        patterns(p, "wol")
        emit_stage(p, stage_ops(0, 3, 2, 288 * 1152))
    else:
        emit_stage(p, stage_ops(NP1 * 36864, 0, 5, 36864))


def half_exchange(p, src, dst):
    p(f"s_lshl_b32 {sT0}, {sW}, 11")
    p(f"v_lshlrev_b32 v{TMP}, 3, v1")
    p(f"v_add_u32 v{TMP+1}, {sT0}, v{TMP}")
    for j in range(4):
        p(f"ds_write_b64 v{TMP+1}, {vr(src+2*j,2)} offset:{L_HP+j*512}")


def half_collect_reads(p):
    p(f"s_lshl_b32 {sT0}, {sW}, 9")
    p(f"v_lshlrev_b32 v{TMP}, 3, v1")
    p(f"v_add_u32 v{TMP}, {sT0}, v{TMP}")
    for k in range(4):
        p(f"ds_read_b64 {vr(PH+2*k,2)}, v{TMP} offset:{L_HP+k*2048}")


def half_sum(p, d0, d1):
    p(f"v_add_f32 v{PH}, v{PH}, v{PH+2}")
    p(f"v_add_f32 v{PH+1}, v{PH+1}, v{PH+3}")
    p(f"v_add_f32 v{PH+4}, v{PH+4}, v{PH+6}")
    p(f"v_add_f32 v{PH+5}, v{PH+5}, v{PH+7}")
    p(f"v_add_f32 {d0}, v{PH}, v{PH+4}")
    p(f"v_add_f32 {d1}, v{PH+1}, v{PH+5}")


def colsums(p):
    for k in range(4):
        p(f"v_mov_b32 v{BF+k}, {sONE}")
    for j in range(9):
        p(f"v_mfma_f32_32x32x16_bf16 {vr(CSH,16)}, {ar(AH+4*j,4)}, {vr(BF,4)}, {'0' if j == 0 else vr(CSH,16)}")
    for s in range(36):
        p(f"v_mfma_f32_32x32x16_bf16 {vr(CS,16)}, {ar(AF+4*s,4)}, {vr(BF,4)}, {'0' if s == 0 else vr(CS,16)}")
        if s == 4:
            half_exchange(p, CSH, None)
    p.wait_lg()
    p("s_barrier")
    half_collect_reads(p)
    half_sum(p, f"v{CSH2}", f"v{CSH2+1}")


def poll_addr(p, ph):
    if ph == 3:
        p(f"s_lshr_b32 {sT0}, {sT}, 1")
        p(f"s_lshl_b32 {sT0}, {sT0}, 7")
        p(f"s_add_u32 {sT0}, {sT0}, {F2}")
        p(f"v_lshl_add_u32 {vPL}, v1, 4, {sT0}")
        return 8
    if ph == 4:
        p(f"s_lshl_b32 {sT0}, {sT}, 7")
        p(f"s_add_u32 {sT0}, {sT0}, {F3}")
        p(f"v_lshl_add_u32 {vPL}, v1, 5, {sT0}")
        return 4
    p(f"s_sub_u32 {sT0}, {sT}, 1")
    p(f"s_max_i32 {sT0}, {sT0}, 0")
    p(f"s_add_u32 {sT1}, {sT}, 1")
    p(f"s_min_u32 {sT1}, {sT1}, 63")
    ent = [(sT, 0), (sT, 1), (sT, 2), (sT, 3), (sT0, 0), (sT0, 2), (sT1, 1), (sT1, 3)]
    p(f"v_mov_b32 {vPL}, 0")
    for e, (tt, g) in enumerate(ent):
        p(f"s_lshl_b32 {sC}, {tt}, 7")
        p(f"s_add_u32 {sC}, {sC}, {F4 + 32*g}")
        p(f"v_writelane_b32 {vPL}, {sC}, {e}")
    return 8


def b_src(p, ph):
    if ph != 5:
        p(f"s_mul_i32 {sWS}, {sT}, 36864")
        p(f"s_mul_i32 {sT0}, {sW}, 9216")
        p(f"s_add_u32 {sWS}, {sWS}, {sT0}")
        p(f"s_add_u32 {sWS}, {sWS}, {hx(OB if ph == 3 else HB)}")
        p(f"v_mov_b32 {vSRC}, {vLN}")
        return
    p(f"s_lshr_b32 {sT0}, {sW}, 1")
    p(f"s_add_u32 {sT0}, {sT0}, 1")
    p(f"s_sub_u32 {sT1}, 0, {sT0}")
    p(f"s_bitcmp1_b32 {sW}, 0")
    p(f"s_cselect_b32 {sT0}, {sT0}, {sT1}")
    p(f"s_lshl_b32 {sT1}, {sT}, 5")
    p(f"s_add_u32 {sT0}, {sT0}, {sT1}")
    p(f"v_and_b32 v{TMP}, 31, v1")
    p(f"v_add_u32 v{TMP}, {sT0}, v{TMP}")
    p(f"v_lshrrev_b32 v{TMP+1}, 5, v{TMP}")
    p(f"v_mul_u32_u24 v{TMP+1}, 36864, v{TMP+1}")
    p(f"v_and_b32 v{TMP+2}, 31, v{TMP}")
    p(f"v_lshl_add_u32 v{TMP+1}, v{TMP+2}, 4, v{TMP+1}")
    p(f"v_lshrrev_b32 v{TMP+2}, 5, v1")
    p(f"v_lshl_add_u32 v{TMP+1}, v{TMP+2}, 9, v{TMP+1}")
    p(f"v_mov_b32 v{TMP+2}, {hx(OOB)}")
    p(f"v_cmp_gt_u32 vcc, 2048, v{TMP}")
    p(f"v_cndmask_b32 {vSRC}, v{TMP+2}, v{TMP+1}, vcc")
    p(f"s_mul_i32 {sWS}, {sW}, 9216")
    p(f"s_add_u32 {sWS}, {sWS}, {hx(H1)}")


def b_dma(p, ph):
    p(f"s_mul_i32 {sT0}, {sW}, 9216")
    for j in range(9):
        if j % 4 == 0:
            p(f"s_add_u32 m0, {sT0}, {L_B + j*1024}")
            if j:
                p(f"s_add_u32 {sWS}, {sWS}, 4096")
            else:
                p("s_nop 0")
        p(f"buffer_load_dwordx4 {vSRC}, {WS}, {sWS} offen offset:{(j%4)*1024} sc1 lds")
    if ph == 4:
        p(f"s_lshl_b32 {sT0}, {sW}, 10")
        p(f"s_add_u32 m0, {sT0}, {L_ST}")
        p(f"s_lshl_b32 {sT1}, {sT}, 12")
        p(f"s_add_u32 {sT0}, {sT0}, {sT1}")
        p(f"s_add_u32 {sT0}, {sT0}, {hx(ST3)}")
        p(f"buffer_load_dwordx4 {vLN}, {WS}, {sT0} offen sc1 lds")


def stat_ops(dst_nmu, src_reads):
    pass


def stats_consume(lds):
    a = f"v{TMP+6}"
    S, Q, t = f"v{TMP+8}", f"v{TMP+9}", f"v{TMP+7}"
    R = 176
    o = [f"v_and_b32 {a}, 31, v1", f"v_lshlrev_b32 {a}, 3, {a}", f"v_lshrrev_b32 {t}, 5, v1",
         f"v_lshl_add_u32 {a}, {t}, 11, {a}", f"v_add_u32 {a}, {lds}, {a}"]
    o += [f"ds_read_b64 {vr(R+2*k,2)}, {a} offset:{k*256}" for k in range(8)]
    o += [None] * 3
    for k in range(4):
        o += [f"v_add_f32 v{R+4*k}, v{R+4*k}, v{R+4*k+2}", f"v_add_f32 v{R+4*k+1}, v{R+4*k+1}, v{R+4*k+3}"]
    for k in range(2):
        o += [f"v_add_f32 v{R+8*k}, v{R+8*k}, v{R+8*k+4}", f"v_add_f32 v{R+8*k+1}, v{R+8*k+1}, v{R+8*k+5}"]
    o += [f"v_add_f32 {S}, v{R}, v{R+8}", f"v_add_f32 {Q}, v{R+1}, v{R+9}"]
    o += [f"v_mov_b32 v{R}, {S}", f"v_mov_b32 v{R+1}, {Q}", None,
          f"v_permlane32_swap_b32 {S}, v{R}", f"v_permlane32_swap_b32 {Q}, v{R+1}",
          f"v_add_f32 {S}, {S}, v{R}", f"v_add_f32 {Q}, {Q}, v{R+1}",
          f"v_mul_f32 {vMU}, {hx(f2u(-1.0/576))}, {S}", f"v_mul_f32 {Q}, {hx(f2u(1.0/576))}, {Q}",
          f"v_fma_f32 {Q}, -{vMU}, {vMU}, {Q}", f"v_max_f32 {Q}, 0, {Q}",
          f"v_add_f32 {t}, {hx(f2u(EPS))}, {Q}", f"v_rsq_f32 {vR1}, {t}", None,
          f"v_mul_f32 {Q}, {Q}, {vR1}", f"v_mul_f32 {Q}, {Q}, {vR1}",
          f"v_add_f32 {Q}, {hx(f2u(EPS))}, {Q}", f"v_rsq_f32 {Q}, {Q}", None,
          f"v_mul_f32 {vR12}, {vR1}, {Q}"]
    return o


def gemm(p, ph):
    nb = [0]

    def rd(m):
        d = BF + 4 * (m % NBF)
        if m < 9:
            p(f"ds_read_b128 {vr(d,4)}, {vBQ} offset:{m*1024}")
        elif m < 45:
            p(f"ds_read_b128 {vr(d,4)}, v{TMP+10} offset:{(m-9)*1024}")

    p(f"v_add_u32 v{TMP+10}, {L_B}, {vLN}")
    PD = NBF - 1
    for m in range(PD):
        rd(m)
    fill = stats_consume(L_ST) if ph == 4 else []
    for m in range(45):
        d = BF + 4 * (m % NBF)
        if m < 9:
            p(f"v_mfma_f32_32x32x16_bf16 {vr(ACCH,16)}, {ar(AH+4*m,4)}, {vr(d,4)}, {'0' if m == 0 else vr(ACCH,16)}")
        else:
            s = m - 9
            p(f"v_mfma_f32_32x32x16_bf16 {vr(ACC,16)}, {ar(AF+4*s,4)}, {vr(d,4)}, {'0' if s == 0 else vr(ACC,16)}")
        rd(m + PD)
        if m == 14:
            half_exchange(p, ACCH, None)
        if m == 18:
            p.wait_lg()
            p("s_barrier")
            half_collect_reads(p)
        if m == 22:
            half_sum(p, f"v{ACCH}", f"v{ACCH+1}")
        if m >= 23:
            for _ in range(3):
                if fill:
                    o = fill.pop(0)
                    if o is None:
                        break
                    p(o)
    for o in fill:
        if o:
            p(o)


GK = 2.0 * 0.7978845608028654 * 1.4426950408889634


def gelu_ops(x, t, ca, cb):
    return [f"v_mul_f32 {t}, {x}, {x}", f"v_fma_f32 {t}, {t}, {cb}, {ca}", f"v_mul_f32 {t}, {t}, {x}",
            f"v_exp_f32 {t}, {t}", f"v_add_f32 {t}, 1.0, {t}", f"v_rcp_f32 {t}, {t}", f"v_mul_f32 {x}, {x}, {t}"]


def interleave(lists):
    out = []
    for k in range(max(len(l) for l in lists)):
        for l in lists:
            if k < len(l):
                out.append(l[k])
    return out


def x_residual_loads(p):
    srd(p, R_B, S_X, 2048 * 1152)
    p(f"v_and_b32 v{TMP}, 31, v1")
    p(f"v_mul_u32_u24 v{TMP}, 1152, v{TMP}")
    p(f"v_lshrrev_b32 v{TMP+1}, 5, v1")
    p(f"v_lshl_add_u32 v{TMP}, v{TMP+1}, 4, v{TMP}")
    p(f"s_mul_i32 {sT0}, {sT}, 36864")
    p(f"s_mul_i32 {sT1}, {sG}, 288")
    p(f"s_add_u32 {sT0}, {sT0}, {sT1}")
    p(f"s_lshl_b32 {sT1}, {sW}, 6")
    p(f"s_add_u32 {sT1}, {sT1}, {sT0}")
    p(f"buffer_load_dwordx4 {vr(XR,4)}, v{TMP}, {RB}, {sT1} offen")
    p(f"buffer_load_dwordx4 {vr(XR+4,4)}, v{TMP}, {RB}, {sT1} offen offset:32")
    p(f"s_lshl_b32 {sT1}, {sW}, 2")
    p(f"s_add_u32 {sT1}, {sT1}, {sT0}")
    p(f"buffer_load_dword v{XR+8}, v{TMP}, {RB}, {sT1} offen offset:256")


def epilogue(p, ph):
    vals = [f"v{ACC+k}" for k in range(16)] + [f"v{ACCH}", f"v{ACCH+1}"]
    U = 176
    if ph in (3, 5):
        src = XR if ph == 3 else HK
        for k in range(9):
            p(f"v_lshlrev_b32 v{U+2*k}, 16, v{src+k}")
            p(f"v_and_b32 v{U+2*k+1}, 0xffff0000, v{src+k}")
        if ph == 5:
            p(f"v_mul_f32 v{TMP}, {vMU}, {vR1}")
            for k in range(18):
                p(f"v_fma_f32 v{U+k}, v{U+k}, {vR1}, v{TMP}")
        for k in (16, 17) + tuple(range(16)):
            p(f"v_add_f32 {vals[k]}, {vals[k]}, v{U+k}")
    else:
        cs = [f"v{CS+k}" for k in range(16)] + [f"v{CSH2}", f"v{CSH2+1}"]
        p(f"v_mov_b32 v{TMP}, {hx(f2u(-GK))}")
        p(f"v_mov_b32 v{TMP+1}, {hx(f2u(-GK*0.044715))}")
        order = (16, 17) + tuple(range(16))
        for k0 in range(0, 18, 3):
            ks = order[k0:k0 + 3]
            ops = []
            for k in ks:
                ops.append([f"v_fma_f32 {vals[k]}, {cs[k]}, {vMU}, {vals[k]}", f"v_mul_f32 {vals[k]}, {vals[k]}, {vR12}"]
                           + gelu_ops(vals[k], f"v{U+k}", f"v{TMP}", f"v{TMP+1}"))
            for o in interleave(ops):
                p(o)
    dst = HK if ph == 3 else XR
    for k in range(9):
        p(f"v_cvt_pk_bf16_f32 v{dst+k}, {vals[2*k]}, {vals[2*k+1]}")
    buf = {3: HB, 4: H1, 5: X1}[ph]
    p(f"s_mul_i32 {sT0}, {sT}, 36")
    p(f"s_mul_i32 {sT1}, {sG}, 9")
    p(f"s_add_u32 {sT0}, {sT0}, {sT1}")
    p(f"s_lshl_b32 {sT0}, {sT0}, 10")
    p(f"s_add_u32 {sT0}, {sT0}, {hx(buf)}")
    p(f"s_lshl_b32 {sT1}, {sW}, 11")
    p(f"s_add_u32 {sT1}, {sT1}, {sT0}")
    p(f"buffer_store_dwordx4 {vr(dst,4)}, {vLN}, {WS}, {sT1} offen sc1")
    p(f"buffer_store_dwordx4 {vr(dst+4,4)}, {vLN}, {WS}, {sT1} offen offset:1024 sc1")
    p(f"s_lshl_b32 {sT1}, {sW}, 2")
    p(f"s_add_u32 {sT1}, {sT1}, {sT0}")
    p(f"s_add_u32 {sT1}, {sT1}, 8192")
    p(f"buffer_store_dword v{dst+8}, {vLN}, {WS}, {sT1} offen sc1")
    if ph in (3, 5):
        S, Q = f"v{TMP+2}", f"v{TMP+3}"
        for k in range(9):
            p(f"v_lshlrev_b32 v{U+2*k}, 16, v{dst+k}")
            p(f"v_and_b32 v{U+2*k+1}, 0xffff0000, v{dst+k}")
        p(f"v_add_f32 {S}, v{U}, v{U+1}")
        p(f"v_mul_f32 {Q}, v{U}, v{U}")
        p(f"v_fmac_f32 {Q}, v{U+1}, v{U+1}")
        for k in range(2, 18):
            p(f"v_add_f32 {S}, {S}, v{U+k}")
            p(f"v_fmac_f32 {Q}, v{U+k}, v{U+k}")
        p(f"v_mov_b32 v{TMP+4}, {S}")
        p(f"v_mov_b32 v{TMP+5}, {Q}")
        p(f"v_lshlrev_b32 v{TMP}, 3, v1")
        p(f"v_permlane32_swap_b32 {S}, v{TMP+4}")
        p(f"v_permlane32_swap_b32 {Q}, v{TMP+5}")
        p(f"s_lshl_b32 {sT0}, {sT}, 4")
        p(f"s_lshl_b32 {sT1}, {sG}, 2")
        p(f"s_add_u32 {sT0}, {sT0}, {sT1}")
        p(f"s_add_u32 {sT0}, {sT0}, {sW}")
        p(f"s_lshl_b32 {sT0}, {sT0}, 8")
        p(f"s_add_u32 {sT0}, {sT0}, {hx(ST3 if ph == 3 else ST5)}")
        p(f"v_add_f32 {S}, {S}, v{TMP+4}")
        p(f"v_add_f32 {Q}, {Q}, v{TMP+5}")
        p("s_mov_b32 exec_hi, 0")
        p(f"buffer_store_dwordx2 {vr(TMP+2,2)}, v{TMP}, {WS}, {sT0} offen sc1")
        p("s_mov_b64 exec, -1")


def publish(p, ph):
    L = p.label("pub")
    p(f"s_cmp_lg_u32 {sW}, 0")
    p(f"s_cbranch_scc1 {L}")
    s = p.side_begin()
    if ph == 5:
        p(f"s_lshl_b32 {sT0}, {sT}, 5")
        p(f"s_lshl_b32 {sT1}, {sG}, 3")
    else:
        p(f"s_lshl_b32 {sT0}, {sT}, 7")
        p(f"s_lshl_b32 {sT1}, {sG}, 5")
    p(f"s_add_u32 {sT0}, {sT0}, {sT1}")
    p(f"s_add_u32 {sT0}, {sT0}, {dict([(3, F3), (4, F4), (5, F5)])[ph]}")
    set_flag(p, f"v{TMP}", f"v{TMP+1}", sT0)
    p.side_end(s)
    p(f"{L}:")


def sg_phase(p, st, ph, opts):
    if ph == 3:
        sg_ids(p)
        tr_addr(p)
        x_residual_loads(p)
    stage_round1(p, ph)
    p("s_waitcnt vmcnt(0)")
    p("s_barrier")
    tr_round1(p)
    p.wait_lg()
    p("s_barrier")
    stage_round2(p, ph)
    p("s_waitcnt vmcnt(0)")
    p("s_barrier")
    tr_round2(p)
    p.wait_lg()
    p("s_barrier")
    if ph == 4:
        colsums(p)
    n = poll_addr(p, ph)
    b_src(p, ph)
    L = p.label("go")
    p(f"s_cmp_lg_u32 {sW}, 0")
    p(f"s_cbranch_scc1 {L}")
    s = p.side_begin()
    poll(p, vPL, f"v{TMP}", n)
    p.side_end(s)
    p(f"{L}:")
    p("s_barrier")
    b_dma(p, ph)
    p.wait_vm()
    p("s_barrier")
    gemm(p, ph)
    epilogue(p, ph)
    p.wait_vm()
    p("s_barrier")
    publish(p, ph)
    st(p, f"p{ph}")
```

```python
import sys, os
sys.path.insert(0, os.path.dirname(os.path.abspath(__file__)))
from common import *
import p1

HEADER = open(os.path.join(os.path.dirname(os.path.abspath(__file__)), "header.txt")).read()


def check_announce(p):
    p("v_lshlrev_b32 v21, 2, v1")
    poll(p, "v21", "v22", 32, srd_=RC)


def code_prefetch(p, opts):
    if not opts.get("pf", 1):
        return
    pc = p.label("pc")
    p("s_getpc_b64 s[56:57]")
    p(f"{pc}:")
    p(f"s_sub_u32 s56, s56, {pc}-{KNAME}")
    p("s_subb_u32 s57, s57, 0")
    p("v_lshlrev_b32 v30, 7, v0")
    p(f"v_min_u32 v31, L_end-{KNAME}, v30")
    p("global_load_dword v250, v31, s[56:57]")
    for k in range(1, opts.get("pf_n", 3)):
        p(f"v_add_u32 v30, 32768, v30")
        p(f"v_min_u32 v31, L_end-{KNAME}, v30")
        p(f"global_load_dword v{250+k}, v31, s[56:57]")


def gen(stop=99, stamps=False, opts=None):
    opts = opts or {}
    p = Prog()
    st = Stamps(stamps)
    END = "L_end"
    p(f"{KNAME}:")
    p("s_cmp_ge_u32 s2, 256")
    p(f"s_cbranch_scc1 {END}")
    p("s_load_dwordx16 s[4:19], s[0:1], 0")
    p("s_load_dwordx4 s[20:23], s[0:1], 64")
    p("s_load_dwordx2 s[24:25], s[0:1], 80")
    st(p, "start")
    p("v_and_b32 v1, 63, v0")
    p("v_lshrrev_b32 v2, 6, v0")
    p(f"s_and_b32 {sX}, s2, 7")
    p(f"v_readfirstlane_b32 {sW}, v2")
    p(f"s_lshr_b32 {sL}, s2, 3")
    p(f"s_mov_b32 {sONE}, {hx(ONES)}")
    p1.p1_ids(p)
    p1.p1_dma_addr(p)
    p("s_waitcnt lgkmcnt(0)")
    srd(p, R_B, S_X, 2048 * 1152)
    srd(p, R_A, S_WQKV, 576 * 3456)
    srd(p, R_WS, S_WS, WS_REC)
    srd(p, R_C, S_DBG, 256)
    IDLE, P1V, P1DONE, P2 = "L_idle", "L_p1v", "L_p1done", "L_p2"
    p(f"s_cmp_ge_u32 {sL}, 28")
    p(f"s_cbranch_scc1 {IDLE}")
    side = p.side_begin()
    for c in range(opts.get("first", 3)):
        p1.emit_dma(p, c)
        if c == opts.get("pf_at", 0):
            code_prefetch(p, opts)
    p(f"s_cmp_ge_u32 {p1.sJ}, 9")
    p(f"s_cbranch_scc1 {P1V}")
    s2 = p.side_begin()
    p1.p1_read_addr(p, False)
    n0 = len(st.names)
    p1.p1_main(p, False, st, opts.get('first', 3))
    st(p, "p1main")
    p1.p1_epilogue(p, False)
    p.wait_vm()
    p.side_end(s2)
    p(f"s_branch {P1DONE}")
    p(f"{P1V}:")
    p1.p1_read_addr(p, True)
    del st.names[n0:]
    p1.p1_main(p, True, st, opts.get('first', 3))
    st(p, "p1main")
    p1.p1_epilogue(p, True)
    p.wait_vm()
    p(f"{P1DONE}:")
    p("s_barrier")
    st(p, "p1stored")
    L = p.label("f1")
    p(f"s_cmp_lg_u32 {sW}, 0")
    p(f"s_cbranch_scc1 {P2}")
    check_announce(p)
    p(f"s_lshl_b32 s53, {p1.sI}, 7")
    p(f"s_lshl_b32 s54, {p1.sJ}, 3")
    p(f"s_add_u32 s53, s53, s54")
    set_flag(p, "v21", "v22", "s53")
    p(f"s_branch {P2}")
    p.side_end(side)
    p(f"{IDLE}:")
    side = p.side_begin()
    p(f"s_cmp_lg_u32 {sW}, 0")
    p(f"s_cbranch_scc1 {P2}")
    p(f"s_sub_u32 s53, {sL}, 28")
    p(f"s_lshl_b32 s54, {sX}, 2")
    p(f"s_add_u32 s53, s53, s54")
    p(f"s_lshl_b32 s54, s53, 10")
    p("v_lshlrev_b32 v21, 4, v1")
    for k in range(4):
        p(f"v_mov_b32 v{24+k}, 0")
    p(f"buffer_store_dwordx4 v[24:27], v21, {WS}, s54 offen sc1")
    p(f"s_lshl_b32 s53, s53, 2")
    p("v_mov_b32 v21, 0")
    p("v_mov_b32 v22, 1")
    p.wait_vm()
    p("s_mov_b64 exec, 1")
    p(f"buffer_store_dword v22, v21, {RC}, s53 offen sc1")
    p("s_mov_b64 exec, -1")
    check_announce(p)
    p.side_end(side)
    p(f"{P2}:")
    if stop >= 2:
        import p2
        p2.p2(p, st, opts)
    if stop >= 3:
        import sg
        sg.sg_phase(p, st, 3, opts)
    if stop >= 4:
        sg.sg_phase(p, st, 4, opts)
    if stop >= 5:
        sg.sg_phase(p, st, 5, opts)
    if stop >= 6:
        import p6
        p6.p6(p, st, opts)
    st(p, "end")
    st.flush(p)
    p(f"{END}:")
    p("s_endpgm")
    body = p.text()
    head = HEADER + f"; @launch grid=(256,1,1) block=(256,1,1) lds={LDS_BYTES}\n"
    head += f'.amdgcn_target "amdgcn-amd-amdhsa--gfx950"\n.text\n.globl {KNAME}\n.p2align 8\n.type {KNAME},@function\n'
    tail = f""".section .rodata,"a"
.p2align 6
.amdhsa_kernel {KNAME}
  .amdhsa_next_free_vgpr 512
  .amdhsa_next_free_sgpr 102
  .amdhsa_accum_offset 256
  .amdhsa_group_segment_fixed_size 0
  .amdhsa_kernarg_size 88
  .amdhsa_user_sgpr_count 2
  .amdhsa_user_sgpr_kernarg_segment_ptr 1
  .amdhsa_system_sgpr_workgroup_id_x 1
  .amdhsa_float_denorm_mode_32 3
.end_amdhsa_kernel
"""
    return head + body + tail, st.names, p


if __name__ == "__main__":
    import argparse, json
    ap = argparse.ArgumentParser()
    ap.add_argument("-o", default="k.s")
    ap.add_argument("--stop", type=int, default=99)
    ap.add_argument("--stamps", type=int, default=0)
    ap.add_argument("--opts", default="{}")
    a = ap.parse_args()
    txt, names, p = gen(a.stop, a.stamps, json.loads(a.opts))
    if names:
        txt = txt.replace("; @launch", f"; stampmode: {a.stamps}\n; stamps: " + ",".join(names) + "\n; @launch", 1)
    open(a.o, "w").write(txt)
    print(f"wrote {a.o}: {len(txt)} bytes, {len(p.out)} lines, {p.nnop} nops, {p.nwait_auto} auto waits; stamps {names}")
```

```python
import re

TRANS = ("v_exp_f32", "v_log_f32", "v_rcp_f32", "v_rsq_f32", "v_sqrt_f32", "v_sin_f32", "v_cos_f32")
_reg_re = re.compile(r"^-?\|?(?:abs\()?([vas])(?:(\d+)|\[(\d+):(\d+)\])\)?\|?$")


def regs_of(tok):
    tok = tok.strip()
    if tok in ("vcc", "vcc_lo", "vcc_hi"):
        return {("s", "vcc")}
    if tok == "exec":
        return {("s", "exec")}
    if tok == "m0":
        return {("s", "m0")}
    m = _reg_re.match(tok)
    if not m:
        return set()
    k = m.group(1)
    if m.group(2) is not None:
        return {(k, int(m.group(2)))}
    return {(k, i) for i in range(int(m.group(3)), int(m.group(4)) + 1)}


def split_ops(s):
    out, depth, cur = [], 0, ""
    for ch in s:
        if ch == "[":
            depth += 1
        if ch == "]":
            depth -= 1
        if ch == "," and depth == 0:
            out.append(cur.strip())
            cur = ""
        else:
            cur += ch
    if cur.strip():
        out.append(cur.strip())
    return out


class Ins:
    __slots__ = ("text", "op", "kind", "dst", "src", "srcA", "srcB", "srcC", "passes", "lds", "wide", "states", "dpp")

    def __init__(self, text):
        self.text = text
        t = text.split(";")[0].strip()
        self.dst = set()
        self.src = set()
        self.srcA = self.srcB = self.srcC = set()
        self.passes = 0
        self.lds = False
        self.wide = False
        self.states = 1
        self.dpp = False
        if not t or t.endswith(":") or t.startswith("."):
            self.op = t
            self.kind = "label" if t.endswith(":") else "dir"
            self.states = 0
            return
        sp = t.split(None, 1)
        op = sp[0]
        self.op = op
        rest = sp[1] if len(sp) > 1 else ""
        ops = split_ops(rest)
        mods = ""
        if ops:
            last = ops[-1].split(None, 1)
            ops[-1] = last[0]
            mods = last[1] if len(last) > 1 else ""
        R = [regs_of(o) for o in ops]
        un = lambda l: set().union(*l) if l else set()
        if op.startswith("v_mfma"):
            self.kind = "mfma"
            self.dst = R[0]
            self.srcA, self.srcB, self.srcC = R[1], R[2], R[3]
            self.src = R[1] | R[2] | R[3]
            self.passes = 8 if "32x32x16" in op else 4
        elif op.startswith("v_"):
            self.kind = "valu"
            self.dpp = "_dpp" in op
            if op.startswith("v_cmp"):
                self.dst = R[0]
                self.src = un(R[1:])
            elif "permlane" in op and "swap" in op:
                self.dst = R[0] | R[1]
                self.src = R[0] | R[1]
            elif op.startswith(("v_add_co", "v_sub_co", "v_addc_co", "v_subb_co")):
                self.dst = R[0] | R[1]
                self.src = un(R[2:])
            elif op.startswith(("v_fmac", "v_dot2c", "v_writelane")):
                self.dst = R[0]
                self.src = un(R)
            else:
                self.dst = R[0]
                self.src = un(R[1:])
        elif op.startswith("ds_"):
            self.kind = "ds"
            if op.startswith(("ds_read", "ds_bpermute", "ds_permute", "ds_swizzle")):
                self.dst = R[0]
                self.src = un(R[1:])
            else:
                self.src = un(R)
        elif op.startswith(("buffer_", "global_")):
            self.kind = "vmem"
            self.lds = bool(re.search(r"\blds\b", mods))
            if "load" in op and not self.lds:
                self.dst = R[0]
                self.src = un(R[1:])
            else:
                self.src = un(R)
                if "store" in op and ("x4" in op or "x3" in op):
                    self.wide = True
                    self.srcA = R[0] if op.startswith("buffer") else R[1]
            if self.lds:
                self.src = self.src | {("s", "m0")}
        elif op.startswith("s_"):
            self.kind = "salu"
            if op == "s_nop":
                self.states = int(ops[0], 0) + 1
            elif op.startswith(("s_load", "s_memtime", "s_memrealtime")):
                self.kind = "smem"
                self.dst = R[0]
                self.src = un(R[1:])
            elif op.startswith(("s_cmp", "s_waitcnt", "s_barrier", "s_branch", "s_cbranch", "s_sleep", "s_endpgm",
                                "s_setprio", "s_setpc")):
                self.src = un(R)
            elif "saveexec" in op:
                self.dst = R[0] | {("s", "exec")}
                self.src = un(R[1:])
            else:
                self.dst = R[0]
                self.src = un(R[1:])
        else:
            raise ValueError("unknown instruction: " + text)


def need_states(p, c):
    n = 0
    isv = lambda s: {r for r in s if r[0] in "va"}
    iss = lambda s: {r for r in s if r[0] == "s"}
    if p.kind == "valu":
        pv = isv(p.dst)
        ps = iss(p.dst)
        if c.kind == "mfma" and pv & c.src:
            n = max(n, 2)
        if c.kind == "valu":
            if p.op.startswith(TRANS) and not c.op.startswith(TRANS) and pv & c.src:
                n = max(n, 1)
            if p.op.startswith(TRANS) and c.op.startswith(TRANS) and pv & c.src:
                n = max(n, 1)
            if "permlane" in c.op and pv & c.src:
                n = max(n, 2)
            if c.op.startswith(("v_readlane", "v_readfirstlane")) and pv & c.src:
                n = max(n, 1)
            if c.dpp and pv & c.src:
                n = max(n, 2)
            if ps & c.src:
                n = max(n, 4 if c.op.startswith(("v_readlane", "v_writelane")) else 2)
            if p.op.startswith("v_dot") and pv & (c.src | c.dst):
                if c.op != p.op:
                    n = max(n, 3)
            if "_sdwa" in p.op and pv & (c.src | c.dst):
                n = max(n, 1)
        if p.op.startswith("v_dot") and c.kind in ("ds", "vmem", "mfma") and pv & (c.src | c.dst):
            n = max(n, 3)
        if c.kind == "vmem" and ps & c.src:
            n = max(n, 5)
        if c.kind in ("salu", "smem") and ps & c.src:
            n = max(n, 2)
    elif p.kind == "mfma":
        big = p.passes == 8
        if c.kind == "mfma":
            if p.dst & (c.srcA | c.srcB):
                n = max(n, 12 if big else 8)
            if p.dst & c.srcC:
                if not (p.dst == c.srcC and p.passes == c.passes):
                    n = max(n, 10 if big else 6)
            elif p.dst & c.dst:
                n = max(n, 12 if big else 8)
        elif c.kind in ("valu", "ds", "vmem"):
            if p.dst & (c.src | c.dst):
                n = max(n, 12 if big else 8)
            if c.kind == "valu" and p.srcC & c.dst:
                n = max(n, 7 if big else 3)
    elif p.kind == "salu":
        if ("s", "m0") in p.dst and c.kind == "vmem" and c.lds:
            n = max(n, 1)
        if ("s", "m0") in p.dst and c.op.startswith(("v_writelane", "v_readlane")):
            n = max(n, 1)
    elif p.kind == "vmem":
        if p.wide and p.srcA & c.dst and c.kind in ("valu", "mfma"):
            n = max(n, 2)
        elif p.wide and p.srcA & c.dst:
            n = max(n, 1)
    return n


class Cnt:
    def __init__(self, name, maxn):
        self.name, self.maxn = name, maxn
        self.n = 0
        self.done = 0
        self.pend = {}
        self.tags = {}

    def clone(self):
        c = Cnt(self.name, self.maxn)
        c.n, c.done, c.pend, c.tags = self.n, self.done, dict(self.pend), dict(self.tags)
        return c


class Prog:
    def __init__(self):
        self.out = []
        self.hist = []
        self.saved = {}
        self.vm = Cnt("vmcnt", 63)
        self.lg = Cnt("lgkmcnt", 15)
        self.smem_pend = set()
        self.nnop = 0
        self.uid = 0
        self.nwait_auto = 0

    def label(self, base):
        self.uid += 1
        return f"L_{base}_{self.uid}"

    def _emit(self, ins):
        if ins.kind == "label":
            name = ins.op[:-1]
            for h in self.saved.pop(name, []):
                self.hist = self.hist + h
            self.out.append(ins.text)
            return
        if ins.kind == "dir":
            self.out.append(ins.text)
            return
        need = 0
        for p, age in self.hist:
            n = need_states(p, ins)
            if n > age:
                need = max(need, n - age)
        while need > 0:
            k = min(need, 16)
            self.out.append(f"    s_nop {k-1}")
            self.nnop += 1
            self._age(k)
            need -= k
        self.out.append("    " + ins.text)
        self._age(ins.states)
        if ins.op != "s_nop":
            self.hist.append((ins, 0))
        if ins.op.startswith(("s_branch", "s_cbranch")):
            tgt = ins.text.split()[1]
            self.saved.setdefault(tgt, []).append(list(self.hist))

    def _age(self, k):
        self.hist = [(p, a + k) for p, a in self.hist if a + k < 24]

    def _wait(self, c, upto):
        if upto <= c.done:
            return
        n = c.n - upto
        assert n >= 0
        n = min(n, c.maxn)
        self._emit(Ins(f"s_waitcnt {c.name}({n})"))
        c.done = max(c.done, c.n - n)
        c.pend = {r: i for r, i in c.pend.items() if i >= c.done}

    def __call__(self, text, tag=None):
        for line in text.split("\n"):
            line = line.strip()
            if not line:
                continue
            if line.startswith(";"):
                self.out.append("    " + line)
                continue
            self._one(line, tag)

    def _one(self, line, tag):
        ins = Ins(line)
        if ins.kind in ("label", "dir"):
            self._emit(ins)
            return
        touched = ins.src | ins.dst
        if ins.op == "s_waitcnt":
            m = re.search(r"vmcnt\((\d+)\)", line)
            if m:
                c = self.vm
                c.done = max(c.done, c.n - int(m.group(1)))
                c.pend = {r: i for r, i in c.pend.items() if i >= c.done}
            m = re.search(r"lgkmcnt\((\d+)\)", line)
            if m:
                c = self.lg
                if int(m.group(1)) == 0:
                    self.smem_pend = set()
                if not self.smem_pend:
                    c.done = max(c.done, c.n - int(m.group(1)))
                    c.pend = {r: i for r, i in c.pend.items() if i >= c.done}
            self._emit(ins)
            return
        if ins.kind == "smem":
            touched = ins.src
        if self.smem_pend & touched:
            self._one("s_waitcnt lgkmcnt(0)", None)
        for c in (self.vm, self.lg):
            need = [c.pend[r] for r in touched if r in c.pend]
            if need:
                if c is self.lg and self.smem_pend:
                    self._one("s_waitcnt lgkmcnt(0)", None)
                else:
                    self.nwait_auto += 1
                    self._wait(c, max(need) + 1)
        self._emit(ins)
        if ins.kind == "vmem":
            c = self.vm
        elif ins.kind == "ds":
            c = self.lg
        else:
            c = None
        if c is not None:
            for r in ins.dst:
                c.pend[r] = c.n
            if tag is not None:
                c.tags[tag] = c.n
            c.n += 1
            if c.n - c.done > c.maxn and c is self.vm:
                pass
        if ins.kind == "smem":
            self.smem_pend |= ins.dst

    def wait_vm(self, tag=None):
        c = self.vm
        self._wait(c, c.n if tag is None else c.tags[tag] + 1)

    def wait_lg(self, tag=None):
        c = self.lg
        if self.smem_pend:
            self._one("s_waitcnt lgkmcnt(0)", None)
            return
        self._wait(c, c.n if tag is None else c.tags[tag] + 1)

    def wait_regs(self, spec):
        rs = regs_of(spec)
        for c in (self.vm, self.lg):
            need = [c.pend[r] for r in rs if r in c.pend]
            if need:
                self._wait(c, max(need) + 1)

    def side_begin(self):
        st = (self.vm, self.lg)
        self.vm, self.lg = self.vm.clone(), self.lg.clone()
        return st

    def side_end(self, st):
        ovm, olg = st
        for c, o in ((self.vm, ovm), (self.lg, olg)):
            new = {r: i for r, i in c.pend.items() if i >= o.n}
            assert not new, f"side block leaves loads pending: {new}"
        self.vm, self.lg = ovm, olg

    def loose_begin(self):
        return self.side_begin()

    def loose_end(self, st):
        self.vm, self.lg = st

    def text(self):
        return "\n".join(self.out) + "\n"


def vr(base, n=1, k="v"):
    return f"{k}{base}" if n == 1 else f"{k}[{base}:{base+n-1}]"


def ar(base, n=1):
    return vr(base, n, "a")


def sr(base, n=1):
    return vr(base, n, "s")
```

```python
from asmgen import *
import struct


def f2u(x):
    return struct.unpack("<I", struct.pack("<f", x))[0]


def hx(x):
    return f"0x{x & 0xffffffff:x}"


KNAME = "sequential_preLN__sliding_block__mixer_s_mlp__prompt_kernel"

import os
FS = int(os.environ.get("FS", 1152))
FB = 0x1A00000
F1, F2, F5, F3, F4, F6 = [FB + k * FS for k in (0, 16, 48, 64, 128, 192)]
F7 = 0x1C00000
QK = 0x100000
VT = 0x600000
OB = 0x900000
HB = 0xC00000
H1 = 0xF00000
X1 = 0x1200000
ST3 = 0x1500000
ST5 = 0x1580000
STAMP = 0x1600000
WP = 0x1700000
PART = 0x2000000
WS_REC = 0x8000000
OOB = 0x8000000

LDS_BYTES = 163840

S_X, S_WQKV, S_WO, S_BX, S_W1, S_W2, S_W3, S_W4, S_OUT, S_DBG, S_WS = 4, 6, 8, 10, 12, 14, 16, 18, 20, 22, 24
R_WS, R_A, R_B, R_C = 28, 32, 36, 40
WS, RA, RB, RC = "s[28:31]", "s[32:35]", "s[36:39]", "s[40:43]"
sX, sL, sW = "s44", "s45", "s46"
sONE = "s47"
SPIN_MAX = 400000
SLEEP = [0]

ONES = 0x3F803F80
EPS = 1e-5


def srd(p, r, ptr, nbytes):
    p(f"s_mov_b32 s{r}, s{ptr}")
    p(f"s_mov_b32 s{r+1}, s{ptr+1}")
    p(f"s_mov_b32 s{r+2}, {hx(nbytes)}")
    p(f"s_mov_b32 s{r+3}, 0x20000")


def xhalf(p, op, a, t):
    p(f"v_mov_b32 {t}, {a}")
    p(f"v_permlane32_swap_b32 {a}, {t}")
    p(f"{op} {a}, {a}, {t}")


class Stamps:
    def __init__(self, on, only=None):
        self.on = on
        self.names = []
        self.only = only

    def __call__(self, p, name):
        if not self.on or (self.only and name != "start" and name not in self.only):
            return
        k = len(self.names)
        assert k < 16
        self.names.append(name)
        if k == 0:
            for q in range(1, 16):
                p(f"s_mov_b32 s{70+2*q}, 0")
        p(f"{'s_memtime' if self.on == 2 else 's_memrealtime'} s[{70+2*k}:{71+2*k}]")

    def flush(self, p):
        if not self.on:
            return
        p("s_waitcnt lgkmcnt(0)")
        p("v_mov_b32 v2, 0")
        for k in range(len(self.names)):
            p(f"v_writelane_b32 v2, s{70+2*k}, {k}")
        p("v_and_b32 v3, 63, v0")
        p("v_lshlrev_b32 v3, 2, v3")
        p(f"s_lshl_b32 s48, s2, 2")
        p(f"s_add_u32 s48, s48, {sW}")
        p(f"s_lshl_b32 s48, s48, 6")
        p(f"s_add_u32 s48, s48, {hx(STAMP)}")
        p("s_mov_b64 exec, 0xffff")
        p(f"buffer_store_dword v2, v3, {WS}, s48 offen")
        p("s_mov_b64 exec, -1")


def set_flag(p, vaddr_tmp, vdata_tmp, s_off, val=1):
    p(f"v_mov_b32 {vaddr_tmp}, 0")
    p(f"v_mov_b32 {vdata_tmp}, {val}")
    p("s_mov_b64 exec, 1")
    p(f"buffer_store_dword {vdata_tmp}, {vaddr_tmp}, {WS}, {s_off} offen sc1")
    p("s_mov_b64 exec, -1")


def poll(p, vaddr, vtmp, nlanes, val=1, srd_=WS, scnt="s69"):
    lp, out = p.label("poll"), p.label("pollout")
    mask = (1 << nlanes) - 1
    if nlanes <= 32:
        p(f"s_mov_b32 exec_lo, {hx(mask)}")
        p("s_mov_b32 exec_hi, 0")
    else:
        p(f"s_mov_b32 exec_hi, {hx(mask >> 32)}")
    p(f"s_mov_b32 {scnt}, 0")
    p(f"{lp}:")
    p(f"buffer_load_dword {vtmp}, {vaddr}, {srd_}, 0 offen sc1")
    p(f"s_add_u32 {scnt}, {scnt}, 1")
    p(f"s_cmp_gt_u32 {scnt}, {SPIN_MAX}")
    p("s_waitcnt vmcnt(0)")
    p(f"s_cbranch_scc1 {out}")
    p(f"v_cmp_gt_u32 vcc, {val}, {vtmp}")
    if SLEEP[0]:
        p(f"s_cbranch_vccz {out}")
        p(f"s_sleep {SLEEP[0]}")
        p(f"s_branch {lp}")
    else:
        p("s_nop 1")
        p(f"s_cbranch_vccnz {lp}")
    p(f"{out}:")
    p("s_mov_b64 exec, -1")
```

```python
from common import *

sI, sJ, sKC, sXB, sWB, sT0, sT1, sM = "s48", "s49", "s50", "s51", "s52", "s53", "s54", "s55"
vX, vW, vB, vA = 96, 100, 104, 108
vS, vQ, vC = "v112", "v113", "v114"
XF, W0F, ACC, AG = 152, 240, 176, 232
QSCALE = (18 ** -0.5) * 1.4426950408889634


def p1_ids(p):
    p(f"s_and_b32 {sT0}, {sL}, 3")
    p(f"s_lshr_b32 {sT1}, {sL}, 2")
    p(f"s_and_b32 {sI}, {sX}, 3")
    p(f"s_lshl_b32 {sI}, {sI}, 2")
    p(f"s_add_u32 {sI}, {sI}, {sT0}")
    p(f"s_lshr_b32 {sJ}, {sX}, 2")
    p(f"s_mul_i32 {sJ}, {sJ}, 7")
    p(f"s_add_u32 {sJ}, {sJ}, {sT1}")
    p(f"s_lshl_b32 {sT1}, {sT1}, 2")
    p(f"s_mul_i32 {sT0}, {sT0}, 7")
    p(f"s_add_u32 {sKC}, {sT0}, {sT1}")
    p(f"s_add_u32 {sKC}, {sKC}, {sX}")
    p(f"s_mul_i32 {sT0}, {sKC}, 57")
    p(f"s_lshr_b32 {sT0}, {sT0}, 9")
    p(f"s_mul_i32 {sT0}, {sT0}, 9")
    p(f"s_sub_u32 {sKC}, {sKC}, {sT0}")
    p(f"s_lshl_b32 {sXB}, {sI}, 2")
    p(f"s_add_u32 {sXB}, {sXB}, {sW}")
    p(f"s_mul_i32 {sXB}, {sXB}, 36864")
    p(f"s_mul_i32 {sWB}, {sW}, {16*3456}")
    p(f"s_lshl_b32 {sT0}, {sJ}, 8")
    p(f"s_add_u32 {sWB}, {sWB}, {sT0}")
    p(f"s_lshl_b32 {sM}, {sW}, 12")


def p1_dma_addr(p):
    p("v_lshrrev_b32 v115, 3, v1")
    p("v_mul_u32_u24 v115, 1152, v115")
    p("v_lshrrev_b32 v116, 4, v1")
    p("v_and_b32 v117, 7, v1")
    p("v_xor_b32 v117, v117, v116")
    p(f"v_lshl_add_u32 v{vX}, v117, 4, v115")
    p("v_xor_b32 v117, 4, v117")
    p(f"v_lshl_add_u32 v{vX+1}, v117, 4, v115")
    p(f"v_add_u32 v{vX+2}, {2*8192}, v{vX}")
    p(f"v_add_u32 v{vX+3}, {3*8192}, v{vX+1}")
    p(f"v_add_u32 v{vX+1}, {8192}, v{vX+1}")
    p("v_bfe_u32 v117, v1, 2, 2")
    p("v_xor_b32 v117, v117, v116")
    p("v_mul_u32_u24 v116, 3456, v116")
    p("v_lshl_add_u32 v116, v117, 6, v116")
    p("v_and_b32 v117, 3, v1")
    p(f"v_lshl_add_u32 v{vW}, v117, 4, v116")
    for q in range(1, 4):
        p(f"v_add_u32 v{vW+q}, {q*(4*3456-1024)}, v{vW}")


def p1_dma_ops(c):
    o = []
    slot = (c % 5) * 32768
    o.append(f"s_lshl_b32 {sT0}, {sKC}, 7")
    o.append(f"s_add_u32 {sT0}, {sT0}, {sXB}")
    o.append(f"s_add_u32 m0, {sM}, {slot}")
    o.append(f"s_mul_i32 {sT1}, {sKC}, {64*3456}")
    for q in range(4):
        o.append(f"buffer_load_dwordx4 v{vX+q}, {RB}, {sT0} offen offset:{q*1024} lds")
    o.append(f"s_add_u32 m0, {sM}, {slot+16384}")
    o.append(f"s_add_u32 {sT1}, {sT1}, {sWB}")
    for q in range(4):
        o.append(f"buffer_load_dwordx4 v{vW+q}, {RA}, {sT1} offen offset:{q*1024} lds")
    o.append(f"s_add_u32 {sKC}, {sKC}, 1")
    o.append(f"s_cmp_eq_u32 {sKC}, 9")
    o.append(f"s_cselect_b32 {sKC}, 0, {sKC}")
    return o


def emit_dma(p, c):
    ops = p1_dma_ops(c)
    last = max(k for k, o in enumerate(ops) if o.startswith("buffer"))
    for k, o in enumerate(ops):
        p(o, tag=f"p1c{c}" if k == last else None)


def p1_read_addr(p, vmode):
    p("v_and_b32 v115, 31, v1")
    p("v_lshlrev_b32 v115, 7, v115")
    p(f"v_add_u32 v115, {sM}, v115")
    p("v_bfe_u32 v116, v1, 1, 3")
    p("v_lshrrev_b32 v117, 5, v1")
    p("v_xor_b32 v116, v116, v117")
    for s in range(4):
        p(f"v_xor_b32 v118, {2*s}, v116")
        p(f"v_lshl_add_u32 v{vB+s}, v118, 4, v115")
    p("v_bfe_u32 v115, v1, 2, 2")
    p("v_lshl_add_u32 v116, v117, 3, v115")
    p("v_lshlrev_b32 v116, 8, v116")
    p("v_bfe_u32 v118, v1, 4, 1")
    p("v_lshl_add_u32 v116, v118, 5, v116")
    if vmode:
        p("v_and_b32 v118, 3, v1")
        p("v_lshl_add_u32 v116, v118, 3, v116")
    else:
        p("v_and_b32 v118, 1, v1")
        p("v_lshl_add_u32 v116, v118, 4, v116")
        p("v_bfe_u32 v118, v1, 1, 1")
        p("v_lshl_add_u32 v116, v118, 3, v116")
    for t in range(4):
        p(f"s_add_u32 {sT0}, {sW}, {t}")
        p(f"s_and_b32 {sT0}, {sT0}, 3")
        p(f"v_xor_b32 v118, {sT0}, v115")
        p(f"v_lshl_add_u32 v{vA+t}, v118, 6, v116")


def afrag(g, t):
    pb = g & 1
    return (W0F + 4 * (g & 3), "v") if t == 0 else (AG + 12 * pb + 4 * (t - 1), "a")


def reads(g):
    c, s = divmod(g, 4)
    so = ((c % 5) % 2) * 32768
    out = [[f"ds_read_b128 {vr(XF+4*(g&3),4)}, v{vB+s} offset:{so}"], [], [], []]
    for t in range(4):
        b, k = afrag(g, t)
        for q in range(2):
            out[t].append(f"ds_read_b64_tr_b16 {vr(b+2*q,2,k)}, v{vA+t} offset:{so+16384+s*4096+q*1024}")
    return out


def p1_main(p, vmode, st=None, first=3, late=None):
    p(f"v_mov_b32 {vS}, 0")
    p(f"v_mov_b32 {vQ}, 0")
    p(f"v_mov_b32 {vC}, 0")
    p.wait_vm("p1c0")
    p("s_barrier")
    if st: st(p, "c0")
    for grp in reads(0):
        for o in grp:
            p(o)
    pend = []
    nxt_chunk = first
    for g in range(36):
        c, s = divmod(g, 4)
        xf = XF + 4 * (g & 3)
        nxt = reads(g + 1) if g < 35 else [[], [], [], []]
        if s == 0 and nxt_chunk < 5:
            for cc in range(nxt_chunk, 5):
                pend += [(o, cc) for o in p1_dma_ops(cc)]
            nxt_chunk = 5
        for t in range(4):
            b, k = afrag(g, t)
            acc = vr(ACC + 16 * t, 16)
            cin = "0" if g == 0 else acc
            A, B = vr(b, 4, k), vr(xf, 4)
            if vmode:
                A, B = B, A
            if t == 0 and s == 3:
                p.wait_lg()
                for kk in range(16):
                    p(f"v_dot2c_f32_bf16 {vS}, {sONE}, v{XF+kk}")
                    p(f"v_dot2c_f32_bf16 {vQ}, v{XF+kk}, v{XF+kk}")
                    p(f"v_dot2c_f32_bf16 {vC}, {sONE}, v{W0F+kk}")
            p(f"v_mfma_f32_32x32x16_bf16 {acc}, {A}, {B}, {cin}")
            if t == 0 and s == 3 and c < 8:
                assert not any(cc <= c + 1 for _, cc in pend)
                p.wait_vm(f"p1c{c+1}")
                p("s_barrier")
                pass
                w0, w1 = (c % 5) // 2, ((c + 1) % 5) // 2
                if w0 != w1:
                    for r in list(range(vB, vB + 4)) + list(range(vA, vA + 4)):
                        p(f"v_add_u32 v{r}, {hx((w1-w0)*65536)}, v{r}")
                if nxt_chunk < 9:
                    pend += [(o, nxt_chunk) for o in p1_dma_ops(nxt_chunk)]
                    nxt_chunk += 1
            for o in nxt[t]:
                p(o)
            if late and g == 19 and t == 0:
                assert not pend and nxt_chunk == 9
                late(p)
            nb = 2 if c == 0 else 1
            while pend and nb > 0:
                o, cc = pend.pop(0)
                isb = o.startswith("buffer")
                last = isb and not any(x.startswith("buffer") and c2 == cc for x, c2 in pend)
                p(o, tag=f"p1c{cc}" if last else None)
                if isb:
                    nb -= 1
            while pend and not pend[0][0].startswith("buffer") and not any(x.startswith("buffer") and c2 == pend[0][1] for x, c2 in pend):
                p(pend.pop(0)[0])
    assert not pend


def p1_epilogue(p, vmode):
    CSL = 131072
    xhalf(p, "v_add_f32", vC, "v115")
    p("v_and_b32 v116, 31, v1")
    p("v_lshlrev_b32 v116, 2, v116")
    p(f"s_lshl_b32 {sT0}, {sW}, 7")
    p(f"s_add_u32 {sT0}, {sT0}, {CSL}")
    p(f"v_add_u32 v117, {sT0}, v116")
    p(f"ds_write_b32 v117, {vC}")
    xhalf(p, "v_add_f32", vS, "v115")
    xhalf(p, "v_add_f32", vQ, "v118")
    p.wait_lg()
    p("s_barrier")
    for t in range(4):
        p(f"s_add_u32 {sT0}, {sW}, {t}")
        p(f"s_and_b32 {sT0}, {sT0}, 3")
        p(f"s_lshl_b32 {sT0}, {sT0}, 7")
        p(f"s_add_u32 {sT0}, {sT0}, {CSL}")
        p(f"v_add_u32 v117, {sT0}, v116")
        p(f"ds_read_b32 v{122+t}, v117")
    p(f"v_mul_f32 {vS}, {hx(f2u(-1.0/576))}, {vS}")
    p(f"v_mul_f32 {vQ}, {hx(f2u(1.0/576))}, {vQ}")
    p(f"v_fma_f32 {vQ}, -{vS}, {vS}, {vQ}")
    p(f"v_max_f32 {vQ}, 0, {vQ}")
    p(f"v_add_f32 {vQ}, {hx(f2u(EPS))}, {vQ}")
    p(f"v_rsq_f32 {vQ}, {vQ}")
    p("v_cmp_gt_u32 vcc, 32, v1")
    p(f"v_cndmask_b32 {vS}, 0, {vS}, vcc")
    MU = XF
    p(f"v_cvt_pk_bf16_f32 v{MU}, {vS}, {vS}")
    p(f"v_mov_b32 v{MU+2}, 0")
    p(f"v_mov_b32 v{MU+3}, 0")
    p(f"v_and_b32 v118, 0xffff0000, v{MU}")
    p(f"v_sub_f32 v118, {vS}, v118")
    p(f"v_cvt_pk_bf16_f32 v{MU+1}, v118, 0")
    CSF = W0F
    for t in range(4):
        b = CSF + 4 * t
        p(f"v_cvt_pk_bf16_f32 v{b+1}, v{122+t}, 0")
        p(f"v_mov_b32 v{b+2}, 0")
        p(f"v_lshlrev_b32 v118, 16, v{b+1}")
        p(f"v_sub_f32 v118, v{122+t}, v118")
        p(f"v_mov_b32 v{b+3}, 0")
        p(f"v_cvt_pk_bf16_f32 v{b}, v{122+t}, v118")
    for t in range(4):
        acc = vr(ACC + 16 * t, 16)
        A, B = vr(CSF + 4 * t, 4), vr(MU, 4)
        if vmode:
            A, B = B, A
        p(f"v_mfma_f32_32x32x16_bf16 {acc}, {A}, {B}, {acc}")
    RBC = 64
    if vmode:
        p(f"v_cndmask_b32 v118, 0, {vQ}, vcc")
        p(f"v_cvt_pk_bf16_f32 v119, v118, 0")
        p(f"v_lshlrev_b32 v119, 16, v119")
        p(f"v_sub_f32 v119, v118, v119")
        p(f"v_cvt_pk_bf16_f32 v156, v118, v119")
        p(f"v_and_b32 v120, 0xffff0000, v156")
        p(f"v_sub_f32 v120, v119, v120")
        p(f"v_cvt_pk_bf16_f32 v157, v120, 0")
        p("v_mov_b32 v158, 0")
        p("v_mov_b32 v159, 0")
        for k in range(4):
            p(f"v_mov_b32 v{160+k}, {sONE}")
        p(f"v_mfma_f32_32x32x16_bf16 {vr(RBC,16)}, v[156:159], v[160:163], 0")
        p("v_and_b32 v116, 31, v1")
        p("v_lshlrev_b32 v116, 5, v116")
        p("v_lshrrev_b32 v117, 5, v1")
        p("v_lshl_add_u32 v116, v117, 4, v116")
        p("v_add_u32 v117, 18432, v116")
    else:
        p("v_lshlrev_b32 v116, 4, v1")
    p(f"s_lshl_b32 {sXB}, {sI}, 2")
    p(f"s_add_u32 {sXB}, {sXB}, {sW}")
    p(f"s_mul_i32 {sXB}, {sXB}, {36864 if vmode else 144*512}")
    p(f"s_add_u32 {sXB}, {sXB}, {hx(VT - 36*1024 if vmode else QK)}")
    for t in range(4):
        a = ACC + 16 * t
        p(f"s_add_u32 {sT0}, {sW}, {t}")
        p(f"s_and_b32 {sT0}, {sT0}, 3")
        p(f"s_lshl_b32 {sT1}, {sJ}, 2")
        p(f"s_add_u32 {sT0}, {sT0}, {sT1}")
        if vmode:
            for k in range(0, 16, 2):
                p(f"v_pk_mul_f32 {vr(a+k,2)}, {vr(a+k,2)}, {vr(RBC+k,2)}")
            p(f"s_lshl_b32 {sT1}, {sT0}, 10")
        else:
            p(f"s_cmp_lt_u32 {sT0}, 18")
            p(f"s_cselect_b32 {sT1}, {hx(f2u(QSCALE))}, 1.0")
            p(f"v_mul_f32 v118, {sT1}, {vQ}")
            for k in range(0, 16, 2):
                p(f"v_pk_mul_f32 {vr(a+k,2)}, {vr(a+k,2)}, v[118:119] op_sel_hi:[1,0]")
            p(f"s_lshl_b32 {sT1}, {sT0}, 11")
        for k in range(8):
            p(f"v_cvt_pk_bf16_f32 v{a+k}, v{a+2*k}, v{a+2*k+1}")
        p(f"s_add_u32 {sT1}, {sT1}, {sXB}")
        if vmode:
            p(f"s_cmp_lt_u32 {sT0}, 54")
            p(f"s_cselect_b32 {sT1}, {sT1}, {hx(OOB)}")
            p(f"buffer_store_dwordx4 {vr(a,4)}, v116, {WS}, {sT1} offen sc1")
            p(f"buffer_store_dwordx4 {vr(a+4,4)}, v117, {WS}, {sT1} offen sc1")
        else:
            p(f"buffer_store_dwordx4 {vr(a,4)}, v116, {WS}, {sT1} offen sc1")
            p(f"buffer_store_dwordx4 {vr(a+4,4)}, v116, {WS}, {sT1} offen offset:1024 sc1")
```

```python
from common import *

sB, sU, sH, sG0, sO2, sT0, sT1, sKO, sVO = "s57", "s58", "s59", "s60", "s61", "s53", "s54", "s55", "s56"
sA, sB2 = "s62", "s63"
KA, VA = 0, 80
vLN, vV0, vV1, vPL = "v2", "v3", "v4", "v5"
QF = 16
CD, CO = 32, 48
SB = 64
PB = 96
OA = 112
vM0, vM1 = "v10", "v11"
HI = "0xffffffff00000000"
NEG_INF = 0xFF800000


def exec_lo(p):
    p("s_mov_b32 exec_hi, 0")


def exec_hi(p):
    p("s_mov_b64 exec, -1")
    p("s_mov_b32 exec_lo, 0")


def exec_all(p):
    p("s_mov_b64 exec, -1")


def p2_setup(p):
    p(f"s_and_b32 {sB}, {sL}, 3")
    p(f"s_lshl_b32 {sT0}, {sX}, 2")
    p(f"s_add_u32 {sB}, {sB}, {sT0}")
    p(f"s_lshr_b32 {sU}, {sL}, 2")
    p(f"s_lshl_b32 {sH}, {sU}, 2")
    p(f"s_add_u32 {sH}, {sH}, {sW}")
    p(f"s_mul_i32 {sG0}, {sH}, 18")
    p(f"s_lshr_b32 {sG0}, {sG0}, 3")
    p(f"s_and_b32 {sO2}, {sH}, 3")
    p(f"v_lshlrev_b32 {vLN}, 4, v1")
    p("v_and_b32 v6, 0x13, v1")
    p("v_bfe_u32 v7, v1, 2, 1")
    p("v_lshl_add_u32 v6, v7, 3, v6")
    p("v_bfe_u32 v7, v1, 3, 1")
    p("v_lshl_add_u32 v6, v7, 2, v6")
    p("v_lshrrev_b32 v7, 5, v1")
    p("v_lshlrev_b32 v8, 4, v7")
    p(f"v_lshl_add_u32 {vV0}, v6, 5, v8")
    p(f"v_add_u32 {vV1}, 18432, {vV0}")
    p("v_and_b32 v6, 31, v1")
    p("v_lshlrev_b32 v7, 2, v7")
    p("v_sub_u32 v6, v6, v7")
    p(f"v_mov_b32 v8, {hx(NEG_INF)}")
    p("v_mov_b32 v9, 0")
    for r in range(16):
        c = 8 * (r // 4) + r % 4
        p(f"v_cmp_le_i32 vcc, {c}, v6")
        p(f"v_cndmask_b32 v{CD+r}, v8, v9, vcc")
        p(f"v_cndmask_b32 v{CO+r}, v9, v8, vcc")
    p("v_and_b32 v6, 27, v1")
    p("v_cmp_eq_u32 vcc, 18, v6")
    p(f"v_mov_b32 v7, {sONE}")
    p("v_cndmask_b32 v6, 0, v7, vcc")
    p("s_mov_b32 exec_lo, 0xfffc0000")
    p("s_mov_b32 exec_hi, 0xfffc0000")
    for r in range(80):
        p(f"v_accvgpr_write_b32 a{VA+r}, v6")
    exec_hi(p)
    p(f"s_lshl_b32 {sT0}, {sB}, 1")
    for k in range(10):
        p(f"s_cmp_ge_u32 {sT0}, {max(8-k,0)}")
        p(f"s_cselect_b32 {sT1}, 0x3f800000, 0x3f80ff80")
        p(f"v_accvgpr_write_b32 a{KA+8*k+4}, {sT1}")
        p(f"v_accvgpr_write_b32 a{KA+8*k+5}, {sONE}")
        p(f"v_accvgpr_write_b32 a{KA+8*k+6}, 0")
        p(f"v_accvgpr_write_b32 a{KA+8*k+7}, 0")
    for a in range(2):
        p(f"v_mov_b32 v{QF+8*a+4}, 0x3f80")
        for r in range(5, 8):
            p(f"v_mov_b32 v{QF+8*a+r}, 0")
    exec_all(p)
    p("v_mul_u32_u24 v6, 43, v1")
    p("v_lshrrev_b32 v6, 8, v6")
    p("v_mul_u32_u24 v7, 6, v6")
    p("v_sub_u32 v7, v1, v7")
    p(f"s_lshr_b32 {sT0}, {sB}, 1")
    p(f"v_sub_u32 v6, {sT0}, v6")
    p("v_max_i32 v6, 0, v6")
    p("v_lshrrev_b32 v8, 1, v7")
    p("v_mul_u32_u24 v8, 576, v8")
    p("v_and_b32 v7, 1, v7")
    p("v_mul_u32_u24 v7, 71, v7")
    p(f"s_mul_i32 {sT0}, {sU}, 72")
    p(f"v_add3_u32 v7, v7, v8, {sT0}")
    p("v_lshrrev_b32 v7, 7, v7")
    p("v_lshlrev_b32 v7, 3, v7")
    p(f"v_mul_u32_u24 v6, {FS}, v6")
    p(f"s_mov_b32 {sT0}, {hx(F1)}")
    p(f"v_add3_u32 {vPL}, v6, v7, {sT0}")


sQ0, sQ1 = "s48", "s49"


def load_bases(p):
    p(f"s_mul_i32 {sQ0}, {sB}, {2*144}")
    p(f"s_add_u32 {sQ0}, {sQ0}, {sG0}")
    p(f"s_lshl_b32 {sQ0}, {sQ0}, 9")
    p(f"s_add_u32 {sQ0}, {sQ0}, {hx(QK)}")
    p(f"s_add_u32 {sQ1}, {sQ0}, {144*512}")
    p(f"s_add_u32 {sKO}, {sQ0}, {hx(72*512 - 8*144*512)}")
    p(f"s_mul_i32 {sVO}, {sB}, {2*36864}")
    p(f"s_mul_i32 {sA}, {sH}, {18*32}")
    p(f"s_add_u32 {sVO}, {sVO}, {sA}")
    p(f"s_add_u32 {sVO}, {sVO}, {hx(VT - 8*36864)}")
    p(f"s_lshl_b32 {sB2}, {sB}, 1")


def qk_loads(p):
    def koff(k):
        p(f"s_add_u32 {sA}, {sKO}, {k*144*512}")
        if k < 8:
            p(f"s_cmp_ge_u32 {sB2}, {8-k}")
            p(f"s_cselect_b32 {sA}, {sA}, {hx(OOB)}")

    p(f"buffer_load_dwordx4 {vr(QF,4)}, {vLN}, {WS}, {sQ0} offen sc1")
    exec_lo(p)
    p(f"buffer_load_dwordx4 {vr(QF+4,4)}, {vLN}, {WS}, {sQ0} offen offset:1024 sc1")
    exec_all(p)
    for k in range(10):
        koff(k)
        p(f"buffer_load_dwordx4 {ar(KA+8*k,4)}, {vLN}, {WS}, {sA} offen sc1")
        exec_lo(p)
        p(f"buffer_load_dwordx4 {ar(KA+8*k+4,4)}, {vLN}, {WS}, {sA} offen offset:1024 sc1")
        exec_all(p)
        if k == 8:
            p(f"buffer_load_dwordx4 {vr(QF+8,4)}, {vLN}, {WS}, {sQ1} offen sc1")
            exec_lo(p)
            p(f"buffer_load_dwordx4 {vr(QF+12,4)}, {vLN}, {WS}, {sQ1} offen offset:1024 sc1")
            exec_all(p)


def v_loads():
    o = []
    for k in range(10):
        x = [f"s_add_u32 {sA}, {sVO}, {k*36864}"]
        if k < 8:
            x += [f"s_cmp_ge_u32 {sB2}, {8-k}", f"s_cselect_b32 {sA}, {sA}, {hx(OOB)}"]
        x += ["s_mov_b32 exec_lo, 0x3ffff", "s_mov_b32 exec_hi, 0x3ffff",
              f"buffer_load_dwordx4 {ar(VA+8*k,4)}, {vV0}, {WS}, {sA} offen sc1",
              f"buffer_load_dwordx4 {ar(VA+8*k+4,4)}, {vV1}, {WS}, {sA} offen sc1", "s_mov_b64 exec, -1"]
        o.append("\n".join(x))
    return o


def q_mask(p, a):
    q = QF + 8 * a
    exec_lo(p)
    for d in range(3):
        p(f"s_cmp_gt_u32 {sO2}, {d}")
        p(f"s_cselect_b32 {sT0}, 0, -1")
        p(f"v_and_b32 v{q+d}, {sT0}, v{q+d}")
    for d in range(1, 4):
        p(f"s_cmp_ge_u32 {sO2}, {d}")
        p(f"s_cselect_b32 {sT0}, -1, 0")
        p(f"v_and_b32 v{q+4+d}, {sT0}, v{q+4+d}")
    exec_all(p)


def s_mfmas(a, bi):
    k = a + bi
    s = vr(SB + 16 * (bi & 1), 16)
    c = vr(CO, 16) if bi == 0 else (vr(CD, 16) if bi == 8 else "0")
    q = QF + 8 * a
    return [f"v_mfma_f32_32x32x16_bf16 {s}, {ar(KA+8*k,4)}, {vr(q,4)}, {c}",
            f"v_mfma_f32_32x32x16_bf16 {s}, {ar(KA+8*k+4,4)}, {vr(q+4,4)}, {s}"]


def pass1(p, a, fill):
    for o in s_mfmas(a, 0):
        p(o)
    for bi in range(9):
        s = SB + 16 * (bi & 1)
        if bi < 8:
            for o in s_mfmas(a, bi + 1):
                p(o)
        if fill and (bi % 2 == 0):
            p(fill.pop(0))
        for k in range(8):
            m = vM0 if k % 2 == 0 else vM1
            if bi == 0 and k < 2:
                p(f"v_max_f32 {m}, v{s+2*k}, v{s+2*k+1}")
            else:
                p(f"v_max3_f32 {m}, v{s+2*k}, v{s+2*k+1}, {m}")
    p(f"v_max_f32 {vM0}, {vM0}, {vM1}")
    xhalf(p, "v_max_f32", vM0, vM1)
    q = QF + 8 * a + 4
    p(f"v_sub_f32 {vM0}, 0, {vM0}")
    p(f"v_cvt_pk_bf16_f32 v12, {vM0}, {vM0}")
    p(f"v_and_b32 v12, 0xffff0000, v12")
    p(f"v_sub_f32 v13, {vM0}, v12")
    p(f"v_cvt_pk_bf16_f32 v14, v13, v13")
    p(f"v_and_b32 v14, 0xffff0000, v14")
    p(f"v_sub_f32 v14, v13, v14")
    exec_hi(p)
    p(f"v_or_b32 v{q}, 0x3f80, v12")
    p(f"v_cvt_pk_bf16_f32 v{q+1}, v13, v14")
    exec_all(p)


def pv_mfmas(a, bi):
    k = a + bi
    o = vr(OA + 16 * a, 16)
    pb = PB + 8 * (bi & 1)
    return [f"v_mfma_f32_32x32x16_bf16 {o}, {ar(VA+8*k,4)}, {vr(pb,4)}, {'0' if bi == 0 else o}",
            f"v_mfma_f32_32x32x16_bf16 {o}, {ar(VA+8*k+4,4)}, {vr(pb+4,4)}, {o}"]


def pass2(p, a, fill=None):
    fill = fill if fill is not None else []
    for o in s_mfmas(a, 0):
        p(o)
    for bi in range(9):
        s = SB + 16 * (bi & 1)
        pb = PB + 8 * (bi & 1)
        mf = (s_mfmas(a, bi + 1) if bi < 8 else [None, None]) + (pv_mfmas(a, bi - 1) if bi > 0 else [None, None])
        ex = lambda r: p(f"v_exp_f32 v{s+r}, v{s+r}")
        cv = lambda k: p(f"v_cvt_pk_bf16_f32 v{pb+k}, v{s+2*k}, v{s+2*k+1}")
        plan = [([0, 1, 2, 3], []), ([4, 5, 6, 7, 8], [0]), ([9, 10, 11, 12], [1, 2, 3]), ([13, 14, 15], [4, 5, 6, 7])]
        for j in range(4):
            if mf[j]:
                p(mf[j])
            if fill and j != 3:
                p(fill.pop(0))
            es, cs = plan[j]
            if j == 3:
                for r in es:
                    ex(r)
                for k in cs:
                    cv(k)
            else:
                for k in cs:
                    cv(k)
                for r in es:
                    ex(r)
    for o in pv_mfmas(a, 8):
        p(o)


def o_store(p, a):
    o = OA + 16 * a
    p(f"v_rcp_f32 v12, v{o+10}")
    p(f"s_lshl_b32 {sT0}, {sB}, 1")
    p(f"s_add_u32 {sT0}, {sT0}, {a}")
    p(f"s_mul_i32 {sT0}, {sT0}, 36")
    p(f"s_add_u32 {sT1}, {sT0}, {sH}")
    p(f"s_lshl_b32 {sT1}, {sT1}, 10")
    p(f"s_add_u32 {sT1}, {sT1}, {hx(OB)}")
    for r in range(10):
        p(f"v_mul_f32 v{o+r}, v{o+r}, v12")
    for k in range(5):
        p(f"v_cvt_pk_bf16_f32 v{o+k}, v{o+2*k}, v{o+2*k+1}")
    p(f"buffer_store_dwordx4 {vr(o,4)}, {vLN}, {WS}, {sT1} offen sc1")
    p(f"s_add_u32 {sT0}, {sT0}, 32")
    p(f"s_lshl_b32 {sT0}, {sT0}, 10")
    p(f"s_lshr_b32 {sT1}, {sH}, 2")
    p(f"s_lshl_b32 {sT1}, {sT1}, 9")
    p(f"s_add_u32 {sT0}, {sT0}, {sT1}")
    p(f"s_lshl_b32 {sT1}, {sO2}, 2")
    p(f"s_add_u32 {sT0}, {sT0}, {sT1}")
    p(f"s_add_u32 {sT0}, {sT0}, {hx(OB)}")
    exec_lo(p)
    p(f"buffer_store_dword v{o+4}, {vLN}, {WS}, {sT0} offen sc1", tag="out")
    exec_all(p)


def publish(p):
    L = p.label("f2")
    p(f"s_cmp_lg_u32 {sW}, 0")
    p(f"s_cbranch_scc1 {L}")
    s = p.side_begin()
    p(f"s_mul_i32 {sT0}, {sB}, {FS}")
    p(f"s_lshl_b32 {sT1}, {sU}, 4")
    p(f"s_add_u32 {sT0}, {sT0}, {sT1}")
    p(f"s_add_u32 {sT0}, {sT0}, {F2}")
    set_flag(p, "v62", "v63", sT0)
    p.side_end(s)
    p(f"{L}:")


def p2(p, st, opts, fill, ppf):
    load_bases(p)
    L, L1 = p.label("p2go"), p.label("p2w1")
    p(f"s_cmp_lg_u32 {sW}, 0")
    p(f"s_cbranch_scc1 {L1}")
    s = p.side_begin()
    poll(p, vPL, "v6", 18)
    p.side_end(s)
    p(f"s_branch {L}")
    p(f"{L1}:")
    p(f"s_cmp_lg_u32 {sW}, 1")
    p(f"s_cbranch_scc1 {L}")
    s = p.side_begin()
    p("v_lshlrev_b32 v7, 2, v1")
    p("v_add_u32 v7, 128, v7")
    poll(p, "v7", "v6", 24, srd_=RC)
    p.side_end(s)
    p(f"{L}:")
    p("s_barrier")
    st(p, "f1seen")
    qk_loads(p)
    st(p, "p2ld")
    vl = v_loads()
    q_mask(p, 0)
    pass1(p, 0, vl)
    q_mask(p, 1)
    pass1(p, 1, vl)
    assert not vl
    st(p, "pass1")
    pass2(p, 0, fill)
    o_store(p, 0)
    pass2(p, 1, fill)
    o_store(p, 1)
    st(p, "p2e")
```

```python
from common import *
from pf import weight_prefetch
from sched import Filler
from sg import gelu_ops, interleave, GK, emit_some

sI, sMm, sC, sFO, sFH, sT0, sT1, sLW, sDA, sDB, sPB, sFL, sT2, sCNT = (
    "s48", "s49", "s50", "s51", "s26", "s27", "s3", "s10", "s56", "s57", "s58", "s59", "s60", "s61")
vLN, vF6, vF68, vH0, vZ = "v2", "v3", "v4", "v5", "v6"
AB = 8
DO = 16
vCA, vCB = "v25", "v26"
GT = 27
vHS = 31
ID0, ID1, IDX = 32, 36, 40
vFL, vFL8, vFLb = "v44", "v45", "v62"
ST = 46
ACC = [80, 96, 64]
ACC8 = 112
CV = [128, 136]
XB = 112
HB_ = 0
AFR, NAF = 72, 7
PL = 100
PL8 = PL + 17 * 8
SLOT = 36864
PD = NAF - 1
NT = ['', '']
SCR = [7]
HALF = [1]
sSC = 's67'
sF7 = 's68'
vP2 = 'v7'
sXO = 's52'
sSB0, sSB1, sGA, sGM, sPA = 's12', 's13', 's14', 's11', 's15'
vONE = 'v31'


def ids(p):
    p(f"s_and_b32 {sMm}, {sL}, 1")
    p(f"s_lshl_b32 {sT0}, {sX}, 1")
    p(f"s_add_u32 {sMm}, {sMm}, {sT0}")
    p(f"s_lshr_b32 {sI}, {sL}, 1")
    p(f"s_mov_b32 {sC}, {sX}")
    p(f"s_mul_i32 {sFO}, {sMm}, 288")
    p(f"s_bitcmp1_b32 {sMm}, 0")
    p(f"s_cselect_b32 {sT0}, 0, 256")
    p(f"s_cselect_b32 {sT1}, 32, 0")
    p(f"s_add_u32 {sFH}, {sFO}, {sT0}")
    p(f"s_add_u32 {sFO}, {sFO}, {sT1}")
    p(f"s_mul_i32 {sLW}, {sW}, 9216")
    srd(p, R_A, S_W3, 576 * 9216)
    srd(p, R_B, S_W4, 4608 * 1152)


def dma_pattern(p, kind):
    t, u = f"v{GT}", f"v{GT+1}"
    if kind == "half":
        p(f"v_lshrrev_b32 {t}, 2, v1")
        p(f"v_mul_u32_u24 {t}, 9216, {t}")
        p(f"v_and_b32 {u}, 3, v1")
        p(f"v_lshl_add_u32 v{DO}, {u}, 4, {t}")
        step = 16 * 9216
    else:
        stride = 9216 if kind == "w3" else 1152
        p(f"v_lshrrev_b32 {t}, 3, v1")
        p(f"v_mul_u32_u24 {t}, {stride}, {t}")
        p(f"v_bfe_u32 {u}, v1, 4, 1")
        p(f"v_lshlrev_b32 {u}, 2, {u}")
        p(f"v_xor_b32 {u}, {u}, v1")
        p(f"v_and_b32 {u}, 7, {u}")
        p(f"v_lshl_add_u32 v{DO}, {u}, 4, {t}")
        step = 8 * stride
    k0 = lambda k: k - 4 if (kind == "w4" and k >= 4) else k
    return [f"v_add_u32 v{DO+k}, {k0(k)*step - (k%4)*1024}, v{DO}" for k in range(1, 9)]


def stage_dma(tau):
    o = []
    slot = (tau % 4) * SLOT
    if tau == 0:
        o += [f"s_mul_i32 {sDA}, {sW}, {144*9216}", f"s_lshl_b32 {sT0}, {sFH}, 1", f"s_add_u32 {sDA}, {sDA}, {sT0}"]
        so = lambda k: sDA
        r = RA
    elif tau < 9:
        cc, kh = divmod(tau - 1, 2)
        o += [f"s_mul_i32 {sDA}, {sW}, {72*9216}", f"s_lshl_b32 {sT0}, {sFO}, 1", f"s_add_u32 {sDA}, {sDA}, {sT0}"]
        if kh or cc:
            o += [f"s_add_u32 {sDA}, {sDA}, {kh*288*9216 + cc*128}"]
        so = lambda k: sDA
        r = RA
    else:
        sg = tau - 9
        if sg == 0:
            o += [f"s_mov_b32 {sT0}, {8*128}"]
        else:
            o += [f"s_add_u32 {sT0}, {sC}, {sg}", f"s_and_b32 {sT0}, {sT0}, 7", f"s_lshl_b32 {sT0}, {sT0}, 7"]
        o += [f"s_add_u32 {sDA}, s62, {sT0}", f"s_add_u32 {sDB}, s63, {sT0}"]
        so = lambda k: sDA if k < 4 else sDB
        r = RB
    o = ["\n".join(o)]
    for k in range(9):
        if k % 4 == 0:
            o.append(f"s_add_u32 m0, {sLW}, {slot + k*1024}")
        o.append(f"buffer_load_dwordx4 v{DO+k}, {r}, {so(k)} offen offset:{(k%4)*1024} lds")
    return o


def w4_bases():
    return ["\n".join([f"s_sub_u32 s63, {sFO}, 32", f"s_cmp_eq_u32 {sW}, 0", f"s_cselect_b32 s62, {sFH}, s63",
                       f"s_mul_i32 {sT0}, {sW}, 72", f"s_add_u32 s62, s62, {sT0}", f"s_add_u32 s63, {sFO}, {sT0}",
                       f"s_mul_i32 s62, s62, 1152", f"s_mul_i32 s63, s63, 1152"])]


def emit_list(p, ops, tag):
    last = max(k for k, o in enumerate(ops) if o.startswith("buffer"))
    for k, o in enumerate(ops):
        p(o, tag=tag if k == last else None)


class Rec:
    def __init__(self):
        self.ops = []

    def __call__(self, text, tag=None):
        self.ops.append(text)


def tagged(ops, tag):
    last = max(k for k, o in enumerate(ops) if o.startswith("buffer"))
    return [(o, tag) if k == last else o for k, o in enumerate(ops)]


def prefill_ops():
    r = Rec()
    ids(r)
    o = ["\n".join(r.ops)]
    r = Rec()
    rest = dma_pattern(r, "half")
    o.append("\n".join(r.ops + rest))
    o += tagged(stage_dma(0), "st0")
    r = Rec()
    rest = dma_pattern(r, "w3")
    o.append("\n".join(r.ops + rest))
    for tau in (1, 2):
        o += tagged(stage_dma(tau), f"st{tau}")
    return o


def setup(p):
    t, u, d = f"v{GT}", f"v{GT+1}", f"v{GT+2}"
    p(f"v_bfe_u32 {t}, v1, 4, 1")
    p(f"v_lshlrev_b32 {t}, 5, {t}")
    p(f"v_and_b32 {u}, 1, v1")
    p(f"v_lshl_add_u32 {t}, {u}, 4, {t}")
    p(f"v_bfe_u32 {u}, v1, 1, 1")
    p(f"v_lshl_add_u32 {t}, {u}, 3, {t}")
    p(f"v_bfe_u32 {u}, v1, 2, 2")
    p(f"v_lshrrev_b32 {d}, 5, v1")
    p(f"v_lshl_add_u32 {u}, {d}, 3, {u}")
    p(f"v_lshl_add_u32 {vH0}, {u}, 6, {t}")
    p(f"v_lshl_add_u32 {t}, {u}, 7, {t}")
    p(f"v_bfe_u32 {u}, v1, 3, 1")
    p(f"v_lshl_add_u32 v{AB}, {u}, 6, {t}")
    p(f"v_xor_b32 v{AB+1}, 64, v{AB}")
    for s in range(1, 4):
        p(f"v_add_u32 v{AB+2*s}, {s*SLOT}, v{AB}")
        p(f"v_add_u32 v{AB+2*s+1}, {s*SLOT}, v{AB+1}")
    p(f"v_mov_b32 {vCA}, {hx(f2u(-GK))}")
    p(f"v_mov_b32 {vCB}, {hx(f2u(-GK*0.044715))}")
    p(f"v_and_b32 {t}, 0x13, v1")
    p(f"v_bfe_u32 {u}, v1, 2, 1")
    p(f"v_lshl_add_u32 {t}, {u}, 3, {t}")
    p(f"v_bfe_u32 {u}, v1, 3, 1")
    p(f"v_lshl_add_u32 {t}, {u}, 2, {t}")
    p(f"v_lshlrev_b32 {d}, 3, {d}")
    p(f"v_sub_u32 {t}, {t}, {d}")
    p(f"v_and_b32 {u}, 31, v1")
    p(f"v_mov_b32 v{ST}, 0x3f80")
    p(f"v_mov_b32 v{ST+1}, 0x3f800000")
    for base, src, sub in ((ID0, t, 0), (ID1, t, 16), (IDX, u, 0)):
        for k in range(4):
            p(f"v_cmp_eq_u32 vcc, {sub+2*k}, {src}")
            p(f"v_cndmask_b32 v{base+k}, 0, v{ST}, vcc")
            p(f"v_cmp_eq_u32 vcc, {sub+2*k+1}, {src}")
            p(f"v_cndmask_b32 v{base+k}, v{base+k}, v{ST+1}, vcc")
    p(f"s_lshl_b32 {sT0}, {sI}, 2")
    p(f"s_add_u32 {sT1}, {sT0}, {sW}")
    p(f"s_mul_i32 {sT1}, {sT1}, {FS}")
    p(f"s_add_u32 {sT1}, {sT1}, {F6}")
    p(f"v_and_b32 {u}, 15, v1")
    p(f"s_lshl_b32 {sFL}, {sI}, 6")
    p(f"s_add_u32 {sFL}, {sFL}, {sW}")
    p(f"s_lshl_b32 {sFL}, {sFL}, 7")
    p(f"s_add_u32 {sFL}, {sFL}, {F7}")
    p(f"s_lshl_b32 {sF7}, {sMm}, 2")
    p(f"s_add_u32 {sF7}, {sF7}, {sFL}")
    p(f"s_lshl_b32 {sT2}, {sMm}, 9")
    p(f"s_add_u32 {sFL}, {sFL}, {sT2}")
    p(f"v_lshl_add_u32 {vF6}, {u}, 2, {sFL}")
    p(f"v_lshlrev_b32 {vP2}, 9, v1")
    p(f"s_lshl_b32 {sFL}, {sMm}, 3")
    p(f"s_add_u32 {sFL}, {sFL}, {sT1}")
    p(f"s_lshr_b32 {sT1}, {sMm}, 2")
    p(f"s_add_u32 {sT1}, {sT1}, {sT0}")
    p(f"s_mul_i32 {sT1}, {sT1}, {FS}")
    p(f"s_add_u32 {sT1}, {sT1}, {F6}")
    p(f"v_lshl_add_u32 {vF68}, {u}, 3, {sT1}")
    p(f"v_mov_b32 {vZ}, 0")
    p(f"s_mov_b32 {sCNT}, 0")
    p(f"s_lshl_b32 {sT0}, {sW}, 1")
    p(f"s_xor_b32 {sT0}, {sT0}, {sI}")
    p(f"s_and_b32 {sT0}, {sT0}, {SCR[0]}")
    p(f"s_lshl_b32 {sSC}, {sT0}, 12")
    p(f"s_mul_i32 {sPB}, {sI}, 72")
    p(f"s_add_u32 {sPB}, {sPB}, {sW}")
    p(f"s_lshl_b32 {sPB}, {sPB}, 15")
    p(f"s_add_u32 {sPB}, {sPB}, {hx(PART)}")
    p(f"s_lshl_b32 {sT0}, {sMm}, 11")
    p(f"s_xor_b32 {sT0}, {sT0}, {sSC}")
    p(f"s_add_u32 {sT0}, {sT0}, {sPB}")
    p(f"s_and_b32 {sT1}, {sMm}, 1")
    p(f"s_lshl_b32 {sT1}, {sT1}, 17")
    p(f"s_add_u32 {sSB1}, {sT0}, {sT1}")
    p(f"s_xor_b32 {sT1}, {sT1}, {1 << 17}")
    p(f"s_add_u32 {sSB0}, {sT0}, {sT1}")
    p(f"s_lshl_b32 {sT0}, {sMm}, 17")
    p(f"s_add_u32 {sPB}, {sPB}, {sT0}")
    p(f"v_mov_b32 {vONE}, 1")


def x_loads(p):
    t = f"v{GT}"
    p(f"s_lshl_b32 {sT0}, {sI}, 2")
    p(f"s_add_u32 {sT0}, {sT0}, {sW}")
    p(f"s_lshl_b32 {sT1}, {sT0}, 12")
    p(f"s_add_u32 {sT1}, {sT1}, {hx(ST5)}")
    p(f"v_and_b32 {t}, 31, v1")
    p(f"v_lshlrev_b32 {t}, 3, {t}")
    p(f"v_lshrrev_b32 v{GT+1}, 5, v1")
    p(f"v_lshl_add_u32 {t}, v{GT+1}, 11, {t}")
    for k in range(8):
        p(f"buffer_load_dwordx2 {vr(ST+2*k,2)}, {t}, {WS}, {sT1} offen offset:{k*256} sc1")
    p(f"s_mul_i32 {sXO}, {sT0}, 36864")
    p(f"s_add_u32 {sXO}, {sXO}, {hx(X1)}")
    o = []
    for s in range(36):
        x = f"buffer_load_dwordx4 {vr(XB+4*s,4)}, {vLN}, {WS}, {sXO} offen offset:{(s%4)*1024} sc1"
        if s and s % 4 == 0:
            x = f"s_add_u32 {sXO}, {sXO}, 4096\n" + x
        o.append(x)
    return o


vR, vNM = f"v{ST}", f"v{ST+1}"


def stats(p):
    R = ST
    for step in (8, 4, 2):
        for k in range(0, step, 2):
            p(f"v_add_f32 v{R+k}, v{R+k}, v{R+k+step}")
            p(f"v_add_f32 v{R+k+1}, v{R+k+1}, v{R+k+step+1}")
    S, Q = f"v{R}", f"v{R+1}"
    xhalf(p, "v_add_f32", S, f"v{R+2}")
    xhalf(p, "v_add_f32", Q, f"v{R+3}")
    p(f"v_mul_f32 v{R+2}, {hx(f2u(-1.0/576))}, {S}")
    p(f"v_mul_f32 {Q}, {hx(f2u(1.0/576))}, {Q}")
    p(f"v_fma_f32 {Q}, -v{R+2}, v{R+2}, {Q}")
    p(f"v_max_f32 {Q}, 0, {Q}")
    p(f"v_add_f32 {Q}, {hx(f2u(EPS))}, {Q}")
    p(f"v_rsq_f32 {vR}, {Q}")
    p(f"v_mul_f32 {vNM}, v{R+2}, {vR}")


def norm_ops(s):
    o = []
    for k in range(0, 4, 2):
        a, b = XB + 4 * s + k, XB + 4 * s + k + 1
        t = [ST + 2 + 4 * (k // 2) + j for j in range(4)]
        o += [f"v_lshlrev_b32 v{t[0]}, 16, v{a}", f"v_and_b32 v{t[1]}, 0xffff0000, v{a}",
              f"v_lshlrev_b32 v{t[2]}, 16, v{b}", f"v_and_b32 v{t[3]}, 0xffff0000, v{b}"]
        o += [f"v_fma_f32 v{x}, v{x}, {vR}, {vNM}" for x in t]
        o += [f"v_cvt_pk_bf16_f32 v{a}, v{t[0]}, v{t[1]}", f"v_cvt_pk_bf16_f32 v{b}, v{t[2]}, v{t[3]}"]
    return o


def gelu_list(acc, pos):
    o = []
    for e in range(0, 16, 2):
        x0, x1 = f"v{acc+e}", f"v{acc+e+1}"
        t0, t1 = f"v{GT+(e & 2)}", f"v{GT+1+(e & 2)}"
        o += interleave([gelu_ops(x0, t0, vCA, vCB), gelu_ops(x1, t1, vCA, vCB)])
        o += [f"v_cvt_pk_bf16_f32 {x0}, {x0}, {x1}"]
        o += [f"v_accvgpr_write_b32 a{HB_+8*pos+e//2}, {x0}"]
    return o


def part_store_list(acc, sg, par1, cv):
    o = [f"v_cvt_pk_bf16_f32 v{cv+k}, v{acc+2*k}, v{acc+2*k+1}" for k in range(8)]
    A = "s64"
    base = sSB1 if par1 else sSB0
    if sg == 0:
        q = [f"s_add_u32 {A}, {base}, {8 << 18}"]
    else:
        q = [f"s_add_u32 {A}, {sC}, {sg}", f"s_and_b32 {A}, {A}, 7", f"s_lshl_b32 {A}, {A}, 18",
             f"s_add_u32 {A}, {A}, {base}"]
    o = o[:4] + q + [(f"buffer_store_dwordx4 {vr(cv,4)}, {vLN}, {WS}, {A} offen sc1{NT[1]}", None)][:3 - 2 * HALF[0]] + o[4:]
    o += [(f"buffer_store_dwordx4 {vr(cv+4,4)}, {vLN}, {WS}, {A} offen offset:1024 sc1{NT[1]}", f"ps{sg}_{par1}")]
    return o


def flag_publish(p, val):
    p(f"v_mov_b32 v{GT}, {val}")
    p("s_mov_b64 exec, 1")
    p(f"buffer_store_dword v{GT}, {vZ}, {WS}, {sFL} offen sc1")
    p("s_mov_b64 exec, -1")


def pair_publish_ops(p, sg, tag):
    o = [f"s_add_u32 {sPA}, {sC}, {sg}", f"s_and_b32 {sPA}, {sPA}, 7", f"s_lshl_b32 {sPA}, {sPA}, 10",
         f"s_add_u32 {sPA}, {sPA}, {sF7}"]

    def fin():
        if tag:
            p.wait_vm(tag)
        if sg == 8:
            p(f"s_and_b32 {sT0}, {sMm}, 1")
            p(f"s_lshr_b32 exec_lo, 2, {sT0}")
            p("s_mov_b32 exec_hi, 0")
        else:
            p("s_mov_b64 exec, 3")
        p(f"buffer_store_dword {vONE}, {vP2}, {WS}, {sPA} offen sc1")
        p("s_mov_b64 exec, -1")
    fin.cost = 24
    return o + [fin]


def flag_load(p, dst, addr):
    p(f"buffer_load_dword {dst}, {addr}, {WS}, 0 offen sc1")


def flag_check(p, reg, addr, val, mask):
    lp, ok = p.label("fc"), p.label("fcok")
    p.wait_regs(reg)
    p(f"{lp}:")
    p(f"v_cmp_gt_u32 vcc, {val}, {reg}")
    p(f"s_and_b32 {sT1}, vcc_lo, {mask}")
    p(f"s_cbranch_scc0 {ok}")
    s = p.side_begin()
    p(f"s_add_u32 {sCNT}, {sCNT}, 1")
    p(f"s_cmp_gt_u32 {sCNT}, {SPIN_MAX}")
    p(f"s_cbranch_scc1 {ok}")
    flag_load(p, reg, addr)
    p("s_waitcnt vmcnt(0)")
    p(f"s_branch {lp}")
    p.side_end(s)
    p(f"{ok}:")


def group_ops(p, g, slot, fl, check=True, load=True):
    o = [f"s_add_u32 {sGA}, {sC}, {8-g}", f"s_and_b32 {sGA}, {sGA}, 7", f"s_lshl_b32 {sGM}, {sGA}, 1",
         f"s_lshl_b32 {sGM}, 3, {sGM}", f"s_lshl_b32 {sGA}, {sGA}, 12", f"s_xor_b32 {sGA}, {sGA}, {sSC}",
         f"s_add_u32 {sGA}, {sGA}, {sPB}"]
    if check:
        chk = lambda: flag_check(p, fl, vF6, 1, sGM)
        chk.cost = 24
        o.append(chk)
    if load:
        for k in range(0, 4, HALF[0]):
            o.append(f"buffer_load_dwordx4 {ar(PL+8*slot+4*k,4)}, {vLN}, {WS}, {sGA} offen offset:{k*1024} sc1{NT[0]}")
    return o


def residual_loads():
    sT0, sT1 = 's0', 's1'
    o = [f"s_lshl_b32 {sT0}, {sI}, 2", f"s_add_u32 {sT0}, {sT0}, {sW}", f"s_mul_i32 {sT0}, {sT0}, 36",
         f"s_lshl_b32 {sT1}, {sMm}, 1", f"s_add_u32 {sT0}, {sT0}, {sT1}", f"s_lshl_b32 {sT0}, {sT0}, 10",
         f"s_add_u32 {sT1}, {sT0}, {hx(HB)}", f"s_add_u32 {sT0}, {sT0}, {hx(X1)}"]
    for j, s in enumerate((sT1, sT0)):
        for k in range(2):
            o.append(f"buffer_load_dwordx4 {ar(PL+8*(15+j)+4*k,4)}, {vLN}, {WS}, {s} offen offset:{k*1024} sc1")
    return o


def c8_loads():
    sT0, sT1 = 's0', 's1'
    t, u, a = f"v{ST+2}", f"v{ST+3}", f"v{ST+4}"
    o = [f"s_and_b32 {sT0}, {sW}, 1", f"s_lshl_b32 {sT0}, {sT0}, 5", f"s_lshr_b32 {sT1}, {sW}, 1",
         f"s_lshl_b32 {sT1}, {sT1}, 4", f"s_add_u32 {sT0}, {sT0}, {sT1}",
         f"v_and_b32 {t}, 15, v1", f"v_add_u32 {t}, {sT0}, {t}", f"v_lshlrev_b32 {t}, 4, {t}",
         f"v_bfe_u32 {u}, v1, 4, 1", f"v_lshlrev_b32 {u}, 1, {u}", f"v_lshrrev_b32 {a}, 5, v1",
         f"v_add_u32 {u}, {u}, {a}",
         f"v_lshl_add_u32 {a}, {u}, 11, {t}",
         f"s_mul_i32 {sT0}, {sI}, 18", f"s_bfe_u32 {sT1}, {sMm}, 0x10001", f"s_add_u32 {sT0}, {sT0}, {sT1}",
         f"s_add_u32 {sT0}, {sT0}, 16", f"s_lshl_b32 {sT0}, {sT0}, 2", f"s_lshr_b32 {sT1}, {sMm}, 2",
         f"s_add_u32 {sT0}, {sT0}, {sT1}", f"s_lshl_b32 {sT0}, {sT0}, 15", f"s_and_b32 {sT1}, {sMm}, 1",
         f"s_lshl_b32 {sT1}, {sT1}, 10", f"s_add_u32 {sT0}, {sT0}, {sT1}", f"s_add_u32 {sT0}, {sT0}, {hx(PART)}"]
    o += [f"s_lshr_b32 {sT1}, {sMm}, 2", f"s_lshl_b32 {sT1}, {sT1}, 1", f"s_xor_b32 {sT1}, {sT1}, {sI}",
          f"s_and_b32 {sT1}, {sT1}, {SCR[0]}", f"s_lshl_b32 {sT1}, {sT1}, 12", f"v_xor_b32 {a}, {sT1}, {a}"]
    for k in range(4):
        o.append(f"buffer_load_dwordx4 {ar(PL8+4*k,4)}, {a}, {WS}, {sT0} offen sc1")
        if k < 3:
            o.append(f"v_xor_b32 {a}, {(k ^ (k+1))*8192}, {a}")
    o += [f"v_mov_b32 {a}, {hx(X1-HB)}", f"v_mul_u32_u24 {a}, {u}, {a}" if False else f"v_mul_lo_u32 {a}, {u}, {a}",
          f"v_add_u32 {a}, {a}, {t}", f"v_mov_b32 {t}, {hx(OOB)}",
          f"v_cmp_gt_u32 vcc, 2, {u}\nv_cndmask_b32 {a}, {t}, {a}, vcc",
          f"s_lshl_b32 {sT0}, {sI}, 2", f"s_lshr_b32 {sT1}, {sMm}, 2", f"s_add_u32 {sT0}, {sT0}, {sT1}",
          f"s_mul_i32 {sT0}, {sT0}, 36", f"s_and_b32 {sT1}, {sMm}, 3", f"s_add_u32 {sT0}, {sT0}, {sT1}",
          f"s_add_u32 {sT0}, {sT0}, 32", f"s_lshl_b32 {sT0}, {sT0}, 10", f"s_add_u32 {sT0}, {sT0}, {hx(HB)}",
          f"buffer_load_dwordx4 {ar(PL8+16,4)}, {a}, {WS}, {sT0} offen sc1"]
    return o


def build_sequence():
    seq = []
    for s in range(36):
        seq.append(dict(acc=ACC[0], first=s == 0, b=vr(XB + 4 * s, 4), base=vH0, off=(s * 1024, s * 1024 + 256), seg=0))
    for cc in range(4):
        for par in range(2):
            n = 1 + 2 * cc + par
            for s in range(36):
                slot = (1 + 2 * cc + s // 18) % 4
                o = (s % 18) * 2048
                seq.append(dict(acc=ACC[n % 2], first=s == 0, b=vr(XB + 4 * s, 4), base=f"v{AB+2*slot+par}",
                                off=(o, o + 512), seg=1 + cc))
    for sg in range(9):
        slot = (9 + sg) % 4
        if sg == 0:
            order = [(s, c) for s in range(18) for c in range(2)]
            accs = (ACC[1], ACC[2])
        else:
            order = [(s, c) for c in range(2) for s in range(18)]
            accs = (ACC[0], ACC[1])
        for s, c in order:
            seq.append(dict(acc=accs[c], first=s == 0, b=ar(HB_ + 4 * s, 4), base=f"v{AB+2*slot+c}",
                            off=(s * 2048, s * 2048 + 512), seg=5 + sg))
    return seq


def main_loop(p, st, opts, xl):
    seq = build_sequence()
    N = len(seq)
    start = {}
    for j, e in enumerate(seq):
        start.setdefault(e["seg"], j)
    seg_stages = {0: [0], 1: [1, 2], 2: [3, 4], 3: [5, 6], 4: [7, 8]}
    for sg in range(9):
        seg_stages[5 + sg] = [9 + sg]
    dma_after = {1: [4], 2: [5, 6], 3: [7, 8], 4: [9, 10], 5: [11, 12]}
    for k in range(6, 11):
        dma_after[k] = [7 + k]
    swapped = [False]

    def rd(j):
        e = seq[j]
        if e["seg"] >= 5 and not swapped[0]:
            swapped[0] = True
            p(f"s_and_b32 {sT1}, {sMm}, 1")
            p(f"s_xor_b32 {sT1}, {sT1}, 1")
            p(f"s_lshl_b32 {sT1}, {sT1}, 6")
            for r in range(AB, AB + 8):
                p(f"v_xor_b32 v{r}, {sT1}, v{r}")
        d = AFR + 4 * (j % NAF)
        for q in range(2):
            p(f"ds_read_b64_tr_b16 {ar(d+2*q,2)}, {e['base']} offset:{e['off'][q]}")

    F = Filler(p)
    add = F.add
    for n in range(9):
        e = 36 * (n + 1)
        add(e + 2, e + (34 if n < 8 else 29), gelu_list(ACC[n % 2], n))
    for k, taus in dma_after.items():
        ops = []
        for tau in taus:
            if tau == 9:
                r = Rec()
                rest = dma_pattern(r, "w4")
                ops += r.ops + rest + w4_bases()
            ops += tagged(stage_dma(tau), f"st{tau}")
        add(start[k] - 3, start[k] + (opts.get("dma3", 50) if k < 5 else 31), ops)
    E0 = start[5]
    opts.setdefault("pf6", "4")
    if opts.get("pf6"):
        pf = lambda: weight_prefetch(p, opts, opts["pf6"], V=64)
        pf.cost = 60
        add(start[2] + 55, start[2] + 60, [pf])
    add(E0 + 38, E0 + 45, part_store_list(ACC[1], 0, 0, CV[0]))
    add(E0 + 46, E0 + 52, part_store_list(ACC[2], 0, 1, CV[1]))
    for sg in range(1, 9):
        e = start[5 + sg]
        add(e + 20, e + 28, part_store_list(ACC[0], sg, 0, CV[0]))
        if sg < 8:
            add(e + 38, e + 46, part_store_list(ACC[1], sg, 1, CV[1]))
    add(start[7], start[7] + 30, residual_loads())
    nslot = 0
    LAG = opts.get("lag", 0)
    pubpos, ldpos, chkpos = opts.get("pubpos", 30), opts.get("ldpos", 12), opts.get("chkpos", 28)
    for sg in range(1, 9):
        e = start[5 + sg]
        PL_ = opts.get("publag", 0)
        ps = sg - 1 - PL_
        tag = None if opts.get("x_nopubwait") else f"ps{ps}_1"
        pp = pubpos if sg < 8 else opts.get("pub8", 24)
        if ps < 0:
            pass
        elif ps == 0:
            def pub1(tag=tag):
                if tag:
                    p.wait_vm(tag)
                flag_publish(p, 1)
            add(e + pp, e + pp + 2, [pub1])
        else:
            o = pair_publish_ops(p, ps, tag)
            add(e + pp - 8, e + pp - 1, o[:-1])
            add(e + pp, e + pp + 1, o[-1:])
        g = sg - 2 - LAG
        if g >= 1 and not opts.get("x_nochk"):
            fl = (vFL, vFLb)[g & 1]
            add(e + ldpos, e + ldpos + 1, [lambda fl=fl: flag_load(p, fl, vF6)])
            o = group_ops(p, g, nslot, fl, not opts.get("x_nospin"), not opts.get("x_noload"))
            add(e + chkpos - 12, e + chkpos - 1, o[:7])
            add(e + chkpos, min(e + chkpos + 7, N - 1), o[7:])
        if g >= 1:
            nslot += 2
    if not opts.get("x_nochk"):
        e = start[5 + opts.get("c8at", 3)]
        add(e - 30, e - 28, [lambda: flag_load(p, vFL8, vF68)])
        c8 = lambda: flag_check(p, vFL8, vF68, 1, "0xffff")
        c8.cost = 24
        add(e, e + 34, [c8] + c8_loads())

    emit_some(p, xl, opts.get("xahead", 12))
    st(p, "xiss")
    stats(p)
    st(p, "stats")
    p.wait_vm("st0")
    p("s_barrier")
    for j in range(PD):
        rd(j)
    for o in norm_ops(0):
        p(o)
    issued = PD
    bounds = sorted(start.values())[1:]
    for j, e in enumerate(seq):
        d = AFR + 4 * (j % NAF)
        acc = vr(e["acc"], 16)
        if opts.get("wait2", 1) and j % 2 == 0 and j + 1 < issued:
            p.wait_regs(ar(AFR + 4 * ((j + 1) % NAF), 4))
        p(f"v_mfma_f32_32x32x16_bf16 {acc}, {ar(d,4)}, {e['b']}, {'0' if e['first'] else acc}")
        nb = next((b for b in bounds if b > j), None)
        if nb is not None and j == nb - 4:
            p.wait_lg()
            for tau in seg_stages[seq[nb]["seg"]]:
                p.wait_vm(f"st{tau}")
            p("s_barrier")
            if st:
                st(p, f"seg{seq[nb]['seg']}")
        lim = min(j + PD, N - 1)
        if nb is not None and j < nb - 4:
            lim = min(lim, nb - 1)
        emit_some(p, xl, 1)
        if j < 35:
            for o in norm_ops(j + 1):
                p(o)
        while issued <= lim:
            rd(issued)
            issued += 1
        F.gap(j)
    assert F.done()
    return nslot


def tail(p, st, nslot, opts):
    acc = vr(ACC[1], 16)

    def addp(slot):
        p(f"v_mfma_f32_32x32x16_bf16 {acc}, {vr(ID0,4)}, {ar(PL+8*slot,4)}, {acc}")
        p(f"v_mfma_f32_32x32x16_bf16 {acc}, {vr(ID1,4)}, {ar(PL+8*slot+4,4)}, {acc}")

    a8 = vr(ACC8, 16)
    for k in range(5):
        p(f"v_mfma_f32_32x32x16_bf16 {a8}, {vr(IDX,4)}, {ar(PL8+4*k,4)}, {'0' if k == 0 else a8}")
    for s in (15, 16):
        addp(s)
    for s in range(2):
        addp(s)
    for g in range(8 - opts.get("publag", 0), 8):
        for o in pair_publish_ops(p, g, f"ps{g}_1"):
            o() if callable(o) else p(o)
    for o in pair_publish_ops(p, 8, "ps8_0"):
        o() if callable(o) else p(o)
    flag_load(p, vFL, vF6)
    for s in range(2, 4):
        addp(s)
    for g in range(nslot // 2 + 1, 8):
        for o in group_ops(p, g, 2 * (g - 1), vFL):
            o() if callable(o) else p(o)
    flag_load(p, vFL, vF6)
    for s in range(min(4, nslot), nslot):
        addp(s)
    srd(p, R_C, S_OUT, 2048 * 1152)
    t = ST + 2
    for k in range(4):
        p(f"v_mov_b32 v{t+k}, v{ACC8+k}")
    for k in range(4):
        p(f"v_permlane16_swap_b32 v{ACC8+k}, v{t+k}")
    for k in range(4):
        p(f"v_add_f32 v{ACC8+k}, v{ACC8+k}, v{t+k}")
    p(f"v_cvt_pk_bf16_f32 v{ACC8}, v{ACC8}, v{ACC8+1}")
    p(f"v_cvt_pk_bf16_f32 v{ACC8+1}, v{ACC8+2}, v{ACC8+3}")
    p(f"v_and_b32 v{t}, 15, v1")
    p(f"v_mul_u32_u24 v{t}, 1152, v{t}")
    p(f"v_lshrrev_b32 v{t+1}, 5, v1")
    p(f"v_lshl_add_u32 v{t}, v{t+1}, 3, v{t}")
    p(f"s_lshl_b32 {sT0}, {sI}, 2")
    p(f"s_lshr_b32 {sT1}, {sMm}, 2")
    p(f"s_add_u32 {sT0}, {sT0}, {sT1}")
    p(f"s_lshl_b32 {sT0}, {sT0}, 1")
    p(f"s_lshr_b32 {sT1}, {sW}, 1")
    p(f"s_add_u32 {sT0}, {sT0}, {sT1}")
    p(f"s_mul_i32 {sT0}, {sT0}, {16*1152}")
    p(f"s_and_b32 {sT1}, {sMm}, 3")
    p(f"s_lshl_b32 {sT1}, {sT1}, 5")
    p(f"s_add_u32 {sT0}, {sT0}, {sT1}")
    p(f"s_and_b32 {sT1}, {sW}, 1")
    p(f"s_lshl_b32 {sT1}, {sT1}, 4")
    p(f"s_add_u32 {sT0}, {sT0}, {sT1}")
    p("s_mov_b32 exec_lo, 0xffff")
    p("s_mov_b32 exec_hi, 0xffff")
    p(f"buffer_store_dwordx2 {vr(ACC8,2)}, v{t}, {RC}, {sT0} offen offset:1024")
    p("s_mov_b64 exec, -1")
    p(f"s_xor_b32 {sT2}, {sMm}, 1")
    p(f"s_lshl_b32 {sT0}, 1, {sT2}")
    flag_check(p, vFL, vF6, 1, sT0)
    p(f"s_lshl_b32 {sT0}, {sT2}, 11")
    p(f"s_xor_b32 {sT0}, {sT0}, {sSC}")
    p(f"s_add_u32 {sT0}, {sT0}, {sPB}")
    for k in range(2):
        p(f"buffer_load_dwordx4 {ar(PL+8*14+4*k,4)}, {vLN}, {WS}, {sT0} offen offset:{k*1024} sc1")
    p(f"v_and_b32 v{t}, 31, v1")
    p(f"v_mul_u32_u24 v{t}, 1152, v{t}")
    p(f"v_lshrrev_b32 v{t+1}, 5, v1")
    p(f"v_lshl_add_u32 v{t}, v{t+1}, 4, v{t}")
    p(f"s_lshl_b32 {sT0}, {sI}, 2")
    p(f"s_add_u32 {sT0}, {sT0}, {sW}")
    p(f"s_mul_i32 {sT0}, {sT0}, 36864")
    p(f"s_lshl_b32 {sT1}, {sMm}, 6")
    p(f"s_add_u32 {sT0}, {sT0}, {sT1}")
    for s in list(range(nslot, 14)) + [14]:
        addp(s)
    a = ACC[1]
    for k in range(8):
        p(f"v_cvt_pk_bf16_f32 v{a+k}, v{a+2*k}, v{a+2*k+1}")
    p(f"buffer_store_dwordx4 {vr(a,4)}, v{t}, {RC}, {sT0} offen")
    p(f"buffer_store_dwordx4 {vr(a+4,4)}, v{t}, {RC}, {sT0} offen offset:32")


def p6(p, st, opts, prev_publish, left):
    HALF[0] = opts.get("x_half", 1)
    SCR[0] = opts.get("scr", 7)
    NT[0] = " nt" if opts.get("ntld") else ""
    NT[1] = " nt" if opts.get("ntst") else ""
    emit_some(p, left, 99)
    setup(p)
    p.wait_vm("out")
    p("s_barrier")
    prev_publish(p)
    st(p, "p5")
    emit_list(p, stage_dma(3), "st3")
    p(f"s_mul_i32 {sT0}, {sI}, {FS}")
    p(f"s_add_u32 {sT0}, {sT0}, {F5}")
    p(f"v_lshl_add_u32 v{GT}, v1, 3, {sT0}")
    L = p.label("go6")
    p(f"s_cmp_lg_u32 {sW}, 0")
    p(f"s_cbranch_scc1 {L}")
    s = p.side_begin()
    poll(p, f"v{GT}", f"v{GT+1}", 16)
    p.side_end(s)
    p(f"{L}:")
    p("s_barrier")
    st(p, "f5seen")
    nslot = main_loop(p, st, opts, x_loads(p))
    st(p, "mlp")
    tail(p, st, nslot, opts)
```

```python
from common import *


def weight_prefetch(p, opts, which, V=243, R=R_C):
    RC = sr(R, 4)
    if not which:
        return
    a, t, u = f"v{V+5}", f"v{V+6}", f"v{V+4}"
    p(f"v_lshlrev_b32 {a}, 7, v0")
    p("v_cmp_gt_u32 vcc, 162, v0")
    p(f"v_mov_b32 {t}, {hx(OOB)}")
    p(f"v_cndmask_b32 {a}, {t}, {a}, vcc")
    p(f"s_mul_i32 s0, {sL}, 20736")
    for ch in which:
        ptr = {"o": S_WO, "1": S_W1, "2": S_W2, "3": S_W3, "4": S_W4}[ch]
        srd(p, R, ptr, 576 * 9216 if ch in "34" else 576 * 1152)
        if ch == "3":
            p(f"v_mul_u32_u24 {u}, 57, v0")
            p(f"v_lshrrev_b32 {u}, 9, {u}")
            p(f"v_mul_u32_u24 {u}, {9216-1152}, {u}")
            p(f"v_add_u32 {u}, {u}, {a}")
            p(f"s_mul_i32 s1, {sL}, {18*9216}")
            p(f"s_mul_i32 s69, {sX}, 1152")
            p("s_add_u32 s1, s1, s69")
            p(f"buffer_load_dword {t}, {u}, {RC}, s1 offen")
        elif ch == "4":
            p(f"s_mul_i32 s1, {sX}, {576*1152}")
            p("s_add_u32 s1, s1, s0")
            p(f"buffer_load_dword v{V+3}, {a}, {RC}, s1 offen")
        else:
            p(f"buffer_load_dword v{V + 'o12'.index(ch)}, {a}, {RC}, s0 offen")


def packed_prefetch(p, mat, V):
    L = p.label("ppf")
    p(f"s_cmp_eq_u32 {sW}, 0")
    p(f"s_cbranch_scc1 {L}")
    p(f"v_subrev_u32 v{V}, 64, v0")
    p(f"v_min_u32 v{V}, 179, v{V}")
    p(f"v_lshlrev_b32 v{V}, 7, v{V}")
    p(f"s_mul_i32 s69, {sL}, {180*128}")
    p(f"s_add_u32 s69, s69, {hx(WP + mat*16*45*1024)}")
    n = p.vm.n
    p(f"buffer_load_dword v{V+1}, v{V}, {WS}, s69 offen sc1")
    p.vm.n = n
    p.vm.pend.pop(("v", V + 1))
    p(f"{L}:")
```

```python
from common import *

sQ, sMAT, sG, sKH, sT0, sT1, sB = "s48", "s49", "s50", "s51", "s53", "s54", "s52"
T = 96
FR = 152


def prep_issue(p):
    p(f"s_lshr_b32 {sMAT}, {sQ}, 3")
    p(f"s_bfe_u32 {sG}, {sQ}, 0x20001")
    p(f"s_and_b32 {sKH}, {sQ}, 1")
    p(f"s_cmp_eq_u32 {sMAT}, 1")
    p(f"s_cselect_b32 s{R_A}, s{S_W1}, s{S_W2}")
    p(f"s_cselect_b32 s{R_A+1}, s{S_W1+1}, s{S_W2+1}")
    p(f"s_cmp_eq_u32 {sMAT}, 0")
    p(f"s_cselect_b32 s{R_A}, s{S_WO}, s{R_A}")
    p(f"s_cselect_b32 s{R_A+1}, s{S_WO+1}, s{R_A+1}")
    p(f"s_cselect_b32 s55, -1, 0")
    p(f"s_mov_b32 s{R_A+2}, {576*1152}")
    p(f"s_mov_b32 s{R_A+3}, 0x20000")
    p(f"s_mul_i32 {sB}, {sG}, 288")
    RO, CO = T + 8, T + 17
    for pi in range(9):
        p(f"v_add_u32 v{T}, {64*pi}, v1")
        p(f"v_mul_u32_u24 v{T+1}, 911, v{T}")
        p(f"v_lshrrev_b32 v{T+1}, 16, v{T+1}")
        p(f"v_mul_u32_u24 v{T+2}, 72, v{T+1}")
        p(f"v_sub_u32 v{T}, v{T}, v{T+2}")
        p(f"v_cmp_gt_u32 vcc, 64, v{T}")
        p(f"v_bfe_u32 v{T+2}, v{T}, 2, 2")
        p(f"v_bfe_u32 v{T+3}, v{T}, 1, 2")
        p(f"v_cndmask_b32 v{T+2}, v{T+3}, v{T+2}, vcc")
        p(f"v_lshl_add_u32 v{RO+pi}, v{T+1}, 2, v{T+2}")
        p(f"v_and_b32 v{T+2}, 3, v{T}")
        p(f"v_and_b32 v{T+3}, 1, v{T}")
        p(f"v_cndmask_b32 v{T+2}, v{T+3}, v{T+2}, vcc")
        p(f"v_lshrrev_b32 v{T}, 4, v{T}")
        p(f"v_lshlrev_b32 v{T}, 6, v{T}")
        p(f"v_lshl_add_u32 v{CO+pi}, v{T+2}, 4, v{T}")
    lp, out = p.label("prep"), p.label("prepd")
    p(f"s_mov_b32 {sT0}, {sW}")
    p(f"{lp}:")
    p(f"s_mul_i32 {sT1}, {sKH}, 9")
    p(f"s_add_u32 {sT1}, {sT1}, {sT0}")
    p(f"s_lshl_b32 {sT1}, {sT1}, 5")
    p(f"s_mul_i32 s56, {sT0}, 9216")
    for pi in range(9):
        p(f"v_add_u32 v{T}, {sT1}, v{RO+pi}")
        p(f"v_lshrrev_b32 v{T+1}, 4, v{T}")
        p(f"v_lshlrev_b32 v{T+1}, 1, v{T+1}")
        p(f"v_lshrrev_b32 v{T+2}, 1, v{T}")
        p(f"v_lshlrev_b32 v{T+2}, 4, v{T+2}")
        p(f"v_subrev_u32 v{T+2}, {4096+512-16}, v{T+2}")
        p(f"v_cmp_gt_u32 vcc, 512, v{T}")
        p(f"s_add_u32 m0, s56, {pi*1024}")
        p(f"v_cndmask_b32 v{T+1}, v{T+2}, v{T+1}, vcc")
        p(f"v_and_b32 v{T+1}, s55, v{T+1}")
        p(f"v_add_u32 v{T}, v{T}, v{T+1}")
        p(f"v_mul_u32_u24 v{T}, 1152, v{T}")
        p(f"v_add_u32 v{T}, v{T}, v{CO+pi}")
        p(f"buffer_load_dwordx4 v{T}, {RA}, {sB} offen lds")
    p(f"s_add_u32 {sT0}, {sT0}, 4")
    p(f"s_cmp_lt_u32 {sT0}, 9")
    p(f"s_cbranch_scc1 {lp}")


def prep_finish(p, st):
    p("s_waitcnt vmcnt(0)")
    p("s_barrier")
    st(p, "prepld")
    a, h, ln = f"v{T}", f"v{T+1}", f"v{T+4}"
    p(f"v_lshrrev_b32 {a}, 5, v1")
    p(f"v_mul_u32_u24 {a}, 2304, {a}")
    p(f"v_and_b32 v{T+2}, 1, v1")
    p(f"v_lshl_add_u32 {a}, v{T+2}, 4, {a}")
    p(f"v_bfe_u32 v{T+2}, v1, 1, 1")
    p(f"v_lshl_add_u32 {a}, v{T+2}, 3, {a}")
    p(f"v_bfe_u32 v{T+2}, v1, 2, 2")
    p(f"v_lshl_add_u32 {h}, v{T+2}, 5, {a}")
    p(f"v_lshl_add_u32 {a}, v{T+2}, 6, {a}")
    p(f"v_bfe_u32 v{T+2}, v1, 4, 1")
    p(f"v_lshl_add_u32 {a}, v{T+2}, 5, {a}")
    p(f"s_lshl_b32 {sT0}, {sW}, 8")
    p(f"v_add_u32 {a}, {sT0}, {a}")
    p(f"v_add_u32 v{T+2}, {9*4608}, {a}")
    p(f"v_lshlrev_b32 {ln}, 4, v1")
    for s in range(18):
        base, off = (a, s * 4608) if s < 9 else (f"v{T+2}", (s - 9) * 4608)
        for q in range(2):
            p(f"ds_read_b64_tr_b16 {vr(FR+4*s+2*q,2)}, {base} offset:{off+q*1152}")
    for j in range(5):
        p(f"s_mul_i32 {sT0}, {sW}, 5")
        p(f"s_add_u32 {sT0}, {sT0}, {j}")
        p(f"s_min_u32 {sT0}, {sT0}, 17")
        p(f"s_mul_i32 {sT0}, {sT0}, 4608")
        p(f"s_add_u32 {sT0}, {sT0}, 1024")
        p(f"v_add_u32 v{T+3}, {sT0}, {h}")
        for q in range(2):
            p(f"ds_read_b64_tr_b16 {vr(FR+72+4*j+2*q,2)}, v{T+3} offset:{q*1152}")
    p(f"s_lshl_b32 {sB}, {sMAT}, 2")
    p(f"s_add_u32 {sB}, {sB}, {sG}")
    p(f"s_mul_i32 {sB}, {sB}, {4*45*1024}")
    p(f"s_add_u32 {sB}, {sB}, {hx(WP)}")
    p(f"s_mul_i32 {sT0}, {sW}, 45")
    p(f"s_mul_i32 {sT1}, {sKH}, 18")
    p(f"s_add_u32 {sT0}, {sT0}, {sT1}")
    p(f"s_add_u32 {sT0}, {sT0}, 9")
    p(f"s_lshl_b32 {sT0}, {sT0}, 10")
    p(f"s_add_u32 {sT0}, {sT0}, {sB}")
    for s in range(18):
        if s and s % 4 == 0:
            p(f"s_add_u32 {sT0}, {sT0}, 4096")
        p(f"buffer_store_dwordx4 {vr(FR+4*s,4)}, {ln}, {WS}, {sT0} offen offset:{(s%4)*1024} sc1")
    for j in range(5):
        p(f"s_mul_i32 {sT0}, {sW}, 5")
        p(f"s_add_u32 {sT0}, {sT0}, {j}")
        p(f"s_min_u32 {sT0}, {sT0}, 17")
        p(f"s_cmp_ge_u32 {sT0}, 9")
        p(f"s_cselect_b32 {sT1}, 36, 0")
        p(f"s_add_u32 {sT0}, {sT0}, {sT1}")
        p(f"s_mul_i32 {sT1}, {sKH}, 90")
        p(f"s_add_u32 {sT0}, {sT0}, {sT1}")
        p(f"s_lshl_b32 {sT0}, {sT0}, 10")
        p(f"s_add_u32 {sT0}, {sT0}, {sB}")
        p(f"buffer_store_dwordx4 {vr(FR+72+4*j,4)}, {ln}, {WS}, {sT0} offen sc1")
    p("s_waitcnt vmcnt(0)")
    p("s_barrier")
```

```python
from asmgen import TRANS


def cost1(line):
    op = line.split()[0]
    if op.startswith(TRANS):
        return 8
    if op.startswith("buffer_"):
        return 20 if line.rstrip().endswith("lds") else 16
    if op.startswith("ds_"):
        return 6
    return 4


def cost(o):
    if callable(o):
        return getattr(o, "cost", 16)
    if isinstance(o, tuple):
        o = o[0]
    return sum(cost1(l) for l in o.split("\n") if l.strip())


class Filler:
    def __init__(self, p):
        self.p = p
        self.streams = []
        self.credit = 0.0

    def add(self, start, end, ops):
        self.streams.append([start, end, list(ops)])

    def emit(self, o):
        if callable(o):
            o()
        elif isinstance(o, tuple):
            self.p(o[0], tag=o[1])
        else:
            self.p(o)

    def gap(self, j, floor=0.0):
        live = [s for s in self.streams if s[2]]
        act = sorted((s for s in live if s[0] <= j), key=lambda s: s[1])
        rate = floor
        for s in act:
            d = max(s[1], j)
            tot = sum(sum(map(cost, t[2])) for t in live if t[1] <= d)
            rate = max(rate, tot / (d - j + 1))
        self.credit = min(self.credit, 0.0) + rate
        while True:
            act = sorted((s for s in self.streams if s[2] and s[0] <= j), key=lambda s: s[1])
            if not act:
                self.credit = 0.0
                return
            s = act[0]
            due = s[1] <= j
            c = cost(s[2][0])
            if not due and self.credit < c / 2:
                return
            self.emit(s[2].pop(0))
            self.credit -= c

    def done(self):
        return all(not s[2] for s in self.streams)
```

```python
from common import *
from sched import Filler

sT, sG, sT0, sT1, sWP, sWS, sC = "s65", "s66", "s53", "s54", "s67", "s52", "s55"
sD0 = "s68"
vLN, vBQ, vPL, vSRC, vBB = "v2", "v3", "v4", "v5", "v6"
TMP = 8
ACC, ACCH, CS, CSH = 32, 48, 64, 80
BF, NBF = 96, 6
XR = 120
HK = 130
vMU, vR1, vR12 = "v139", "v140", "v141"
CSH2 = 142
PH = 144

L_B = 110592
L_ST = L_B + 36864
L_HP = L_ST + 4096


def wreg(ph, f):
    if ph == 4:
        return ar(4 * f, 4)
    return ar(180 + 4 * f, 4) if f < 19 else vr(152 + 4 * (f - 19), 4)


def sg_ids(p):
    p(f"s_lshr_b32 {sT}, {sL}, 2")
    p(f"s_lshl_b32 {sT0}, {sX}, 3")
    p(f"s_add_u32 {sT}, {sT}, {sT0}")
    p(f"s_and_b32 {sG}, {sL}, 3")
    p(f"s_lshl_b32 {sWP}, {sG}, 2")
    p(f"s_add_u32 {sWP}, {sWP}, {sW}")
    p(f"s_mul_i32 {sWP}, {sWP}, {45*1024}")
    p(f"s_add_u32 {sWP}, {sWP}, {hx(WP)}")


def w_loads(ph):
    o = []
    for f in range(45):
        x = f"buffer_load_dwordx4 {wreg(ph, f)}, {vLN}, {WS}, {sD0} offen offset:{(f%4)*1024} sc1"
        if f < 9:
            x = "s_mov_b32 exec_lo, 0xffff\ns_mov_b32 exec_hi, 0xffff\n" + x + "\ns_mov_b64 exec, -1"
        if f % 4 == 0:
            x = f"s_add_u32 {sD0}, {sWP}, {(ph-3)*16*45*1024 + f*1024}\n" + x
        o.append(x)
    return o


def emit_some(p, l, n):
    for _ in range(min(n, len(l))):
        x = l.pop(0)
        p(*x) if isinstance(x, tuple) else p(x)


def half_exchange(p, src, dst):
    p(f"s_lshl_b32 {sT0}, {sW}, 11")
    p(f"s_add_u32 {sT0}, {sT0}, {L_HP}")
    p(f"v_lshlrev_b32 v{TMP}, 3, v1")
    p(f"v_add_u32 v{TMP+1}, {sT0}, v{TMP}")
    for j in range(4):
        p(f"ds_write_b64 v{TMP+1}, {vr(src+2*j,2)} offset:{j*512}", tag="hx")


def half_collect_reads(p):
    p(f"s_lshl_b32 {sT0}, {sW}, 9")
    p(f"s_add_u32 {sT0}, {sT0}, {L_HP}")
    p(f"v_lshlrev_b32 v{TMP}, 3, v1")
    p(f"v_add_u32 v{TMP}, {sT0}, v{TMP}")
    for k in range(4):
        p(f"ds_read_b64 {vr(PH+2*k,2)}, v{TMP} offset:{k*2048}")


def half_sum(p, d0, d1):
    p(f"v_add_f32 v{PH}, v{PH}, v{PH+2}")
    p(f"v_add_f32 v{PH+1}, v{PH+1}, v{PH+3}")
    p(f"v_add_f32 v{PH+4}, v{PH+4}, v{PH+6}")
    p(f"v_add_f32 v{PH+5}, v{PH+5}, v{PH+7}")
    p(f"v_add_f32 {d0}, v{PH}, v{PH+4}")
    p(f"v_add_f32 {d1}, v{PH+1}, v{PH+5}")


def colsums(p, mid, at):
    for k in range(4):
        p(f"v_mov_b32 v{BF+k}, {sONE}")
    for j in range(9):
        p(f"v_mfma_f32_32x32x16_bf16 {vr(CSH,16)}, {wreg(4, j)}, {vr(BF,4)}, {'0' if j == 0 else vr(CSH,16)}")
    for s in range(36):
        p(f"v_mfma_f32_32x32x16_bf16 {vr(CS,16)}, {wreg(4, 9+s)}, {vr(BF,4)}, {'0' if s == 0 else vr(CS,16)}")
        if s == 4:
            half_exchange(p, CSH, None)
        if s == at:
            p.wait_lg()
            mid()
            half_collect_reads(p)
    half_sum(p, f"v{CSH2}", f"v{CSH2+1}")


def poll_addr(p, ph):
    if ph == 3:
        p(f"s_lshr_b32 {sT0}, {sT}, 1")
        p(f"s_mul_i32 {sT0}, {sT0}, {FS}")
        p(f"s_add_u32 {sT0}, {sT0}, {F2}")
        p(f"v_lshl_add_u32 {vPL}, v1, 4, {sT0}")
        return 8
    if ph == 4:
        p(f"s_mul_i32 {sT0}, {sT}, {FS}")
        p(f"s_add_u32 {sT0}, {sT0}, {F3}")
        p(f"v_lshl_add_u32 {vPL}, v1, 5, {sT0}")
        return 4
    p(f"s_sub_u32 {sT0}, {sT}, 1")
    p(f"s_max_i32 {sT0}, {sT0}, 0")
    p(f"s_add_u32 {sT1}, {sT}, 1")
    p(f"s_min_u32 {sT1}, {sT1}, 63")
    ent = [(sT, 0), (sT, 1), (sT, 2), (sT, 3), (sT0, 0), (sT0, 2), (sT1, 1), (sT1, 3)]
    p(f"v_mov_b32 {vPL}, 0")
    for e, (tt, g) in enumerate(ent):
        p(f"s_mul_i32 {sC}, {tt}, {FS}")
        p(f"s_add_u32 {sC}, {sC}, {F4 + 32*g}")
        p(f"v_writelane_b32 {vPL}, {sC}, {e}")
    return 8


def b_src(p, ph):
    if ph != 5:
        p(f"s_mul_i32 {sWS}, {sT}, 36864")
        p(f"s_mul_i32 {sT0}, {sW}, 9216")
        p(f"s_add_u32 {sWS}, {sWS}, {sT0}")
        p(f"s_add_u32 {sWS}, {sWS}, {hx(OB if ph == 3 else HB)}")
        p(f"v_mov_b32 {vSRC}, {vLN}")
        return
    p(f"s_lshr_b32 {sT0}, {sW}, 1")
    p(f"s_add_u32 {sT0}, {sT0}, 1")
    p(f"s_sub_u32 {sT1}, 0, {sT0}")
    p(f"s_bitcmp1_b32 {sW}, 0")
    p(f"s_cselect_b32 {sT0}, {sT0}, {sT1}")
    p(f"s_lshl_b32 {sT1}, {sT}, 5")
    p(f"s_add_u32 {sT0}, {sT0}, {sT1}")
    p(f"v_and_b32 v{TMP}, 31, v1")
    p(f"v_add_u32 v{TMP}, {sT0}, v{TMP}")
    p(f"v_lshrrev_b32 v{TMP+1}, 5, v{TMP}")
    p(f"v_mul_u32_u24 v{TMP+1}, 36864, v{TMP+1}")
    p(f"v_and_b32 v{TMP+2}, 31, v{TMP}")
    p(f"v_lshl_add_u32 v{TMP+1}, v{TMP+2}, 4, v{TMP+1}")
    p(f"v_lshrrev_b32 v{TMP+2}, 5, v1")
    p(f"v_lshl_add_u32 v{TMP+1}, v{TMP+2}, 9, v{TMP+1}")
    p(f"v_mov_b32 v{TMP+2}, {hx(OOB)}")
    p(f"v_cmp_gt_u32 vcc, 2048, v{TMP}")
    p(f"v_cndmask_b32 {vSRC}, v{TMP+2}, v{TMP+1}, vcc")
    p(f"s_mul_i32 {sWS}, {sW}, 9216")
    p(f"s_add_u32 {sWS}, {sWS}, {hx(H1)}")


def b_dma(p, ph):
    p(f"s_mul_i32 {sT0}, {sW}, 9216")
    for j in range(9):
        if j % 4 == 0:
            p(f"s_add_u32 m0, {sT0}, {L_B + j*1024}")
            if j:
                p(f"s_add_u32 {sWS}, {sWS}, 4096")
            else:
                p("s_nop 0")
        p(f"buffer_load_dwordx4 {vSRC}, {WS}, {sWS} offen offset:{(j%4)*1024} sc1 lds", tag="b")
    if ph == 4:
        p(f"s_lshl_b32 {sT0}, {sW}, 10")
        p(f"s_add_u32 m0, {sT0}, {L_ST}")
        p(f"s_lshl_b32 {sT1}, {sT}, 12")
        p(f"s_add_u32 {sT0}, {sT0}, {sT1}")
        p(f"s_add_u32 {sT0}, {sT0}, {hx(ST3)}")
        p(f"buffer_load_dwordx4 {vLN}, {WS}, {sT0} offen sc1 lds", tag="b")


def stats_consume(lds):
    a = f"v{TMP+2}"
    S, Q, t = f"v{TMP+4}", f"v{TMP+5}", f"v{TMP+3}"
    R = CSH
    o = [f"v_and_b32 {a}, 31, v1", f"v_lshlrev_b32 {a}, 3, {a}", f"v_lshrrev_b32 {t}, 5, v1",
         f"v_lshl_add_u32 {a}, {t}, 11, {a}", f"v_add_u32 {a}, {lds}, {a}"]
    o += [f"ds_read_b64 {vr(R+2*k,2)}, {a} offset:{k*256}" for k in range(8)]
    o += [None] * 3
    for k in range(4):
        o += [f"v_add_f32 v{R+4*k}, v{R+4*k}, v{R+4*k+2}", f"v_add_f32 v{R+4*k+1}, v{R+4*k+1}, v{R+4*k+3}"]
    for k in range(2):
        o += [f"v_add_f32 v{R+8*k}, v{R+8*k}, v{R+8*k+4}", f"v_add_f32 v{R+8*k+1}, v{R+8*k+1}, v{R+8*k+5}"]
    o += [f"v_add_f32 {S}, v{R}, v{R+8}", f"v_add_f32 {Q}, v{R+1}, v{R+9}"]
    o += [f"v_mov_b32 v{R}, {S}", f"v_mov_b32 v{R+1}, {Q}", None,
          f"v_permlane32_swap_b32 {S}, v{R}", f"v_permlane32_swap_b32 {Q}, v{R+1}",
          f"v_add_f32 {S}, {S}, v{R}", f"v_add_f32 {Q}, {Q}, v{R+1}",
          f"v_mul_f32 {vMU}, {hx(f2u(-1.0/576))}, {S}", f"v_mul_f32 {Q}, {hx(f2u(1.0/576))}, {Q}",
          f"v_fma_f32 {Q}, -{vMU}, {vMU}, {Q}", f"v_max_f32 {Q}, 0, {Q}",
          f"v_add_f32 {t}, {hx(f2u(EPS))}, {Q}", f"v_rsq_f32 {vR1}, {t}", None,
          f"v_mul_f32 {Q}, {Q}, {vR1}", f"v_mul_f32 {Q}, {Q}, {vR1}",
          f"v_add_f32 {Q}, {hx(f2u(EPS))}, {Q}", f"v_rsq_f32 {Q}, {Q}", None,
          f"v_mul_f32 {vR12}, {vR1}, {Q}"]
    return o


def residual_ops(ph):
    o = []
    if ph == 4:
        return o
    src = XR if ph == 3 else HK
    for k in range(9):
        o += [f"v_lshlrev_b32 v{CS+2*k}, 16, v{src+k}", f"v_and_b32 v{CS+2*k+1}, 0xffff0000, v{src+k}"]
    if ph == 5:
        o += [f"v_mul_f32 v{TMP+6}, {vMU}, {vR1}"]
        o += [f"v_fma_f32 v{CS+k}, v{CS+k}, {vR1}, v{TMP+6}" for k in range(18)]
    return o


def gemm(p, ph, nxt, opts, st):
    def rd(m):
        d = BF + 4 * (m % NBF)
        if m < 9:
            p(f"ds_read_b128 {vr(d,4)}, {vBQ} offset:{m*1024}")
        elif m < 45:
            p(f"ds_read_b128 {vr(d,4)}, {vBB} offset:{(m-9)*1024}")

    PD = NBF - 1
    for m in range(PD):
        rd(m)
    F = Filler(p)
    n = opts.get("ng", 22)
    F.add(0, 43, [nxt.pop(0) for _ in range(min(n, len(nxt)))])
    F.add(0, 30, residual_ops(ph))
    if ph == 4:
        sc = stats_consume(L_ST)
        k = sc.index(None)
        F.add(8, 14, sc[:k])
        F.add(22, 43, [o for o in sc[k:] if o])
    issued = PD
    for m in range(45):
        d = BF + 4 * (m % NBF)
        if m % 2 == 0 and m + 1 < issued:
            p.wait_regs(vr(BF + 4 * ((m + 1) % NBF), 4))
        acc = vr(ACCH if m < 9 else ACC, 16)
        p(f"v_mfma_f32_32x32x16_bf16 {acc}, {wreg(ph, m)}, {vr(d,4)}, {'0' if m in (0, 9) else acc}")
        if m == 5:
            p("s_barrier")
            st(p, f"b{ph}")
        while issued <= min(m + PD, 44) and (issued < 9 or m >= 5):
            rd(issued)
            issued += 1
        if m == 14:
            half_exchange(p, ACCH, None)
        if m == 19:
            p.wait_lg("hx")
            p("s_barrier")
            half_collect_reads(p)
        if m == 24:
            half_sum(p, f"v{ACCH}", f"v{ACCH+1}")
        F.gap(m)
    assert F.done()


GK = 2.0 * 0.7978845608028654 * 1.4426950408889634


def gelu_ops(x, t, ca, cb):
    return [f"v_mul_f32 {t}, {x}, {x}", f"v_fma_f32 {t}, {t}, {cb}, {ca}", f"v_mul_f32 {t}, {t}, {x}",
            f"v_exp_f32 {t}, {t}", f"v_add_f32 {t}, 1.0, {t}", f"v_rcp_f32 {t}, {t}", f"v_mul_f32 {x}, {x}, {t}"]


def interleave(lists):
    out = []
    for k in range(max(len(l) for l in lists)):
        for l in lists:
            if k < len(l):
                out.append(l[k])
    return out


def x_residual_loads(p):
    srd(p, R_B, S_X, 2048 * 1152)
    p(f"v_and_b32 v{TMP}, 31, v1")
    p(f"v_mul_u32_u24 v{TMP}, 1152, v{TMP}")
    p(f"v_lshrrev_b32 v{TMP+1}, 5, v1")
    p(f"v_lshl_add_u32 v{TMP}, v{TMP+1}, 4, v{TMP}")
    p(f"s_mul_i32 {sT0}, {sT}, 36864")
    p(f"s_mul_i32 {sT1}, {sG}, 288")
    p(f"s_add_u32 {sT0}, {sT0}, {sT1}")
    p(f"s_lshl_b32 {sT1}, {sW}, 6")
    p(f"s_add_u32 {sT1}, {sT1}, {sT0}")
    p(f"buffer_load_dwordx4 {vr(XR,4)}, v{TMP}, {RB}, {sT1} offen")
    p(f"buffer_load_dwordx4 {vr(XR+4,4)}, v{TMP}, {RB}, {sT1} offen offset:32")
    p(f"s_lshl_b32 {sT1}, {sW}, 2")
    p(f"s_add_u32 {sT1}, {sT1}, {sT0}")
    p(f"buffer_load_dword v{XR+8}, v{TMP}, {RB}, {sT1} offen offset:256")


def epilogue(p, ph, nxt, opts):
    vals = [f"v{ACC+k}" for k in range(16)] + [f"v{ACCH}", f"v{ACCH+1}"]
    dst = HK if ph == 3 else XR
    buf = {3: HB, 4: H1, 5: X1}[ph]
    p(f"s_mul_i32 {sT0}, {sT}, 36")
    p(f"s_mul_i32 {sT1}, {sG}, 9")
    p(f"s_add_u32 {sT0}, {sT0}, {sT1}")
    p(f"s_lshl_b32 {sT0}, {sT0}, 10")
    p(f"s_add_u32 {sT0}, {sT0}, {hx(buf)}")
    p(f"s_lshl_b32 {sT1}, {sW}, 11")
    p(f"s_lshl_b32 {sC}, {sW}, 2")
    p(f"s_add_u32 {sT1}, {sT1}, {sT0}")
    p(f"s_add_u32 {sC}, {sC}, {sT0}")
    p(f"s_add_u32 {sC}, {sC}, 8192")
    groups = [(16, 18), (0, 8), (8, 16)]
    stores = [f"buffer_store_dword v{dst+8}, {vLN}, {WS}, {sC} offen sc1",
              f"buffer_store_dwordx4 {vr(dst,4)}, {vLN}, {WS}, {sT1} offen sc1",
              f"buffer_store_dwordx4 {vr(dst+4,4)}, {vLN}, {WS}, {sT1} offen offset:1024 sc1"]
    if ph == 4:
        cs = [f"v{CS+k}" for k in range(16)] + [f"v{CSH2}", f"v{CSH2+1}"]
        p(f"v_mov_b32 v{TMP}, {hx(f2u(-GK))}")
        p(f"v_mov_b32 v{TMP+1}, {hx(f2u(-GK*0.044715))}")
    for (k0, k1), st_ in zip(groups, stores):
        if ph == 4:
            for q in range(k0, k1, 4):
                ops = [[f"v_fma_f32 {vals[k]}, {cs[k]}, {vMU}, {vals[k]}", f"v_mul_f32 {vals[k]}, {vals[k]}, {vR12}"]
                       + gelu_ops(vals[k], f"v{BF+k}", f"v{TMP}", f"v{TMP+1}") for k in range(q, min(q + 4, k1))]
                for o in interleave(ops):
                    p(o)
                emit_some(p, nxt, opts.get("ne", 2))
        else:
            for k in range(k0, k1):
                p(f"v_add_f32 {vals[k]}, {vals[k]}, v{CS+k}")
        for k in range(k0 // 2, k1 // 2):
            p(f"v_cvt_pk_bf16_f32 v{dst+k}, {vals[2*k]}, {vals[2*k+1]}")
        p(st_, tag="out")
    if ph in (3, 5):
        S, Q, S2, Q2 = f"v{TMP+2}", f"v{TMP+3}", f"v{TMP+4}", f"v{TMP+5}"
        p(f"v_add_f32 {S}, {vals[0]}, {vals[1]}")
        p(f"v_mul_f32 {Q}, {vals[0]}, {vals[0]}")
        p(f"v_fmac_f32 {Q}, {vals[1]}, {vals[1]}")
        for k in range(2, 18):
            p(f"v_add_f32 {S}, {S}, {vals[k]}")
            p(f"v_fmac_f32 {Q}, {vals[k]}, {vals[k]}")
        p(f"v_mov_b32 {S2}, {S}")
        p(f"v_mov_b32 {Q2}, {Q}")
        p(f"v_lshlrev_b32 v{TMP}, 3, v1")
        p(f"s_lshl_b32 {sT0}, {sT}, 4")
        p(f"v_permlane32_swap_b32 {S}, {S2}")
        p(f"v_permlane32_swap_b32 {Q}, {Q2}")
        p(f"s_lshl_b32 {sT1}, {sG}, 2")
        p(f"s_add_u32 {sT0}, {sT0}, {sT1}")
        p(f"s_add_u32 {sT0}, {sT0}, {sW}")
        p(f"s_lshl_b32 {sT0}, {sT0}, 8")
        p(f"s_add_u32 {sT0}, {sT0}, {hx(ST3 if ph == 3 else ST5)}")
        p(f"v_add_f32 {S}, {S}, {S2}")
        p(f"v_add_f32 {Q}, {Q}, {Q2}")
        p("s_mov_b32 exec_hi, 0")
        p(f"buffer_store_dwordx2 {vr(TMP+2,2)}, v{TMP}, {WS}, {sT0} offen sc1", tag="out")
        p("s_mov_b64 exec, -1")


def publish(p, ph):
    L = p.label("pub")
    p(f"s_cmp_lg_u32 {sW}, 0")
    p(f"s_cbranch_scc1 {L}")
    s = p.side_begin()
    if ph == 5:
        p(f"s_lshr_b32 {sT0}, {sT}, 2")
        p(f"s_mul_i32 {sT0}, {sT0}, {FS}")
        p(f"s_and_b32 {sT1}, {sL}, 15")
        p(f"s_lshl_b32 {sT1}, {sT1}, 3")
    else:
        p(f"s_mul_i32 {sT0}, {sT}, {FS}")
        p(f"s_lshl_b32 {sT1}, {sG}, 5")
    p(f"s_add_u32 {sT0}, {sT0}, {sT1}")
    p(f"s_add_u32 {sT0}, {sT0}, {dict([(3, F3), (4, F4), (5, F5)])[ph]}")
    set_flag(p, "v62", "v63", sT0)
    p.side_end(s)
    p(f"{L}:")


def emit_if(p, cond, ops):
    if not ops:
        return
    L = p.label("only")
    p(f"s_cmp_{cond}_u32 {sW}, 0")
    p(f"s_cbranch_scc0 {L}")
    s = p.loose_begin()
    emit_some(p, list(ops), 99)
    p.loose_end(s)
    p(f"{L}:")


def sg_phase(p, st, ph, opts, prev_publish, left, nxt, pre_gemm=None):
    asym = opts.get("asym", 1) and ph == 5
    if asym:
        emit_if(p, "eq", left)
    else:
        emit_some(p, left, 99)
    if ph == 3:
        x_residual_loads(p)
        p(f"s_mul_i32 {sT0}, {sW}, 9216")
        p(f"s_add_u32 {sT0}, {sT0}, {L_B}")
        p(f"v_add_u32 {vBQ}, {sT0}, {vLN}")
        p(f"v_add_u32 {vBB}, {L_B}, {vLN}")
    n = poll_addr(p, ph)
    b_src(p, ph)

    def mid():
        p.wait_vm("out")
        p("s_barrier")
        prev_publish(p)
        st(p, f"p{ph-1}")
        if asym:
            emit_if(p, "lg", left)
    if ph == 4:
        colsums(p, mid, opts.get("csat", 16))
    else:
        mid()
    L = p.label("go")
    p(f"s_cmp_lg_u32 {sW}, 0")
    p(f"s_cbranch_scc1 {L}")
    s = p.side_begin()
    poll(p, vPL, f"v{TMP}", n)
    p.side_end(s)
    p(f"{L}:")
    p("s_barrier")
    st(p, f"f{ph}")
    b_dma(p, ph)
    emit_some(p, nxt, opts.get("nb", 8))
    p.wait_vm("b")
    if pre_gemm:
        pre_gemm(p)
    gemm(p, ph, nxt, opts, st)
    st(p, f"g{ph}")
    epilogue(p, ph, nxt, opts)
    st(p, f"e{ph}")
```

```python
import sys, os
sys.path.insert(0, os.path.dirname(os.path.abspath(__file__)))
from common import *
from pf import weight_prefetch, packed_prefetch
import p1

HEADER = open(os.path.join(os.path.dirname(os.path.abspath(__file__)), "header.txt")).read()


def late_p1(p, opts):
    p("v_lshlrev_b32 v126, 2, v1")
    p(f"s_cmp_eq_u32 {sW}, 0")
    p(f"s_cselect_b32 s69, 0, {hx(OOB)}")
    p("s_mov_b32 exec_hi, 0")
    p(f"buffer_load_dword v127, v126, {RC}, s69 offen sc1")
    p("s_mov_b64 exec, -1")
    weight_prefetch(p, opts, opts.get("pf1", ""), V=144, R=R_B)


def check_cleared(p):
    ok = p.label("clr")
    p("v_cmp_gt_u32 vcc, 1, v127")
    p("s_cmp_eq_u32 vcc_lo, 0")
    p(f"s_cbranch_scc1 {ok}")
    s = p.side_begin()
    poll(p, "v126", "v127", 32, srd_=RC)
    p.side_end(s)
    p(f"{ok}:")


def code_prefetch(p, opts):
    if not opts.get("pf", 1):
        return
    pc = p.label("pc")
    p("s_getpc_b64 s[56:57]")
    p(f"{pc}:")
    p(f"s_sub_u32 s56, s56, {pc}-{KNAME}")
    p("s_subb_u32 s57, s57, 0")
    p("v_and_b32 v126, 31, v0")
    p(f"v_lshl_add_u32 v126, v126, 5, {sL}")
    p("v_lshlrev_b32 v126, 7, v126")
    p(f"v_min_u32 v126, L_end-{KNAME}, v126")
    p("global_load_dword v127, v126, s[56:57]")


def gen(stop=99, stamps=False, opts=None):
    opts = opts or {}
    p = Prog()
    SLEEP[0] = opts.get('sleep', 0)
    st = Stamps(stamps, opts.get('only'))
    END = "L_end"
    p(f"{KNAME}:")
    p("s_cmp_ge_u32 s2, 256")
    p(f"s_cbranch_scc1 {END}")
    p("s_load_dwordx16 s[4:19], s[0:1], 0")
    p("s_load_dwordx4 s[20:23], s[0:1], 64")
    p("s_load_dwordx2 s[24:25], s[0:1], 80")
    st(p, "start")
    p("v_and_b32 v1, 63, v0")
    p("v_lshrrev_b32 v2, 6, v0")
    p(f"s_and_b32 {sX}, s2, 7")
    p(f"v_readfirstlane_b32 {sW}, v2")
    p(f"s_lshr_b32 {sL}, s2, 3")
    p(f"s_mov_b32 {sONE}, {hx(ONES)}")
    p1.p1_ids(p)
    p1.p1_dma_addr(p)
    p("s_waitcnt lgkmcnt(0)")
    srd(p, R_B, S_X, 2048 * 1152)
    srd(p, R_A, S_WQKV, 576 * 3456)
    srd(p, R_WS, S_WS, WS_REC)
    srd(p, R_C, S_DBG, 256)
    import p2, sg, p6, prep
    IDLE, COMMON, IDLE2, NOPREP, P1V, P1DONE, P2 = ("L_idle", "L_common", "L_idle2", "L_noprep", "L_p1v", "L_p1done",
                                                    "L_p2")
    p(f"s_cmp_ge_u32 {sL}, 28")
    p(f"s_cbranch_scc1 {IDLE}")
    outer = p.side_begin()
    for c in range(opts.get("first", 3)):
        p1.emit_dma(p, c)
        if c == 0:
            code_prefetch(p, opts)
    p(f"s_branch {COMMON}")
    p(f"{IDLE}:")
    side = p.side_begin()
    code_prefetch(p, opts)
    p(f"s_sub_u32 {prep.sQ}, {sL}, 28")
    p(f"s_lshl_b32 {prep.sQ}, {prep.sQ}, 3")
    p(f"s_add_u32 {prep.sQ}, {prep.sQ}, {sX}")
    p(f"s_lshl_b32 s54, {prep.sQ}, 12")
    p(f"s_add_u32 s54, s54, {hx(F7)}")
    p("v_lshlrev_b32 v96, 4, v0")
    for k in range(4):
        p(f"v_mov_b32 v{100+k}, 0")
    p(f"buffer_store_dwordx4 v[100:103], v96, {WS}, s54 offen sc1")
    p("v_lshrrev_b32 v97, 5, v0")
    p(f"v_mul_u32_u24 v97, {FS}, v97")
    p("v_and_b32 v98, 31, v0")
    p("v_lshl_add_u32 v97, v98, 2, v97")
    p(f"s_mul_i32 s54, {prep.sQ}, {8*FS}")
    p(f"s_add_u32 s54, s54, {hx(FB)}")
    p(f"buffer_store_dword v100, v97, {WS}, s54 offen sc1")
    p("s_waitcnt vmcnt(0)")
    p("s_barrier")
    p(f"s_lshl_b32 s53, {prep.sQ}, 2")
    p("v_mov_b32 v97, 1")
    p(f"s_cmp_eq_u32 {sW}, 0")
    p(f"s_cselect_b32 s53, s53, {hx(OOB)}")
    p("s_mov_b64 exec, 1")
    p(f"buffer_store_dword v97, v100, {RC}, s53 offen sc1")
    p("s_mov_b64 exec, -1")
    p(f"s_cmp_ge_u32 {prep.sQ}, 24")
    p(f"s_cbranch_scc1 {COMMON}")
    st(p, "ann1")
    prep.prep_issue(p)
    st(p, "prepiss")
    p.side_end(side)
    p(f"{COMMON}:")
    p2.p2_setup(p)
    sg.sg_ids(p)
    p(f"s_cmp_ge_u32 {sL}, 28")
    p(f"s_cbranch_scc1 {IDLE2}")
    p(f"s_cmp_ge_u32 {p1.sJ}, 9")
    p(f"s_cbranch_scc1 {P1V}")
    s2 = p.side_begin()
    p1.p1_read_addr(p, False)
    n0 = len(st.names)
    p1.p1_main(p, False, st, opts.get('first', 3), lambda p: late_p1(p, opts))
    st(p, "p1main")
    p1.p1_epilogue(p, False)
    st(p, "p1epi")
    p("s_waitcnt vmcnt(0)")
    p.side_end(s2)
    p(f"s_branch {P1DONE}")
    p(f"{P1V}:")
    p1.p1_read_addr(p, True)
    del st.names[n0:]
    p1.p1_main(p, True, st, opts.get('first', 3), lambda p: late_p1(p, opts))
    st(p, "p1main")
    p1.p1_epilogue(p, True)
    st(p, "p1epi")
    p("s_waitcnt vmcnt(0)")
    p(f"{P1DONE}:")
    p("s_barrier")
    st(p, "p1stored")
    p(f"s_cmp_lg_u32 {sW}, 0")
    p(f"s_cbranch_scc1 {P2}")
    check_cleared(p)
    p(f"s_mul_i32 s53, {p1.sI}, {FS}")
    p(f"s_lshl_b32 s54, {p1.sJ}, 3")
    p(f"s_add_u32 s53, s53, s54")
    p(f"s_add_u32 s53, s53, {hx(F1)}")
    set_flag(p, "v126", "v127", "s53")
    p(f"s_branch {P2}")
    p.side_end(outer)
    p(f"{IDLE2}:")
    side = p.side_begin()
    p(f"s_cmp_ge_u32 {prep.sQ}, 24")
    p(f"s_cbranch_scc1 {NOPREP}")
    prep.prep_finish(p, st)
    st(p, "prepd")
    p(f"s_lshl_b32 s53, {prep.sQ}, 2")
    p("v_mov_b32 v96, 0")
    p("v_mov_b32 v97, 1")
    p(f"s_cmp_eq_u32 {sW}, 0")
    p(f"s_cselect_b32 s53, s53, {hx(OOB)}")
    p("s_mov_b64 exec, 1")
    p(f"buffer_store_dword v97, v96, {RC}, s53 offen offset:128 sc1")
    p("s_mov_b64 exec, -1")
    p(f"{NOPREP}:")
    late_p1(p, opts)
    p("s_waitcnt vmcnt(0)")
    p(f"s_cmp_lg_u32 {sW}, 0")
    p(f"s_cbranch_scc1 {P2}")
    check_cleared(p)
    p.side_end(side)
    p(f"{P2}:")
    pf = lambda which: (lambda p: weight_prefetch(p, opts, which, V=16))
    w3, w4, w5, w6 = sg.w_loads(3), sg.w_loads(4), sg.w_loads(5), p6.prefill_ops()
    for lst, key, dflt in ((w4, "pfb3", ""), (w5, "pfb4", ""), (w6, "pfb5", "3")):
        r = p6.Rec()
        weight_prefetch(r, opts, opts.get(key, dflt), V=24)
        if r.ops:
            lst.insert(0, "\n".join(r.ops))
    ppf = lambda m: (lambda p: packed_prefetch(p, m, 14) if opts.get("ppf", 1) else None)
    p2.p2(p, st, opts, w3, ppf(0))
    sg.sg_phase(p, st, 3, opts, lambda p: (p2.publish(p), ppf(1)(p)), w3, w4, pf(opts.get("pf3", "")))
    sg.sg_phase(p, st, 4, opts, lambda p: (sg.publish(p, 3), ppf(2)(p)), w4, w5, pf(opts.get("pf4", "")))
    sg.sg_phase(p, st, 5, opts, lambda p: sg.publish(p, 4), w5, w6)
    p6.p6(p, st, opts, lambda p: sg.publish(p, 5), w6)
    st(p, "end")
    st.flush(p)
    p(f"{END}:")
    p("s_endpgm")
    body = p.text()
    head = HEADER + f"; @launch grid=(256,1,1) block=(256,1,1) lds={LDS_BYTES}\n"
    head += f'.amdgcn_target "amdgcn-amd-amdhsa--gfx950"\n.text\n.globl {KNAME}\n.p2align 8\n.type {KNAME},@function\n'
    tail = f""".section .rodata,"a"
.p2align 6
.amdhsa_kernel {KNAME}
  .amdhsa_next_free_vgpr 512
  .amdhsa_next_free_sgpr 102
  .amdhsa_accum_offset 256
  .amdhsa_group_segment_fixed_size 0
  .amdhsa_kernarg_size 88
  .amdhsa_user_sgpr_count 2
  .amdhsa_user_sgpr_kernarg_segment_ptr 1
  .amdhsa_system_sgpr_workgroup_id_x 1
  .amdhsa_float_denorm_mode_32 3
.end_amdhsa_kernel
"""
    return head + body + tail, st.names, p


if __name__ == "__main__":
    import argparse, json
    ap = argparse.ArgumentParser()
    ap.add_argument("-o", default="k.s")
    ap.add_argument("--stop", type=int, default=99)
    ap.add_argument("--stamps", type=int, default=0)
    ap.add_argument("--opts", default="{}")
    a = ap.parse_args()
    txt, names, p = gen(a.stop, a.stamps, json.loads(a.opts))
    if names:
        txt = txt.replace("; @launch", f"; stampmode: {a.stamps}\n; stamps: " + ",".join(names) + "\n; @launch", 1)
    open(a.o, "w").write(txt)
    print(f"wrote {a.o}: {len(txt)} bytes, {len(p.out)} lines, {p.nnop} nops, {p.nwait_auto} auto waits; stamps {names}")
```

```python
import sys, os
sys.path.insert(0, os.path.dirname(os.path.abspath(__file__)))
from common import *
from pf import weight_prefetch, packed_prefetch
import p1

HEADER = open(os.path.join(os.path.dirname(os.path.abspath(__file__)), "header.txt")).read()


def late_p1(p, opts):
    p("v_lshlrev_b32 v126, 2, v1")
    p(f"s_cmp_eq_u32 {sW}, 0")
    p(f"s_cselect_b32 s69, 0, {hx(OOB)}")
    p("s_mov_b32 exec_hi, 0")
    p(f"buffer_load_dword v127, v126, {RC}, s69 offen sc1")
    p("s_mov_b64 exec, -1")
    weight_prefetch(p, opts, opts.get("pf1", ""), V=144, R=R_B)


def check_cleared(p):
    ok = p.label("clr")
    p("v_cmp_gt_u32 vcc, 1, v127")
    p("s_cmp_eq_u32 vcc_lo, 0")
    p(f"s_cbranch_scc1 {ok}")
    s = p.side_begin()
    poll(p, "v126", "v127", 32, srd_=RC)
    p.side_end(s)
    p(f"{ok}:")


def code_prefetch(p, opts):
    if not opts.get("pf", 1):
        return
    pc = p.label("pc")
    p("s_getpc_b64 s[56:57]")
    p(f"{pc}:")
    p(f"s_sub_u32 s56, s56, {pc}-{KNAME}")
    p("s_subb_u32 s57, s57, 0")
    p("v_and_b32 v126, 31, v0")
    p(f"v_lshl_add_u32 v126, v126, 5, {sL}")
    p("v_lshlrev_b32 v126, 7, v126")
    p(f"v_min_u32 v126, L_end-{KNAME}, v126")
    p("global_load_dword v127, v126, s[56:57]")


def gen(stop=99, stamps=False, opts=None):
    opts = opts or {}
    p = Prog()
    SLEEP[0] = opts.get('sleep', 0)
    st = Stamps(stamps, opts.get('only'))
    END = "L_end"
    p(f"{KNAME}:")
    p("s_cmp_ge_u32 s2, 256")
    p(f"s_cbranch_scc1 {END}")
    p("s_load_dwordx16 s[4:19], s[0:1], 0")
    p("s_load_dwordx4 s[20:23], s[0:1], 64")
    p("s_load_dwordx2 s[24:25], s[0:1], 80")
    st(p, "start")
    p("v_and_b32 v1, 63, v0")
    p("v_lshrrev_b32 v2, 6, v0")
    p(f"s_and_b32 {sX}, s2, 7")
    p(f"v_readfirstlane_b32 {sW}, v2")
    p(f"s_lshr_b32 {sL}, s2, 3")
    p(f"s_mov_b32 {sONE}, {hx(ONES)}")
    p1.p1_ids(p)
    p1.p1_dma_addr(p)
    p("s_waitcnt lgkmcnt(0)")
    srd(p, R_B, S_X, 2048 * 1152)
    srd(p, R_A, S_WQKV, 576 * 3456)
    srd(p, R_WS, S_WS, WS_REC)
    srd(p, R_C, S_DBG, 256)
    import p2, sg, p6, prep
    if opts.get("probe"):
        p("s_getreg_b32 s70, hwreg(20, 0, 4)")
        p("s_sub_u32 s70, s70, s2")
        p("s_and_b32 s70, s70, 7")
        p("s_add_u32 s70, s70, 1")
        p("v_mov_b32 v144, s70")
        p("s_lshl_b32 s72, s2, 7")
        p("v_mov_b32 v145, s72")
        p(f"s_mov_b32 s71, {hx(STAMP)}")
        p(f"s_cmp_eq_u32 {sW}, 0")
        p(f"s_cselect_b32 s72, s71, {hx(OOB)}")
        p("s_mov_b64 exec, 1")
        p(f"buffer_store_dword v144, v145, {WS}, s72 offen sc1")
        p("s_mov_b64 exec, -1")
    IDLE, COMMON, IDLE2, NOPREP, P1V, P1DONE, P2 = ("L_idle", "L_common", "L_idle2", "L_noprep", "L_p1v", "L_p1done",
                                                    "L_p2")
    p(f"s_cmp_ge_u32 {sL}, 28")
    p(f"s_cbranch_scc1 {IDLE}")
    outer = p.side_begin()
    for c in range(opts.get("first", 3)):
        p1.emit_dma(p, c)
        if c == 0:
            code_prefetch(p, opts)
    p(f"s_branch {COMMON}")
    p(f"{IDLE}:")
    side = p.side_begin()
    code_prefetch(p, opts)
    p(f"s_sub_u32 {prep.sQ}, {sL}, 28")
    p(f"s_lshl_b32 {prep.sQ}, {prep.sQ}, 3")
    p(f"s_add_u32 {prep.sQ}, {prep.sQ}, {sX}")
    p(f"s_lshl_b32 s54, {prep.sQ}, 12")
    p(f"s_add_u32 s54, s54, {hx(F7)}")
    p("v_lshlrev_b32 v96, 4, v0")
    for k in range(4):
        p(f"v_mov_b32 v{100+k}, 0")
    p(f"buffer_store_dwordx4 v[100:103], v96, {WS}, s54 offen sc1")
    p("v_lshrrev_b32 v97, 5, v0")
    p(f"v_mul_u32_u24 v97, {FS}, v97")
    p("v_and_b32 v98, 31, v0")
    p("v_lshl_add_u32 v97, v98, 2, v97")
    p(f"s_mul_i32 s54, {prep.sQ}, {8*FS}")
    p(f"s_add_u32 s54, s54, {hx(FB)}")
    p(f"buffer_store_dword v100, v97, {WS}, s54 offen sc1")
    p("s_waitcnt vmcnt(0)")
    p("s_barrier")
    p(f"s_lshl_b32 s53, {prep.sQ}, 2")
    p("v_mov_b32 v97, 1")
    p(f"s_cmp_eq_u32 {sW}, 0")
    p(f"s_cselect_b32 s53, s53, {hx(OOB)}")
    p("s_mov_b64 exec, 1")
    p(f"buffer_store_dword v97, v100, {RC}, s53 offen sc1")
    p("s_mov_b64 exec, -1")
    p(f"s_cmp_ge_u32 {prep.sQ}, 24")
    p(f"s_cbranch_scc1 {COMMON}")
    st(p, "ann1")
    prep.prep_issue(p)
    st(p, "prepiss")
    p.side_end(side)
    p(f"{COMMON}:")
    p2.p2_setup(p)
    sg.sg_ids(p)
    p(f"s_cmp_ge_u32 {sL}, 28")
    p(f"s_cbranch_scc1 {IDLE2}")
    p(f"s_cmp_ge_u32 {p1.sJ}, 9")
    p(f"s_cbranch_scc1 {P1V}")
    s2 = p.side_begin()
    p1.p1_read_addr(p, False)
    n0 = len(st.names)
    p1.p1_main(p, False, st, opts.get('first', 3), lambda p: late_p1(p, opts))
    st(p, "p1main")
    p1.p1_epilogue(p, False)
    st(p, "p1epi")
    p("s_waitcnt vmcnt(0)")
    p.side_end(s2)
    p(f"s_branch {P1DONE}")
    p(f"{P1V}:")
    p1.p1_read_addr(p, True)
    del st.names[n0:]
    p1.p1_main(p, True, st, opts.get('first', 3), lambda p: late_p1(p, opts))
    st(p, "p1main")
    p1.p1_epilogue(p, True)
    st(p, "p1epi")
    p("s_waitcnt vmcnt(0)")
    p(f"{P1DONE}:")
    p("s_barrier")
    st(p, "p1stored")
    p(f"s_cmp_lg_u32 {sW}, 0")
    p(f"s_cbranch_scc1 {P2}")
    check_cleared(p)
    p(f"s_mul_i32 s53, {p1.sI}, {FS}")
    p(f"s_lshl_b32 s54, {p1.sJ}, 3")
    p(f"s_add_u32 s53, s53, s54")
    p(f"s_add_u32 s53, s53, {hx(F1)}")
    set_flag(p, "v126", "v127", "s53")
    p(f"s_branch {P2}")
    p.side_end(outer)
    p(f"{IDLE2}:")
    side = p.side_begin()
    p(f"s_cmp_ge_u32 {prep.sQ}, 24")
    p(f"s_cbranch_scc1 {NOPREP}")
    prep.prep_finish(p, st)
    st(p, "prepd")
    p(f"s_lshl_b32 s53, {prep.sQ}, 2")
    p("v_mov_b32 v96, 0")
    p("v_mov_b32 v97, 1")
    p(f"s_cmp_eq_u32 {sW}, 0")
    p(f"s_cselect_b32 s53, s53, {hx(OOB)}")
    p("s_mov_b64 exec, 1")
    p(f"buffer_store_dword v97, v96, {RC}, s53 offen offset:128 sc1")
    p("s_mov_b64 exec, -1")
    p(f"{NOPREP}:")
    late_p1(p, opts)
    p("s_waitcnt vmcnt(0)")
    p(f"s_cmp_lg_u32 {sW}, 0")
    p(f"s_cbranch_scc1 {P2}")
    check_cleared(p)
    p.side_end(side)
    p(f"{P2}:")
    pf = lambda which: (lambda p: weight_prefetch(p, opts, which, V=16))
    w3, w4, w5, w6 = sg.w_loads(3), sg.w_loads(4), sg.w_loads(5), p6.prefill_ops()
    for lst, key, dflt in ((w4, "pfb3", ""), (w5, "pfb4", ""), (w6, "pfb5", "3")):
        r = p6.Rec()
        weight_prefetch(r, opts, opts.get(key, dflt), V=24)
        if r.ops:
            lst.insert(0, "\n".join(r.ops))
    ppf = lambda m: (lambda p: packed_prefetch(p, m, 14) if opts.get("ppf", 1) else None)
    p2.p2(p, st, opts, w3, ppf(0))
    sg.sg_phase(p, st, 3, opts, lambda p: (p2.publish(p), ppf(1)(p)), w3, w4, pf(opts.get("pf3", "")))
    sg.sg_phase(p, st, 4, opts, lambda p: (sg.publish(p, 3), ppf(2)(p)), w4, w5, pf(opts.get("pf4", "")))
    sg.sg_phase(p, st, 5, opts, lambda p: sg.publish(p, 4), w5, w6)
    p6.p6(p, st, opts, lambda p: sg.publish(p, 5), w6)
    if opts.get("probe"):
        p("v_lshlrev_b32 v10, 7, v0")
        p(f"buffer_load_dword v11, v10, {WS}, s71 offen sc1")
        p("v_cmp_ne_u32 vcc, s70, v11")
        p("s_nop 1")
        p("s_cbranch_vccz L_nodelay")
        p("s_mov_b32 s72, 0")
        p("L_delay:")
        p("s_sleep 16")
        p("s_add_u32 s72, s72, 1")
        p("s_cmp_lt_u32 s72, 100")
        p("s_cbranch_scc1 L_delay")
        p("L_nodelay:")
    st(p, "end")
    st.flush(p)
    p(f"{END}:")
    p("s_endpgm")
    body = p.text()
    head = HEADER + f"; @launch grid=(256,1,1) block=(256,1,1) lds={LDS_BYTES}\n"
    head += f'.amdgcn_target "amdgcn-amd-amdhsa--gfx950"\n.text\n.globl {KNAME}\n.p2align 8\n.type {KNAME},@function\n'
    tail = f""".section .rodata,"a"
.p2align 6
.amdhsa_kernel {KNAME}
  .amdhsa_next_free_vgpr 512
  .amdhsa_next_free_sgpr 102
  .amdhsa_accum_offset 256
  .amdhsa_group_segment_fixed_size 0
  .amdhsa_kernarg_size 88
  .amdhsa_user_sgpr_count 2
  .amdhsa_user_sgpr_kernarg_segment_ptr 1
  .amdhsa_system_sgpr_workgroup_id_x 1
  .amdhsa_float_denorm_mode_32 3
.end_amdhsa_kernel
"""
    return head + body + tail, st.names, p


if __name__ == "__main__":
    import argparse, json
    ap = argparse.ArgumentParser()
    ap.add_argument("-o", default="k.s")
    ap.add_argument("--stop", type=int, default=99)
    ap.add_argument("--stamps", type=int, default=0)
    ap.add_argument("--opts", default="{}")
    a = ap.parse_args()
    txt, names, p = gen(a.stop, a.stamps, json.loads(a.opts))
    if names:
        txt = txt.replace("; @launch", f"; stampmode: {a.stamps}\n; stamps: " + ",".join(names) + "\n; @launch", 1)
    open(a.o, "w").write(txt)
    print(f"wrote {a.o}: {len(txt)} bytes, {len(p.out)} lines, {p.nnop} nops, {p.nwait_auto} auto waits; stamps {names}")
```

```python
import sys, os
sys.path.insert(0, os.path.dirname(os.path.abspath(__file__)))
from common import *
from pf import weight_prefetch, packed_prefetch
import p1

HEADER = open(os.path.join(os.path.dirname(os.path.abspath(__file__)), "header.txt")).read()


def late_p1(p, opts):
    p("v_lshlrev_b32 v126, 2, v1")
    p(f"s_cmp_eq_u32 {sW}, 0")
    p(f"s_cselect_b32 s69, 0, {hx(OOB)}")
    p("s_mov_b32 exec_hi, 0")
    p(f"buffer_load_dword v127, v126, {RC}, s69 offen sc1")
    p("s_mov_b64 exec, -1")
    weight_prefetch(p, opts, opts.get("pf1", ""), V=144, R=R_B)


def check_cleared(p):
    ok = p.label("clr")
    p("v_cmp_gt_u32 vcc, 1, v127")
    p("s_cmp_eq_u32 vcc_lo, 0")
    p(f"s_cbranch_scc1 {ok}")
    s = p.side_begin()
    poll(p, "v126", "v127", 32, srd_=RC)
    p.side_end(s)
    p(f"{ok}:")


def code_prefetch(p, opts):
    if not opts.get("pf", 1):
        return
    pc = p.label("pc")
    p("s_getpc_b64 s[56:57]")
    p(f"{pc}:")
    p(f"s_sub_u32 s56, s56, {pc}-{KNAME}")
    p("s_subb_u32 s57, s57, 0")
    p("v_and_b32 v126, 31, v0")
    p(f"v_lshl_add_u32 v126, v126, 5, {sL}")
    p("v_lshlrev_b32 v126, 7, v126")
    p(f"v_min_u32 v126, L_end-{KNAME}, v126")
    p("global_load_dword v127, v126, s[56:57]")


def gen(stop=99, stamps=False, opts=None):
    opts = opts or {}
    p = Prog()
    SLEEP[0] = opts.get('sleep', 0)
    st = Stamps(stamps, opts.get('only'))
    END = "L_end"
    p(f"{KNAME}:")
    p("s_cmp_ge_u32 s2, 256")
    p(f"s_cbranch_scc1 {END}")
    p("s_load_dwordx16 s[4:19], s[0:1], 0")
    p("s_load_dwordx4 s[20:23], s[0:1], 64")
    p("s_load_dwordx2 s[24:25], s[0:1], 80")
    st(p, "start")
    p("v_and_b32 v1, 63, v0")
    p("v_lshrrev_b32 v2, 6, v0")
    p(f"s_and_b32 {sX}, s2, 7")
    p(f"v_readfirstlane_b32 {sW}, v2")
    p(f"s_lshr_b32 {sL}, s2, 3")
    p(f"s_mov_b32 {sONE}, {hx(ONES)}")
    p1.p1_ids(p)
    p1.p1_dma_addr(p)
    p("s_waitcnt lgkmcnt(0)")
    srd(p, R_B, S_X, 2048 * 1152)
    srd(p, R_A, S_WQKV, 576 * 3456)
    srd(p, R_WS, S_WS, WS_REC)
    srd(p, R_C, S_DBG, 256)
    import p2, sg, p6, prep
    if opts.get("probe"):
        p("s_getreg_b32 s70, hwreg(20, 0, 4)")
        p("s_sub_u32 s70, s70, s2")
        p("s_and_b32 s70, s70, 7")
        p("s_add_u32 s70, s70, 1")
        p("v_mov_b32 v144, s70")
        p("s_lshl_b32 s72, s2, 7")
        p("v_mov_b32 v145, s72")
        p(f"s_mov_b32 s71, {hx(STAMP)}")
        p(f"s_cmp_eq_u32 {sW}, 0")
        p(f"s_cselect_b32 s72, s71, {hx(OOB)}")
        p("s_mov_b64 exec, 1")
        p(f"buffer_store_dword v144, v145, {WS}, s72 offen sc1")
        p("s_mov_b64 exec, -1")
    IDLE, COMMON, IDLE2, NOPREP, P1V, P1DONE, P2 = ("L_idle", "L_common", "L_idle2", "L_noprep", "L_p1v", "L_p1done",
                                                    "L_p2")
    p(f"s_cmp_ge_u32 {sL}, 28")
    p(f"s_cbranch_scc1 {IDLE}")
    outer = p.side_begin()
    for c in range(opts.get("first", 3)):
        p1.emit_dma(p, c)
        if c == 0:
            code_prefetch(p, opts)
    p(f"s_branch {COMMON}")
    p(f"{IDLE}:")
    side = p.side_begin()
    code_prefetch(p, opts)
    p(f"s_sub_u32 {prep.sQ}, {sL}, 28")
    p(f"s_lshl_b32 {prep.sQ}, {prep.sQ}, 3")
    p(f"s_add_u32 {prep.sQ}, {prep.sQ}, {sX}")
    p(f"s_lshl_b32 s54, {prep.sQ}, 12")
    p(f"s_add_u32 s54, s54, {hx(F7)}")
    p("v_lshlrev_b32 v96, 4, v0")
    for k in range(4):
        p(f"v_mov_b32 v{100+k}, 0")
    p(f"buffer_store_dwordx4 v[100:103], v96, {WS}, s54 offen sc1")
    p("v_lshrrev_b32 v97, 5, v0")
    p(f"v_mul_u32_u24 v97, {FS}, v97")
    p("v_and_b32 v98, 31, v0")
    p("v_lshl_add_u32 v97, v98, 2, v97")
    p(f"s_mul_i32 s54, {prep.sQ}, {8*FS}")
    p(f"s_add_u32 s54, s54, {hx(FB)}")
    p(f"buffer_store_dword v100, v97, {WS}, s54 offen sc1")
    p("s_waitcnt vmcnt(0)")
    p("s_barrier")
    p(f"s_lshl_b32 s53, {prep.sQ}, 2")
    p("v_mov_b32 v97, 1")
    p(f"s_cmp_eq_u32 {sW}, 0")
    p(f"s_cselect_b32 s53, s53, {hx(OOB)}")
    p("s_mov_b64 exec, 1")
    p(f"buffer_store_dword v97, v100, {RC}, s53 offen sc1")
    p("s_mov_b64 exec, -1")
    p(f"s_cmp_ge_u32 {prep.sQ}, 24")
    p(f"s_cbranch_scc1 {COMMON}")
    st(p, "ann1")
    prep.prep_issue(p)
    st(p, "prepiss")
    p.side_end(side)
    p(f"{COMMON}:")
    p2.p2_setup(p)
    sg.sg_ids(p)
    p(f"s_cmp_ge_u32 {sL}, 28")
    p(f"s_cbranch_scc1 {IDLE2}")
    p(f"s_cmp_ge_u32 {p1.sJ}, 9")
    p(f"s_cbranch_scc1 {P1V}")
    s2 = p.side_begin()
    p1.p1_read_addr(p, False)
    n0 = len(st.names)
    p1.p1_main(p, False, st, opts.get('first', 3), lambda p: late_p1(p, opts))
    st(p, "p1main")
    p1.p1_epilogue(p, False)
    st(p, "p1epi")
    p("s_waitcnt vmcnt(0)")
    p.side_end(s2)
    p(f"s_branch {P1DONE}")
    p(f"{P1V}:")
    p1.p1_read_addr(p, True)
    del st.names[n0:]
    p1.p1_main(p, True, st, opts.get('first', 3), lambda p: late_p1(p, opts))
    st(p, "p1main")
    p1.p1_epilogue(p, True)
    st(p, "p1epi")
    p("s_waitcnt vmcnt(0)")
    p(f"{P1DONE}:")
    p("s_barrier")
    st(p, "p1stored")
    p(f"s_cmp_lg_u32 {sW}, 0")
    p(f"s_cbranch_scc1 {P2}")
    check_cleared(p)
    p(f"s_mul_i32 s53, {p1.sI}, {FS}")
    p(f"s_lshl_b32 s54, {p1.sJ}, 3")
    p(f"s_add_u32 s53, s53, s54")
    p(f"s_add_u32 s53, s53, {hx(F1)}")
    set_flag(p, "v126", "v127", "s53")
    p(f"s_branch {P2}")
    p.side_end(outer)
    p(f"{IDLE2}:")
    side = p.side_begin()
    p(f"s_cmp_ge_u32 {prep.sQ}, 24")
    p(f"s_cbranch_scc1 {NOPREP}")
    prep.prep_finish(p, st)
    st(p, "prepd")
    p(f"s_lshl_b32 s53, {prep.sQ}, 2")
    p("v_mov_b32 v96, 0")
    p("v_mov_b32 v97, 1")
    p(f"s_cmp_eq_u32 {sW}, 0")
    p(f"s_cselect_b32 s53, s53, {hx(OOB)}")
    p("s_mov_b64 exec, 1")
    p(f"buffer_store_dword v97, v96, {RC}, s53 offen offset:128 sc1")
    p("s_mov_b64 exec, -1")
    p(f"{NOPREP}:")
    late_p1(p, opts)
    p("s_waitcnt vmcnt(0)")
    p(f"s_cmp_lg_u32 {sW}, 0")
    p(f"s_cbranch_scc1 {P2}")
    check_cleared(p)
    p.side_end(side)
    p(f"{P2}:")
    pf = lambda which: (lambda p: weight_prefetch(p, opts, which, V=16))
    w3, w4, w5, w6 = sg.w_loads(3), sg.w_loads(4), sg.w_loads(5), p6.prefill_ops()
    for lst, key, dflt in ((w4, "pfb3", ""), (w5, "pfb4", ""), (w6, "pfb5", "3")):
        r = p6.Rec()
        weight_prefetch(r, opts, opts.get(key, dflt), V=24)
        if r.ops:
            lst.insert(0, "\n".join(r.ops))
    ppf = lambda m: (lambda p: packed_prefetch(p, m, 14) if opts.get("ppf", 1) else None)
    p2.p2(p, st, opts, w3, ppf(0))
    sg.sg_phase(p, st, 3, opts, lambda p: (p2.publish(p), ppf(1)(p)), w3, w4, pf(opts.get("pf3", "")))
    sg.sg_phase(p, st, 4, opts, lambda p: (sg.publish(p, 3), ppf(2)(p)), w4, w5, pf(opts.get("pf4", "")))
    sg.sg_phase(p, st, 5, opts, lambda p: sg.publish(p, 4), w5, w6)
    p6.p6(p, st, opts, lambda p: sg.publish(p, 5), w6)
    if opts.get("probe"):
        p("v_lshlrev_b32 v10, 7, v0")
        p(f"buffer_load_dword v11, v10, {WS}, s71 offen sc1")
        p("v_cmp_ne_u32 vcc, s70, v11")
        p("s_nop 1")
        p("s_cbranch_vccz L_nodelay")
        p("s_mov_b32 s72, 0")
        p("L_delay:")
        p("s_sleep 16")
        p("s_add_u32 s72, s72, 1")
        p("s_cmp_lt_u32 s72, 100")
        p("s_cbranch_scc1 L_delay")
        p("L_nodelay:")
    st(p, "end")
    if opts.get("enc"):
        k = len(st.names) - 1
        p("s_waitcnt lgkmcnt(0)")
        if k:
            p(f"s_cmp_eq_u32 s{70+2*k}, 0")
            p(f"s_cselect_b32 s70, s70, s{70+2*k}")
        p("s_add_u32 s70, s70, 10000")
        p("s_mov_b32 s74, 0")
        p("L_enc:")
        p("s_memrealtime s[72:73]")
        p("s_add_u32 s74, s74, 1")
        p("s_cmp_gt_u32 s74, 100000")
        p("s_cbranch_scc1 L_end")
        p("s_waitcnt lgkmcnt(0)")
        p("s_sub_u32 s72, s72, s70")
        p("s_cmp_lt_i32 s72, 0")
        p("s_cbranch_scc1 L_enc")
    else:
        st.flush(p)
    p(f"{END}:")
    p("s_endpgm")
    body = p.text()
    head = HEADER + f"; @launch grid=(256,1,1) block=(256,1,1) lds={LDS_BYTES}\n"
    head += f'.amdgcn_target "amdgcn-amd-amdhsa--gfx950"\n.text\n.globl {KNAME}\n.p2align 8\n.type {KNAME},@function\n'
    tail = f""".section .rodata,"a"
.p2align 6
.amdhsa_kernel {KNAME}
  .amdhsa_next_free_vgpr 512
  .amdhsa_next_free_sgpr 102
  .amdhsa_accum_offset 256
  .amdhsa_group_segment_fixed_size 0
  .amdhsa_kernarg_size 88
  .amdhsa_user_sgpr_count 2
  .amdhsa_user_sgpr_kernarg_segment_ptr 1
  .amdhsa_system_sgpr_workgroup_id_x 1
  .amdhsa_float_denorm_mode_32 3
.end_amdhsa_kernel
"""
    return head + body + tail, st.names, p


if __name__ == "__main__":
    import argparse, json
    ap = argparse.ArgumentParser()
    ap.add_argument("-o", default="k.s")
    ap.add_argument("--stop", type=int, default=99)
    ap.add_argument("--stamps", type=int, default=0)
    ap.add_argument("--opts", default="{}")
    a = ap.parse_args()
    txt, names, p = gen(a.stop, a.stamps, json.loads(a.opts))
    if names:
        txt = txt.replace("; @launch", f"; stampmode: {a.stamps}\n; stamps: " + ",".join(names) + "\n; @launch", 1)
    open(a.o, "w").write(txt)
    print(f"wrote {a.o}: {len(txt)} bytes, {len(p.out)} lines, {p.nnop} nops, {p.nwait_auto} auto waits; stamps {names}")
```

```python
from asmgen import *
import struct


def f2u(x):
    return struct.unpack("<I", struct.pack("<f", x))[0]


def hx(x):
    return f"0x{x & 0xffffffff:x}"


KNAME = "sequential_preLN__sliding_block__mixer_s_mlp__prompt_kernel"

import os
FS = int(os.environ.get("FS", 1152))
FB = 0x1A00000
F1, F2, F5, F3, F4, F6 = [FB + k * FS for k in (0, 16, 48, 64, 128, 192)]
F7 = 0x1C00000
QK = 0x100000
VT = 0x600000
OB = 0x900000
HB = 0xC00000
H1 = 0xF00000
X1 = 0x1200000
ST3 = 0x1500000
ST5 = 0x1580000
STAMP = 0x1600000
WP = 0x1700000
CSP = 0x1980000
PART = 0x2000000
WS_REC = 0x8000000
OOB = 0x8000000

LDS_BYTES = 163840

S_X, S_WQKV, S_WO, S_BX, S_W1, S_W2, S_W3, S_W4, S_OUT, S_DBG, S_WS = 4, 6, 8, 10, 12, 14, 16, 18, 20, 22, 24
R_WS, R_A, R_B, R_C = 28, 32, 36, 40
WS, RA, RB, RC = "s[28:31]", "s[32:35]", "s[36:39]", "s[40:43]"
sX, sL, sW = "s44", "s45", "s46"
sONE = "s47"
SPIN_MAX = 400000
SLEEP = [0]

ONES = 0x3F803F80
EPS = 1e-5


def srd(p, r, ptr, nbytes):
    p(f"s_mov_b32 s{r}, s{ptr}")
    p(f"s_mov_b32 s{r+1}, s{ptr+1}")
    p(f"s_mov_b32 s{r+2}, {hx(nbytes)}")
    p(f"s_mov_b32 s{r+3}, 0x20000")


def xhalf(p, op, a, t):
    p(f"v_mov_b32 {t}, {a}")
    p(f"v_permlane32_swap_b32 {a}, {t}")
    p(f"{op} {a}, {a}, {t}")


class Stamps:
    def __init__(self, on, only=None):
        self.on = on
        self.names = []
        self.only = only

    def __call__(self, p, name):
        if not self.on or (self.only and name != "start" and name not in self.only):
            return
        k = len(self.names)
        assert k < 16
        self.names.append(name)
        if k == 0:
            for q in range(1, 16):
                p(f"s_mov_b32 s{70+2*q}, 0")
        p(f"{'s_memtime' if self.on == 2 else 's_memrealtime'} s[{70+2*k}:{71+2*k}]")

    def flush(self, p):
        if not self.on:
            return
        p("s_waitcnt lgkmcnt(0)")
        p("v_mov_b32 v2, 0")
        for k in range(len(self.names)):
            p(f"v_writelane_b32 v2, s{70+2*k}, {k}")
        p("v_and_b32 v3, 63, v0")
        p("v_lshlrev_b32 v3, 2, v3")
        p(f"s_lshl_b32 s48, s2, 2")
        p(f"s_add_u32 s48, s48, {sW}")
        p(f"s_lshl_b32 s48, s48, 6")
        p(f"s_add_u32 s48, s48, {hx(STAMP)}")
        p("s_mov_b64 exec, 0xffff")
        p(f"buffer_store_dword v2, v3, {WS}, s48 offen")
        p("s_mov_b64 exec, -1")


def set_flag(p, vaddr_tmp, vdata_tmp, s_off, val=1):
    p(f"v_mov_b32 {vaddr_tmp}, 0")
    p(f"v_mov_b32 {vdata_tmp}, {val}")
    p("s_mov_b64 exec, 1")
    p(f"buffer_store_dword {vdata_tmp}, {vaddr_tmp}, {WS}, {s_off} offen sc1")
    p("s_mov_b64 exec, -1")


def poll(p, vaddr, vtmp, nlanes, val=1, srd_=WS, scnt="s69"):
    lp, out = p.label("poll"), p.label("pollout")
    mask = (1 << nlanes) - 1
    if nlanes <= 32:
        p(f"s_mov_b32 exec_lo, {hx(mask)}")
        p("s_mov_b32 exec_hi, 0")
    else:
        p(f"s_mov_b32 exec_hi, {hx(mask >> 32)}")
    p(f"s_mov_b32 {scnt}, 0")
    p(f"{lp}:")
    p(f"buffer_load_dword {vtmp}, {vaddr}, {srd_}, 0 offen sc1")
    p(f"s_add_u32 {scnt}, {scnt}, 1")
    p(f"s_cmp_gt_u32 {scnt}, {SPIN_MAX}")
    p("s_waitcnt vmcnt(0)")
    p(f"s_cbranch_scc1 {out}")
    p(f"v_cmp_gt_u32 vcc, {val}, {vtmp}")
    if SLEEP[0]:
        p(f"s_cbranch_vccz {out}")
        p(f"s_sleep {SLEEP[0]}")
        p(f"s_branch {lp}")
    else:
        p("s_nop 1")
        p(f"s_cbranch_vccnz {lp}")
    p(f"{out}:")
    p("s_mov_b64 exec, -1")


def poll_data(p, load, vtmp, scnt="s69", multi=None):
    lp, out = p.label("pd"), p.label("pdout")
    p(f"s_mov_b32 {scnt}, 0")
    p(f"{lp}:")
    load()
    p(f"s_add_u32 {scnt}, {scnt}, 1")
    p(f"s_cmp_gt_u32 {scnt}, {SPIN_MAX}")
    p("s_waitcnt vmcnt(0)")
    p(f"s_cbranch_scc1 {out}")
    if multi:
        multi()
    p(f"v_cmp_eq_u32 vcc, -1, {vtmp}")
    p("s_nop 1")
    p(f"s_cbranch_vccnz {lp}")
    p(f"{out}:")


def redo_if_poison(p, vbad, label, scnt):
    ok = p.label("good")
    p(f"v_cmp_eq_u32 vcc, -1, {vbad}")
    p("s_nop 1")
    p(f"s_cbranch_vccz {ok}")
    s = p.side_begin()
    p(f"s_add_u32 {scnt}, {scnt}, 1")
    p(f"s_cmp_gt_u32 {scnt}, {SPIN_MAX}")
    p(f"s_cbranch_scc1 {ok}")
    p("s_waitcnt vmcnt(0) lgkmcnt(0)")
    p("s_nop 15")
    p(f"s_branch {label}")
    p.side_end(s)
    p(f"{ok}:")


CLEAN = "0xfffffffe"
```

```python
from common import *
from sched import Filler

sI, sJ, sKC, sXB, sWB, sT0, sT1, sM = "s48", "s49", "s50", "s51", "s52", "s53", "s54", "s55"
vX, vW, vB, vA = 96, 100, 104, 108
vS, vQ, vC = "v112", "v113", "v114"
XF, W0F, ACC, AG = 152, 240, 176, 232
QSCALE = (18 ** -0.5) * 1.4426950408889634


def p1_ids(p):
    p(f"s_and_b32 {sT0}, {sL}, 3")
    p(f"s_lshr_b32 {sT1}, {sL}, 2")
    p(f"s_and_b32 {sI}, {sX}, 3")
    p(f"s_lshl_b32 {sI}, {sI}, 2")
    p(f"s_add_u32 {sI}, {sI}, {sT0}")
    p(f"s_lshr_b32 {sJ}, {sX}, 2")
    p(f"s_mul_i32 {sJ}, {sJ}, 7")
    p(f"s_add_u32 {sJ}, {sJ}, {sT1}")
    p(f"s_lshl_b32 {sT1}, {sT1}, 2")
    p(f"s_mul_i32 {sT0}, {sT0}, 7")
    p(f"s_add_u32 {sKC}, {sT0}, {sT1}")
    p(f"s_add_u32 {sKC}, {sKC}, {sX}")
    p(f"s_mul_i32 {sT0}, {sKC}, 57")
    p(f"s_lshr_b32 {sT0}, {sT0}, 9")
    p(f"s_mul_i32 {sT0}, {sT0}, 9")
    p(f"s_sub_u32 {sKC}, {sKC}, {sT0}")
    p(f"s_lshl_b32 {sXB}, {sI}, 2")
    p(f"s_add_u32 {sXB}, {sXB}, {sW}")
    p(f"s_mul_i32 {sXB}, {sXB}, 36864")
    p(f"s_mul_i32 {sWB}, {sW}, {16*3456}")
    p(f"s_lshl_b32 {sT0}, {sJ}, 8")
    p(f"s_add_u32 {sWB}, {sWB}, {sT0}")
    p(f"s_lshl_b32 {sM}, {sW}, 12")


def p1_dma_addr(p):
    p("v_lshrrev_b32 v115, 3, v1")
    p("v_mul_u32_u24 v115, 1152, v115")
    p("v_lshrrev_b32 v116, 4, v1")
    p("v_and_b32 v117, 7, v1")
    p("v_xor_b32 v117, v117, v116")
    p(f"v_lshl_add_u32 v{vX}, v117, 4, v115")
    p("v_xor_b32 v117, 4, v117")
    p(f"v_lshl_add_u32 v{vX+1}, v117, 4, v115")
    p(f"v_add_u32 v{vX+2}, {2*8192}, v{vX}")
    p(f"v_add_u32 v{vX+3}, {3*8192}, v{vX+1}")
    p(f"v_add_u32 v{vX+1}, {8192}, v{vX+1}")
    p("v_bfe_u32 v117, v1, 2, 2")
    p("v_xor_b32 v117, v117, v116")
    p("v_mul_u32_u24 v116, 3456, v116")
    p("v_lshl_add_u32 v116, v117, 6, v116")
    p("v_and_b32 v117, 3, v1")
    p(f"v_lshl_add_u32 v{vW}, v117, 4, v116")
    for q in range(1, 4):
        p(f"v_add_u32 v{vW+q}, {q*(4*3456-1024)}, v{vW}")


def p1_dma_ops(c):
    o = []
    slot = (c % 5) * 32768
    o.append(f"s_lshl_b32 {sT0}, {sKC}, 7")
    o.append(f"s_add_u32 {sT0}, {sT0}, {sXB}")
    o.append(f"s_add_u32 m0, {sM}, {slot}")
    o.append(f"s_mul_i32 {sT1}, {sKC}, {64*3456}")
    for q in range(4):
        o.append(f"buffer_load_dwordx4 v{vX+q}, {RB}, {sT0} offen offset:{q*1024} lds")
    o.append(f"s_add_u32 m0, {sM}, {slot+16384}")
    o.append(f"s_add_u32 {sT1}, {sT1}, {sWB}")
    for q in range(4):
        o.append(f"buffer_load_dwordx4 v{vW+q}, {RA}, {sT1} offen offset:{q*1024} lds")
    o.append(f"s_add_u32 {sKC}, {sKC}, 1\ns_cmp_eq_u32 {sKC}, 9\ns_cselect_b32 {sKC}, 0, {sKC}")
    return o


def emit_dma(p, c):
    ops = p1_dma_ops(c)
    last = max(k for k, o in enumerate(ops) if o.startswith("buffer"))
    for k, o in enumerate(ops):
        p(o, tag=f"p1c{c}" if k == last else None)


def p1_read_addr(p, vmode):
    p("v_and_b32 v115, 31, v1")
    p("v_lshlrev_b32 v115, 7, v115")
    p(f"v_add_u32 v115, {sM}, v115")
    p("v_bfe_u32 v116, v1, 1, 3")
    p("v_lshrrev_b32 v117, 5, v1")
    p("v_xor_b32 v116, v116, v117")
    for s in range(4):
        p(f"v_xor_b32 v118, {2*s}, v116")
        p(f"v_lshl_add_u32 v{vB+s}, v118, 4, v115")
    p("v_bfe_u32 v115, v1, 2, 2")
    p("v_lshl_add_u32 v116, v117, 3, v115")
    p("v_lshlrev_b32 v116, 8, v116")
    p("v_bfe_u32 v118, v1, 4, 1")
    p("v_lshl_add_u32 v116, v118, 5, v116")
    if vmode:
        p("v_and_b32 v118, 3, v1")
        p("v_lshl_add_u32 v116, v118, 3, v116")
    else:
        p("v_and_b32 v118, 1, v1")
        p("v_lshl_add_u32 v116, v118, 4, v116")
        p("v_bfe_u32 v118, v1, 1, 1")
        p("v_lshl_add_u32 v116, v118, 3, v116")
    for t in range(4):
        p(f"s_add_u32 {sT0}, {sW}, {t}")
        p(f"s_and_b32 {sT0}, {sT0}, 3")
        p(f"v_xor_b32 v118, {sT0}, v115")
        p(f"v_lshl_add_u32 v{vA+t}, v118, 6, v116")


def afrag(g, t):
    pb = g & 1
    return (W0F + 4 * (g & 3), "v") if t == 0 else (AG + 12 * pb + 4 * (t - 1), "a")


def reads(g):
    c, s = divmod(g, 4)
    so = ((c % 5) % 2) * 32768
    out = [[f"ds_read_b128 {vr(XF+4*(g&3),4)}, v{vB+s} offset:{so}"], [], [], []]
    for t in range(4):
        b, k = afrag(g, t)
        for q in range(2):
            out[t].append(f"ds_read_b64_tr_b16 {vr(b+2*q,2,k)}, v{vA+t} offset:{so+16384+s*4096+q*1024}")
    return out


def tagged_dma(c):
    ops = p1_dma_ops(c)
    last = max(k for k, o in enumerate(ops) if o.startswith("buffer"))
    return [(o, f"p1c{c}") if k == last else o for k, o in enumerate(ops)]


def stat_ops(vmode):
    CSL = 131072
    a = ["v_mov_b32 v115, " + vC, "v_and_b32 v116, 31, v1", "v_lshlrev_b32 v116, 2, v116",
         f"v_permlane32_swap_b32 {vC}, v115", f"s_lshl_b32 {sT0}, {sW}, 7\ns_add_u32 {sT0}, {sT0}, {CSL}",
         f"v_add_f32 {vC}, {vC}, v115", f"v_add_u32 v117, {sT0}, v116", (f"ds_write_b32 v117, {vC}", "csw"),
         f"v_mov_b32 v115, {vS}", f"v_mov_b32 v118, {vQ}", "v_cmp_gt_u32 vcc, 32, v1",
         f"v_permlane32_swap_b32 {vS}, v115", f"v_permlane32_swap_b32 {vQ}, v118",
         f"v_add_f32 {vS}, {vS}, v115", f"v_add_f32 {vQ}, {vQ}, v118"]
    b = []
    for t in range(4):
        b += [f"s_add_u32 {sT0}, {sW}, {t}\ns_and_b32 {sT0}, {sT0}, 3\ns_lshl_b32 {sT0}, {sT0}, 7\n"
              f"s_add_u32 {sT0}, {sT0}, {CSL}\nv_add_u32 v117, {sT0}, v116\nds_read_b32 v{122+t}, v117"]
    b += [f"v_mul_f32 {vS}, {hx(f2u(-1.0/576))}, {vS}",
          f"v_mul_f32 {vQ}, {hx(f2u(1.0/576))}, {vQ}",
          f"v_fma_f32 {vQ}, -{vS}, {vS}, {vQ}", f"v_max_f32 {vQ}, 0, {vQ}", f"v_add_f32 {vQ}, {hx(f2u(EPS))}, {vQ}",
          f"v_rsq_f32 {vQ}, {vQ}",
          f"v_cndmask_b32 {vS}, 0, {vS}, vcc",
          f"v_cvt_pk_bf16_f32 v{MU}, {vS}, {vS}", f"v_mov_b32 v{MU+2}, 0", f"v_mov_b32 v{MU+3}, 0",
          f"v_and_b32 v118, 0xffff0000, v{MU}", f"v_sub_f32 v118, {vS}, v118", f"v_cvt_pk_bf16_f32 v{MU+1}, v118, 0"]
    for t in range(4):
        q = CSF + 4 * t
        b += [f"v_cvt_pk_bf16_f32 v{q+1}, v{122+t}, 0", f"v_mov_b32 v{q+2}, 0", f"v_lshlrev_b32 v118, 16, v{q+1}",
              f"v_sub_f32 v118, v{122+t}, v118", f"v_mov_b32 v{q+3}, 0", f"v_cvt_pk_bf16_f32 v{q}, v{122+t}, v118"]
    return a, b


MU, CSF = 80, 128


def p1_main(p, vmode, st, first, opts, late):
    p(f"v_mov_b32 {vS}, 0")
    p(f"v_mov_b32 {vQ}, 0")
    p(f"v_mov_b32 {vC}, 0")
    p.wait_vm("p1c0")
    p("s_barrier")
    st(p, "c0")
    for grp in reads(0):
        for o in grp:
            p(o)
    F = Filler(p)
    ops = []
    for c in range(first, 5):
        ops += tagged_dma(c)
    F.add(0, 11 if first >= 3 else 11, ops)
    for c in range(4):
        F.add(16 * c + 12, 16 * c + 12 + opts.get("p1dma", 12), tagged_dma(c + 5))
    late.__dict__["cost"] = 24
    F.add(opts.get('late', 128), opts.get('late', 128) + 2, [lambda: late(p)])
    import sg
    if opts.get("poi0", 80) >= 0:
        F.add(opts.get("poi0", 80), opts.get("poi1", 120), sg.poison_ops(92, sg.vLN))

    def dots(k0, k1):
        for kk in range(k0, k1):
            p(f"v_dot2c_f32_bf16 {vS}, {sONE}, v{XF+kk}")
            p(f"v_dot2c_f32_bf16 {vQ}, v{XF+kk}, v{XF+kk}")
            p(f"v_dot2c_f32_bf16 {vC}, {sONE}, v{W0F+kk}")

    sa, sb = stat_ops(vmode)
    for g in range(36):
        c, s = divmod(g, 4)
        xf = XF + 4 * (g & 3)
        nxt = reads(g + 1) if g < 35 else [[], [], [], []]
        for t in range(4):
            j = 4 * g + t
            b, k = afrag(g, t)
            acc = vr(ACC + 16 * t, 16)
            cin = "0" if g == 0 else acc
            A, B = vr(b, 4, k), vr(xf, 4)
            if vmode:
                A, B = B, A
            if t == 0 and s == 3 and c < 8:
                p.wait_lg()
                dots(0, 16)
            if g == 34 and t == 0:
                for o in nxt[0]:
                    p(o)
                nxt[0] = []
                p.wait_lg()
                dots(0, 16)
                F.add(j, j + 2, sa)
            if t in (0, 2):
                b2, k2 = afrag(g, t + 1)
                p.wait_regs(vr(b2, 4, k2))
            p(f"v_mfma_f32_32x32x16_bf16 {acc}, {A}, {B}, {cin}")
            if t == 0 and s == 3 and c < 8:
                p.wait_vm(f"p1c{c+1}")
                p("s_barrier")
                w0, w1 = (c % 5) // 2, ((c + 1) % 5) // 2
                if w0 != w1:
                    for r in list(range(vB, vB + 4)) + list(range(vA, vA + 4)):
                        p(f"v_add_u32 v{r}, {hx((w1-w0)*65536)}, v{r}")
            for o in nxt[t]:
                p(o)
            if g == 34 and t == 3:
                p.wait_lg("csw")
                p("s_barrier")
                F.add(j, j + 4, sb)
            F.gap(j)
    assert F.done()


def p1_epilogue(p, vmode):
    for t in range(4):
        acc = vr(ACC + 16 * t, 16)
        A, B = vr(CSF + 4 * t, 4), vr(MU, 4)
        if vmode:
            A, B = B, A
        p(f"v_mfma_f32_32x32x16_bf16 {acc}, {A}, {B}, {acc}")
    RBC = 64
    if vmode:
        p(f"v_cndmask_b32 v118, 0, {vQ}, vcc")
        p(f"v_cvt_pk_bf16_f32 v119, v118, 0")
        p(f"v_lshlrev_b32 v119, 16, v119")
        p(f"v_sub_f32 v119, v118, v119")
        p(f"v_cvt_pk_bf16_f32 v84, v118, v119")
        p(f"v_and_b32 v120, 0xffff0000, v84")
        p(f"v_sub_f32 v120, v119, v120")
        p(f"v_cvt_pk_bf16_f32 v85, v120, 0")
        p("v_mov_b32 v86, 0")
        p("v_mov_b32 v87, 0")
        for k in range(4):
            p(f"v_mov_b32 v{88+k}, {sONE}")
        p(f"v_mfma_f32_32x32x16_bf16 {vr(RBC,16)}, v[84:87], v[88:91], 0")
        p("v_and_b32 v116, 31, v1")
        p("v_lshlrev_b32 v116, 5, v116")
        p("v_lshrrev_b32 v117, 5, v1")
        p("v_lshl_add_u32 v116, v117, 4, v116")
        p("v_add_u32 v117, 18432, v116")
    else:
        p("v_lshlrev_b32 v116, 4, v1")
    p(f"s_lshl_b32 {sXB}, {sI}, 2")
    p(f"s_add_u32 {sXB}, {sXB}, {sW}")
    p(f"s_mul_i32 {sXB}, {sXB}, {36864 if vmode else 144*512}")
    p(f"s_add_u32 {sXB}, {sXB}, {hx(VT - 36*1024 if vmode else QK)}")
    for t in range(4):
        a = ACC + 16 * t
        p(f"s_add_u32 {sT0}, {sW}, {t}")
        p(f"s_and_b32 {sT0}, {sT0}, 3")
        p(f"s_lshl_b32 {sT1}, {sJ}, 2")
        p(f"s_add_u32 {sT0}, {sT0}, {sT1}")
        if vmode:
            for k in range(0, 16, 2):
                p(f"v_pk_mul_f32 {vr(a+k,2)}, {vr(a+k,2)}, {vr(RBC+k,2)}")
            p(f"s_lshl_b32 {sT1}, {sT0}, 10")
        else:
            p(f"s_cmp_lt_u32 {sT0}, 18")
            p(f"s_cselect_b32 {sT1}, {hx(f2u(QSCALE))}, 1.0")
            p(f"v_mul_f32 v118, {sT1}, {vQ}")
            for k in range(0, 16, 2):
                p(f"v_pk_mul_f32 {vr(a+k,2)}, {vr(a+k,2)}, v[118:119] op_sel_hi:[1,0]")
            p(f"s_lshl_b32 {sT1}, {sT0}, 11")
        for k in range(8):
            p(f"v_cvt_pk_bf16_f32 v{a+k}, v{a+2*k}, v{a+2*k+1}")
        p(f"s_add_u32 {sT1}, {sT1}, {sXB}")
        if vmode:
            p(f"s_cmp_lt_u32 {sT0}, 54")
            p(f"s_cselect_b32 {sT1}, {sT1}, {hx(OOB)}")
            p(f"buffer_store_dwordx4 {vr(a,4)}, v116, {WS}, {sT1} offen sc1")
            p(f"buffer_store_dwordx4 {vr(a+4,4)}, v117, {WS}, {sT1} offen sc1")
        else:
            p(f"buffer_store_dwordx4 {vr(a,4)}, v116, {WS}, {sT1} offen sc1")
            p(f"buffer_store_dwordx4 {vr(a+4,4)}, v116, {WS}, {sT1} offen offset:1024 sc1")
```

```python
from common import *
from pf import scalar_prefetch

sB, sU, sH, sG0, sO2, sT0, sT1, sKO, sVO = "s57", "s58", "s59", "s60", "s61", "s53", "s54", "s55", "s56"
sA, sB2 = "s62", "s63"
KA, VA = 0, 80
vLN, vV0, vV1, vPL = "v2", "v3", "v4", "v5"
QF = 16
CD, CO = 32, 48
SB = 64
PB = 96
OA = 112
vM0, vM1 = "v10", "v11"
HI = "0xffffffff00000000"
NEG_INF = 0xFF800000


def exec_lo(p):
    p("s_mov_b32 exec_hi, 0")


def exec_hi(p):
    p("s_mov_b64 exec, -1")
    p("s_mov_b32 exec_lo, 0")


def exec_all(p):
    p("s_mov_b64 exec, -1")


def p2_ids(p):
    p(f"s_and_b32 {sB}, {sL}, 3")
    p(f"s_lshl_b32 {sT0}, {sX}, 2")
    p(f"s_add_u32 {sB}, {sB}, {sT0}")
    p(f"s_lshr_b32 {sU}, {sL}, 2")
    p(f"s_lshl_b32 {sH}, {sU}, 2")
    p(f"s_add_u32 {sH}, {sH}, {sW}")
    p(f"s_mul_i32 {sG0}, {sH}, 18")
    p(f"s_lshr_b32 {sG0}, {sG0}, 3")
    p(f"s_and_b32 {sO2}, {sH}, 3")
    p(f"v_lshlrev_b32 {vLN}, 4, v1")


def p2_setup(p):
    p("v_and_b32 v6, 0x13, v1")
    p("v_bfe_u32 v7, v1, 2, 1")
    p("v_lshl_add_u32 v6, v7, 3, v6")
    p("v_bfe_u32 v7, v1, 3, 1")
    p("v_lshl_add_u32 v6, v7, 2, v6")
    p("v_lshrrev_b32 v7, 5, v1")
    p("v_lshlrev_b32 v8, 4, v7")
    p(f"v_lshl_add_u32 {vV0}, v6, 5, v8")
    p(f"v_add_u32 {vV1}, 18432, {vV0}")
    p("v_and_b32 v6, 31, v1")
    p("v_lshlrev_b32 v7, 2, v7")
    p("v_sub_u32 v6, v6, v7")
    p(f"v_mov_b32 v8, {hx(NEG_INF)}")
    p("v_mov_b32 v9, 0")
    for r in range(16):
        c = 8 * (r // 4) + r % 4
        p(f"v_cmp_le_i32 vcc, {c}, v6")
        p(f"v_cndmask_b32 v{CD+r}, v8, v9, vcc")
        p(f"v_cndmask_b32 v{CO+r}, v9, v8, vcc")
    p("v_and_b32 v6, 27, v1")
    p("v_cmp_eq_u32 vcc, 18, v6")
    p(f"v_mov_b32 v7, {sONE}")
    p("v_cndmask_b32 v6, 0, v7, vcc")
    p("s_mov_b32 exec_lo, 0xfffc0000")
    p("s_mov_b32 exec_hi, 0xfffc0000")
    for r in range(80):
        p(f"v_accvgpr_write_b32 a{VA+r}, v6")
    exec_hi(p)
    p(f"s_lshl_b32 {sT0}, {sB}, 1")
    for k in range(10):
        p(f"s_cmp_ge_u32 {sT0}, {max(8-k,0)}")
        p(f"s_cselect_b32 {sT1}, 0x3f800000, 0x3f80ff80")
        p(f"v_accvgpr_write_b32 a{KA+8*k+4}, {sT1}")
        p(f"v_accvgpr_write_b32 a{KA+8*k+5}, {sONE}")
        p(f"v_accvgpr_write_b32 a{KA+8*k+6}, 0")
        p(f"v_accvgpr_write_b32 a{KA+8*k+7}, 0")
    for a in range(2):
        p(f"v_mov_b32 v{QF+8*a+4}, 0x3f80")
        for r in range(5, 8):
            p(f"v_mov_b32 v{QF+8*a+r}, 0")
    exec_all(p)
    p("v_mul_u32_u24 v6, 43, v1")
    p("v_lshrrev_b32 v6, 8, v6")
    p("v_mul_u32_u24 v7, 6, v6")
    p("v_sub_u32 v7, v1, v7")
    p(f"s_lshr_b32 {sT0}, {sB}, 1")
    p(f"v_sub_u32 v6, {sT0}, v6")
    p("v_max_i32 v6, 0, v6")
    p("v_lshrrev_b32 v8, 1, v7")
    p("v_mul_u32_u24 v8, 576, v8")
    p("v_and_b32 v7, 1, v7")
    p("v_mul_u32_u24 v7, 71, v7")
    p(f"s_mul_i32 {sT0}, {sU}, 72")
    p(f"v_add3_u32 v7, v7, v8, {sT0}")
    p("v_lshrrev_b32 v7, 7, v7")
    p("v_lshlrev_b32 v7, 3, v7")
    p(f"v_mul_u32_u24 v6, {FS}, v6")
    p(f"s_mov_b32 {sT0}, {hx(F1)}")
    p(f"v_add3_u32 {vPL}, v6, v7, {sT0}")


sQ0, sQ1 = "s48", "s49"


def load_bases(p):
    p(f"s_mul_i32 {sQ0}, {sB}, {2*144}")
    p(f"s_add_u32 {sQ0}, {sQ0}, {sG0}")
    p(f"s_lshl_b32 {sQ0}, {sQ0}, 9")
    p(f"s_add_u32 {sQ0}, {sQ0}, {hx(QK)}")
    p(f"s_add_u32 {sQ1}, {sQ0}, {144*512}")
    p(f"s_add_u32 {sKO}, {sQ0}, {hx(72*512 - 8*144*512)}")
    p(f"s_mul_i32 {sVO}, {sB}, {2*36864}")
    p(f"s_mul_i32 {sA}, {sH}, {18*32}")
    p(f"s_add_u32 {sVO}, {sVO}, {sA}")
    p(f"s_add_u32 {sVO}, {sVO}, {hx(VT - 8*36864)}")
    p(f"s_lshl_b32 {sB2}, {sB}, 1")


def qk_loads(p):
    def koff(k):
        p(f"s_add_u32 {sA}, {sKO}, {k*144*512}")
        if k < 8:
            p(f"s_cmp_ge_u32 {sB2}, {8-k}")
            p(f"s_cselect_b32 {sA}, {sA}, {hx(OOB)}")

    p(f"buffer_load_dwordx4 {vr(QF,4)}, {vLN}, {WS}, {sQ0} offen sc1")
    exec_lo(p)
    p(f"buffer_load_dwordx4 {vr(QF+4,4)}, {vLN}, {WS}, {sQ0} offen offset:1024 sc1")
    exec_all(p)
    for k in range(10):
        koff(k)
        p(f"buffer_load_dwordx4 {ar(KA+8*k,4)}, {vLN}, {WS}, {sA} offen sc1")
        exec_lo(p)
        p(f"buffer_load_dwordx4 {ar(KA+8*k+4,4)}, {vLN}, {WS}, {sA} offen offset:1024 sc1")
        exec_all(p)
        if k == 8:
            p(f"buffer_load_dwordx4 {vr(QF+8,4)}, {vLN}, {WS}, {sQ1} offen sc1")
            exec_lo(p)
            p(f"buffer_load_dwordx4 {vr(QF+12,4)}, {vLN}, {WS}, {sQ1} offen offset:1024 sc1")
            exec_all(p)


def v_loads():
    o = []
    for k in range(10):
        x = [f"s_add_u32 {sA}, {sVO}, {k*36864}"]
        if k < 8:
            x += [f"s_cmp_ge_u32 {sB2}, {8-k}", f"s_cselect_b32 {sA}, {sA}, {hx(OOB)}"]
        x += ["s_mov_b32 exec_lo, 0x3ffff", "s_mov_b32 exec_hi, 0x3ffff",
              f"buffer_load_dwordx4 {ar(VA+8*k,4)}, {vV0}, {WS}, {sA} offen sc1",
              f"buffer_load_dwordx4 {ar(VA+8*k+4,4)}, {vV1}, {WS}, {sA} offen sc1", "s_mov_b64 exec, -1"]
        o.append("\n".join(x))
    return o


def q_mask(p, a):
    q = QF + 8 * a
    exec_lo(p)
    for d in range(3):
        p(f"s_cmp_gt_u32 {sO2}, {d}")
        p(f"s_cselect_b32 {sT0}, 0, -1")
        p(f"v_and_b32 v{q+d}, {sT0}, v{q+d}")
    for d in range(1, 4):
        p(f"s_cmp_ge_u32 {sO2}, {d}")
        p(f"s_cselect_b32 {sT0}, -1, 0")
        p(f"v_and_b32 v{q+4+d}, {sT0}, v{q+4+d}")
    exec_all(p)


def s_mfmas(a, bi):
    k = a + bi
    s = vr(SB + 16 * (bi & 1), 16)
    c = vr(CO, 16) if bi == 0 else (vr(CD, 16) if bi == 8 else "0")
    q = QF + 8 * a
    return [f"v_mfma_f32_32x32x16_bf16 {s}, {ar(KA+8*k,4)}, {vr(q,4)}, {c}",
            f"v_mfma_f32_32x32x16_bf16 {s}, {ar(KA+8*k+4,4)}, {vr(q+4,4)}, {s}"]


def pass1(p, a, fill):
    for o in s_mfmas(a, 0):
        p(o)
    for bi in range(9):
        s = SB + 16 * (bi & 1)
        if bi < 8:
            for o in s_mfmas(a, bi + 1):
                p(o)
        if fill and (bi % 2 == 0):
            p(fill.pop(0))
        for k in range(8):
            m = vM0 if k % 2 == 0 else vM1
            if bi == 0 and k < 2:
                p(f"v_max_f32 {m}, v{s+2*k}, v{s+2*k+1}")
            else:
                p(f"v_max3_f32 {m}, v{s+2*k}, v{s+2*k+1}, {m}")
    p(f"v_max_f32 {vM0}, {vM0}, {vM1}")
    xhalf(p, "v_max_f32", vM0, vM1)
    q = QF + 8 * a + 4
    p(f"v_sub_f32 {vM0}, 0, {vM0}")
    p(f"v_cvt_pk_bf16_f32 v12, {vM0}, {vM0}")
    p(f"v_and_b32 v12, 0xffff0000, v12")
    p(f"v_sub_f32 v13, {vM0}, v12")
    p(f"v_cvt_pk_bf16_f32 v14, v13, v13")
    p(f"v_and_b32 v14, 0xffff0000, v14")
    p(f"v_sub_f32 v14, v13, v14")
    exec_hi(p)
    p(f"v_or_b32 v{q}, 0x3f80, v12")
    p(f"v_cvt_pk_bf16_f32 v{q+1}, v13, v14")
    exec_all(p)


def pv_mfmas(a, bi):
    k = a + bi
    o = vr(OA + 16 * a, 16)
    pb = PB + 8 * (bi & 1)
    return [f"v_mfma_f32_32x32x16_bf16 {o}, {ar(VA+8*k,4)}, {vr(pb,4)}, {'0' if bi == 0 else o}",
            f"v_mfma_f32_32x32x16_bf16 {o}, {ar(VA+8*k+4,4)}, {vr(pb+4,4)}, {o}"]


FJ = [(0, 1, 2)]
SN = [1]


def pass2(p, a, fill=None, sfill=None):
    fill = fill if fill is not None else []
    for o in s_mfmas(a, 0):
        p(o)
    for bi in range(9):
        s = SB + 16 * (bi & 1)
        pb = PB + 8 * (bi & 1)
        mf = (s_mfmas(a, bi + 1) if bi < 8 else [None, None]) + (pv_mfmas(a, bi - 1) if bi > 0 else [None, None])
        ex = lambda r: p(f"v_exp_f32 v{s+r}, v{s+r}")
        cv = lambda k: p(f"v_cvt_pk_bf16_f32 v{pb+k}, v{s+2*k}, v{s+2*k+1}")
        plan = [([0, 1, 2, 3], []), ([4, 5, 6, 7, 8], [0]), ([9, 10, 11, 12], [1, 2, 3]), ([13, 14, 15], [4, 5, 6, 7])]
        for j in range(4):
            if mf[j]:
                p(mf[j])
            if fill and j in FJ[0]:
                p(fill.pop(0))
            for _ in range(SN[0] if j != 3 else 0):
                if sfill:
                    p(sfill.pop(0))
            es, cs = plan[j]
            if j == 3:
                for r in es:
                    ex(r)
                for k in cs:
                    cv(k)
            else:
                for k in cs:
                    cv(k)
                for r in es:
                    ex(r)
    for o in pv_mfmas(a, 8):
        p(o)


def o_store(p, a):
    o = OA + 16 * a
    p(f"v_rcp_f32 v12, v{o+10}")
    p(f"s_lshl_b32 {sT0}, {sB}, 1")
    p(f"s_add_u32 {sT0}, {sT0}, {a}")
    p(f"s_mul_i32 {sT0}, {sT0}, 36")
    p(f"s_add_u32 {sT1}, {sT0}, {sH}")
    p(f"s_lshl_b32 {sT1}, {sT1}, 10")
    p(f"s_add_u32 {sT1}, {sT1}, {hx(OB)}")
    for r in range(10):
        p(f"v_mul_f32 v{o+r}, v{o+r}, v12")
    for k in range(5):
        p(f"v_cvt_pk_bf16_f32 v{o+k}, v{o+2*k}, v{o+2*k+1}")
    for k in range(5):
        p(f"v_min_u32 v{o+k}, {CLEAN}, v{o+k}")
    p(f"buffer_store_dwordx4 {vr(o,4)}, {vLN}, {WS}, {sT1} offen sc1")
    p(f"s_add_u32 {sT0}, {sT0}, 32")
    p(f"s_lshl_b32 {sT0}, {sT0}, 10")
    p(f"s_lshr_b32 {sT1}, {sH}, 2")
    p(f"s_lshl_b32 {sT1}, {sT1}, 9")
    p(f"s_add_u32 {sT0}, {sT0}, {sT1}")
    p(f"s_lshl_b32 {sT1}, {sO2}, 2")
    p(f"s_add_u32 {sT0}, {sT0}, {sT1}")
    p(f"s_add_u32 {sT0}, {sT0}, {hx(OB)}")
    exec_lo(p)
    p(f"buffer_store_dword v{o+4}, {vLN}, {WS}, {sT0} offen sc1", tag="out")
    exec_all(p)


def publish(p):
    L = p.label("f2")
    p(f"s_cmp_lg_u32 {sW}, 0")
    p(f"s_cbranch_scc1 {L}")
    s = p.side_begin()
    p(f"s_mul_i32 {sT0}, {sB}, {FS}")
    p(f"s_lshl_b32 {sT1}, {sU}, 4")
    p(f"s_add_u32 {sT0}, {sT0}, {sT1}")
    p(f"s_add_u32 {sT0}, {sT0}, {F2}")
    set_flag(p, "v62", "v63", sT0)
    p.side_end(s)
    p(f"{L}:")


def p2(p, st, opts, fill):
    load_bases(p)
    L = p.label("p2go")
    p(f"s_cmp_lg_u32 {sW}, 0")
    p(f"s_cbranch_scc1 {L}")
    s = p.side_begin()
    poll(p, vPL, "v6", 18)
    p.side_end(s)
    p(f"{L}:")
    p("s_barrier")
    st(p, "f1seen")
    qk_loads(p)
    st(p, "p2ld")
    vl = v_loads()
    q_mask(p, 0)
    pass1(p, 0, vl)
    q_mask(p, 1)
    pass1(p, 1, vl)
    assert not vl
    st(p, "pass1")
    p("v_lshrrev_b32 v6, 4, v1")
    p(f"v_lshl_add_u32 v6, {sW}, 2, v6")
    p(f"v_mul_u32_u24 v6, {FS}, v6")
    p("v_and_b32 v7, 15, v1")
    p("v_min_u32 v7, 13, v7")
    p("v_lshl_add_u32 v6, v7, 3, v6")
    p(f"v_add_u32 v8, {hx(F1)}, v6")
    p(f"buffer_load_dword v9, v8, {WS}, 0 offen sc1")
    n = opts.get("n2", 45)
    FJ[0] = (0, 1, 2) if n > 36 else ((0, 2) if n > 18 else (1,))
    mine = fill[:n]
    del fill[:n]
    sf = scalar_prefetch(opts.get("spf", ""))
    SN[0] = (len(sf) + 53) // 54
    pass2(p, 0, mine, sf)
    o_store(p, 0)
    pass2(p, 1, mine, sf)
    assert not sf
    assert not mine
    o_store(p, 1)
    st(p, "p2e")
    ok = p.label("allf1")
    p("v_cmp_gt_u32 vcc, 1, v9")
    p("s_nop 1")
    p(f"s_cbranch_vccz {ok}")
    s = p.side_begin()
    poll(p, "v8", "v9", 64)
    p.side_end(s)
    p(f"{ok}:")
    p("s_barrier")
```

```python
from common import *
from pf import weight_prefetch
from sched import Filler
from sg import gelu_ops, interleave, GK, emit_some

sI, sMm, sC, sFO, sFH, sT0, sT1, sLW, sDA, sDB, sPB, sFL, sT2, sCNT = (
    "s48", "s49", "s50", "s51", "s26", "s27", "s3", "s10", "s56", "s57", "s58", "s59", "s60", "s61")
vLN, vF6, vF68, vH0, vZ = "v2", "v3", "v4", "v5", "v6"
AB = 8
DO = 16
vCA, vCB = "v25", "v26"
GT = 27
vHS = 31
ID0, ID1, IDX = 32, 36, 40
vFL, vFL8, vFLb = "v44", "v45", "v62"
ST = 46
ACC = [80, 96, 64]
ACC8 = 112
CV = [128, 136]
XB = 112
HB_ = 0
AFR, NAF = 72, 7
PL = 100
PL8 = PL + 17 * 8
SLOT = 36864
PD = NAF - 1
NT = ['', '']
SCR = [7]
HALF = [1]
LOCAL = [0]
OST = ['']
sSC = 's67'
sF7 = 's68'
vP2 = 'v7'
sXO, sXB = 's52', 's55'
vBAD = 'v63'
sSB0, sSB1, sGA, sGM, sPA = 's12', 's13', 's14', 's11', 's15'
vONE = 'v31'


def ids(p):
    p(f"s_and_b32 {sMm}, {sL}, 1")
    p(f"s_lshl_b32 {sT0}, {sX}, 1")
    p(f"s_add_u32 {sMm}, {sMm}, {sT0}")
    p(f"s_lshr_b32 {sI}, {sL}, 1")
    p(f"s_mov_b32 {sC}, {sX}")
    p(f"s_mul_i32 {sFO}, {sMm}, 288")
    p(f"s_bitcmp1_b32 {sMm}, 0")
    p(f"s_cselect_b32 {sT0}, 0, 256")
    p(f"s_cselect_b32 {sT1}, 32, 0")
    p(f"s_add_u32 {sFH}, {sFO}, {sT0}")
    p(f"s_add_u32 {sFO}, {sFO}, {sT1}")
    p(f"s_mul_i32 {sLW}, {sW}, 9216")
    srd(p, R_A, S_W3, 576 * 9216)
    srd(p, R_B, S_W4, 4608 * 1152)


def dma_pattern(p, kind):
    t, u = f"v{GT}", f"v{GT+1}"
    if kind == "half":
        p(f"v_lshrrev_b32 {t}, 2, v1")
        p(f"v_mul_u32_u24 {t}, 9216, {t}")
        p(f"v_and_b32 {u}, 3, v1")
        p(f"v_lshl_add_u32 v{DO}, {u}, 4, {t}")
        step = 16 * 9216
    else:
        stride = 9216 if kind == "w3" else 1152
        p(f"v_lshrrev_b32 {t}, 3, v1")
        p(f"v_mul_u32_u24 {t}, {stride}, {t}")
        p(f"v_bfe_u32 {u}, v1, 4, 1")
        p(f"v_lshlrev_b32 {u}, 2, {u}")
        p(f"v_xor_b32 {u}, {u}, v1")
        p(f"v_and_b32 {u}, 7, {u}")
        p(f"v_lshl_add_u32 v{DO}, {u}, 4, {t}")
        step = 8 * stride
    k0 = lambda k: k - 4 if (kind == "w4" and k >= 4) else k
    return [f"v_add_u32 v{DO+k}, {k0(k)*step - (k%4)*1024}, v{DO}" for k in range(1, 9)]


def stage_dma(tau):
    o = []
    slot = (tau % 4) * SLOT
    if tau == 0:
        o += [f"s_mul_i32 {sDA}, {sW}, {144*9216}", f"s_lshl_b32 {sT0}, {sFH}, 1", f"s_add_u32 {sDA}, {sDA}, {sT0}"]
        so = lambda k: sDA
        r = RA
    elif tau < 9:
        cc, kh = divmod(tau - 1, 2)
        o += [f"s_mul_i32 {sDA}, {sW}, {72*9216}", f"s_lshl_b32 {sT0}, {sFO}, 1", f"s_add_u32 {sDA}, {sDA}, {sT0}"]
        if kh or cc:
            o += [f"s_add_u32 {sDA}, {sDA}, {kh*288*9216 + cc*128}"]
        so = lambda k: sDA
        r = RA
    else:
        sg = tau - 9
        if sg == 0:
            o += [f"s_mov_b32 {sT0}, {8*128}"]
        else:
            o += [f"s_add_u32 {sT0}, {sC}, {sg}", f"s_and_b32 {sT0}, {sT0}, 7", f"s_lshl_b32 {sT0}, {sT0}, 7"]
        o += [f"s_add_u32 {sDA}, s62, {sT0}", f"s_add_u32 {sDB}, s63, {sT0}"]
        so = lambda k: sDA if k < 4 else sDB
        r = RB
    o = ["\n".join(o)]
    for k in range(9):
        if k % 4 == 0:
            o.append(f"s_add_u32 m0, {sLW}, {slot + k*1024}")
        o.append(f"buffer_load_dwordx4 v{DO+k}, {r}, {so(k)} offen offset:{(k%4)*1024} lds")
    return o


def w4_bases():
    return ["\n".join([f"s_sub_u32 s63, {sFO}, 32", f"s_cmp_eq_u32 {sW}, 0", f"s_cselect_b32 s62, {sFH}, s63",
                       f"s_mul_i32 {sT0}, {sW}, 72", f"s_add_u32 s62, s62, {sT0}", f"s_add_u32 s63, {sFO}, {sT0}",
                       f"s_mul_i32 s62, s62, 1152", f"s_mul_i32 s63, s63, 1152"])]


def emit_list(p, ops, tag):
    last = max(k for k, o in enumerate(ops) if o.startswith("buffer"))
    for k, o in enumerate(ops):
        p(o, tag=tag if k == last else None)


class Rec:
    def __init__(self):
        self.ops = []

    def __call__(self, text, tag=None):
        self.ops.append(text)


def tagged(ops, tag):
    last = max(k for k, o in enumerate(ops) if o.startswith("buffer"))
    return [(o, tag) if k == last else o for k, o in enumerate(ops)]


def prefill_ops():
    r = Rec()
    ids(r)
    o = ["\n".join(r.ops)]
    r = Rec()
    rest = dma_pattern(r, "half")
    o.append("\n".join(r.ops + rest))
    o += tagged(stage_dma(0), "st0")
    r = Rec()
    rest = dma_pattern(r, "w3")
    o.append("\n".join(r.ops + rest))
    for tau in (1, 2):
        o += tagged(stage_dma(tau), f"st{tau}")
    return o


def setup(p):
    t, u, d = f"v{GT}", f"v{GT+1}", f"v{GT+2}"
    p(f"v_bfe_u32 {t}, v1, 4, 1")
    p(f"v_lshlrev_b32 {t}, 5, {t}")
    p(f"v_and_b32 {u}, 1, v1")
    p(f"v_lshl_add_u32 {t}, {u}, 4, {t}")
    p(f"v_bfe_u32 {u}, v1, 1, 1")
    p(f"v_lshl_add_u32 {t}, {u}, 3, {t}")
    p(f"v_bfe_u32 {u}, v1, 2, 2")
    p(f"v_lshrrev_b32 {d}, 5, v1")
    p(f"v_lshl_add_u32 {u}, {d}, 3, {u}")
    p(f"v_lshl_add_u32 {vH0}, {u}, 6, {t}")
    p(f"v_lshl_add_u32 {t}, {u}, 7, {t}")
    p(f"v_bfe_u32 {u}, v1, 3, 1")
    p(f"v_lshl_add_u32 v{AB}, {u}, 6, {t}")
    p(f"v_xor_b32 v{AB+1}, 64, v{AB}")
    for s in range(1, 4):
        p(f"v_add_u32 v{AB+2*s}, {s*SLOT}, v{AB}")
        p(f"v_add_u32 v{AB+2*s+1}, {s*SLOT}, v{AB+1}")
    p(f"v_mov_b32 {vCA}, {hx(f2u(-GK))}")
    p(f"v_mov_b32 {vCB}, {hx(f2u(-GK*0.044715))}")
    p(f"v_and_b32 {t}, 0x13, v1")
    p(f"v_bfe_u32 {u}, v1, 2, 1")
    p(f"v_lshl_add_u32 {t}, {u}, 3, {t}")
    p(f"v_bfe_u32 {u}, v1, 3, 1")
    p(f"v_lshl_add_u32 {t}, {u}, 2, {t}")
    p(f"v_lshlrev_b32 {d}, 3, {d}")
    p(f"v_sub_u32 {t}, {t}, {d}")
    p(f"v_and_b32 {u}, 31, v1")
    p(f"v_mov_b32 v{ST}, 0x3f80")
    p(f"v_mov_b32 v{ST+1}, 0x3f800000")
    for base, src, sub in ((ID0, t, 0), (ID1, t, 16), (IDX, u, 0)):
        for k in range(4):
            p(f"v_cmp_eq_u32 vcc, {sub+2*k}, {src}")
            p(f"v_cndmask_b32 v{base+k}, 0, v{ST}, vcc")
            p(f"v_cmp_eq_u32 vcc, {sub+2*k+1}, {src}")
            p(f"v_cndmask_b32 v{base+k}, v{base+k}, v{ST+1}, vcc")
    p(f"v_min_u32 {u}, 16, v1")
    p(f"s_lshl_b32 {sFL}, {sI}, 6")
    p(f"s_add_u32 {sFL}, {sFL}, {sW}")
    p(f"s_lshl_b32 {sFL}, {sFL}, 7")
    p(f"s_add_u32 {sFL}, {sFL}, {F7}")
    p(f"s_lshl_b32 {sF7}, {sMm}, 2")
    p(f"s_add_u32 {sF7}, {sF7}, {sFL}")
    p(f"s_lshl_b32 {sT2}, {sMm}, 9")
    p(f"s_add_u32 {sT0}, {sFL}, {sT2}")
    p(f"v_lshl_add_u32 {vF6}, {u}, 2, {sT0}")
    p(f"v_lshlrev_b32 {vP2}, 9, v1")
    p(f"s_xor_b32 {sT2}, {sT2}, 512")
    p(f"s_add_u32 {sFL}, {sFL}, {sT2}")
    p(f"s_add_u32 {sFL}, {sFL}, 64")
    p(f"v_mov_b32 {vZ}, 0")
    p(f"s_mov_b32 {sCNT}, 0")
    p(f"s_lshl_b32 {sT0}, {sW}, 1")
    p(f"s_xor_b32 {sT0}, {sT0}, {sI}")
    p(f"s_and_b32 {sT0}, {sT0}, {SCR[0]}")
    p(f"s_lshl_b32 {sSC}, {sT0}, 12")
    p(f"s_mul_i32 {sPB}, {sI}, 72")
    p(f"s_add_u32 {sPB}, {sPB}, {sW}")
    p(f"s_lshl_b32 {sPB}, {sPB}, 15")
    p(f"s_add_u32 {sPB}, {sPB}, {hx(PART)}")
    p(f"s_lshl_b32 {sT0}, {sMm}, 11")
    p(f"s_xor_b32 {sT0}, {sT0}, {sSC}")
    p(f"s_add_u32 {sT0}, {sT0}, {sPB}")
    p(f"s_and_b32 {sT1}, {sMm}, 1")
    p(f"s_lshl_b32 {sT1}, {sT1}, 17")
    p(f"s_add_u32 {sSB1}, {sT0}, {sT1}")
    p(f"s_xor_b32 {sT1}, {sT1}, {1 << 17}")
    p(f"s_add_u32 {sSB0}, {sT0}, {sT1}")
    p(f"s_lshl_b32 {sT0}, {sMm}, 17")
    p(f"s_add_u32 {sPB}, {sPB}, {sT0}")
    p(f"v_mov_b32 {vONE}, 1")


def stat_poll(p):
    t = f"v{GT}"
    p(f"s_lshl_b32 {sT0}, {sI}, 2")
    p(f"s_add_u32 {sT0}, {sT0}, {sW}")
    p(f"s_lshl_b32 {sT1}, {sT0}, 12")
    p(f"s_add_u32 {sT1}, {sT1}, {hx(ST5)}")
    p(f"s_mul_i32 {sXB}, {sT0}, 36864")
    p(f"s_add_u32 {sXB}, {sXB}, {hx(X1)}")
    p(f"v_lshlrev_b32 {t}, 8, v1")
    p("s_mov_b64 exec, 0xffff")
    poll_data(p, lambda: p(f"buffer_load_dword v{GT+1}, {t}, {WS}, {sT1} offen sc1"), f"v{GT+1}")
    p("s_mov_b64 exec, -1")


def stat_loads(p):
    t = f"v{GT}"
    p(f"s_lshl_b32 {sT0}, {sI}, 2")
    p(f"s_add_u32 {sT0}, {sT0}, {sW}")
    p(f"s_lshl_b32 {sT1}, {sT0}, 12")
    p(f"s_add_u32 {sT1}, {sT1}, {hx(ST5)}")
    p(f"v_and_b32 {t}, 31, v1")
    p(f"v_lshlrev_b32 {t}, 3, {t}")
    p(f"v_lshrrev_b32 v{GT+1}, 5, v1")
    p(f"v_lshl_add_u32 {t}, v{GT+1}, 11, {t}")
    for k in range(8):
        p(f"buffer_load_dwordx2 {vr(ST+2*k,2)}, {t}, {WS}, {sT1} offen offset:{k*256} sc1")


def x_loads():
    o = []
    for s in range(36):
        x = f"buffer_load_dwordx4 {vr(XB+4*s,4)}, {vLN}, {WS}, {sXO} offen offset:{(s%4)*1024} sc1"
        if s % 4 == 0:
            x = f"s_add_u32 {sXO}, {sXB}, {s*1024}\n" + x
        o.append(x)
    return o


def check_ops(s):
    d = XB + 4 * s
    if s % 9 == 8:
        return [f"v_max3_u32 {vBAD}, v{d}, v{d+1}, {vBAD}", f"v_max3_u32 {vBAD}, v{d+2}, v{d+3}, {vBAD}"]
    return [f"v_max_u32 {vBAD}, v{d}, {vBAD}"]


vR, vNM = f"v{ST}", f"v{ST+1}"


def stats(p):
    R = ST
    p(f"v_max3_u32 {vBAD}, v{R}, v{R+2}, v{R+4}")
    p(f"v_max3_u32 {vBAD}, v{R+6}, v{R+8}, {vBAD}")
    p(f"v_max3_u32 {vBAD}, v{R+10}, v{R+12}, {vBAD}")
    p(f"v_max_u32 {vBAD}, v{R+14}, {vBAD}")
    for step in (8, 4, 2):
        for k in range(0, step, 2):
            p(f"v_add_f32 v{R+k}, v{R+k}, v{R+k+step}")
            p(f"v_add_f32 v{R+k+1}, v{R+k+1}, v{R+k+step+1}")
    S, Q = f"v{R}", f"v{R+1}"
    xhalf(p, "v_add_f32", S, f"v{R+2}")
    xhalf(p, "v_add_f32", Q, f"v{R+3}")
    p(f"v_mul_f32 v{R+2}, {hx(f2u(-1.0/576))}, {S}")
    p(f"v_mul_f32 {Q}, {hx(f2u(1.0/576))}, {Q}")
    p(f"v_fma_f32 {Q}, -v{R+2}, v{R+2}, {Q}")
    p(f"v_max_f32 {Q}, 0, {Q}")
    p(f"v_add_f32 {Q}, {hx(f2u(EPS))}, {Q}")
    p(f"v_rsq_f32 {vR}, {Q}")
    p(f"v_mul_f32 {vNM}, v{R+2}, {vR}")


def norm_ops(s):
    o = []
    for k in range(0, 4, 2):
        a, b = XB + 4 * s + k, XB + 4 * s + k + 1
        t = [ST + 2 + 4 * (k // 2) + j for j in range(4)]
        o += [f"v_lshlrev_b32 v{t[0]}, 16, v{a}", f"v_and_b32 v{t[1]}, 0xffff0000, v{a}",
              f"v_lshlrev_b32 v{t[2]}, 16, v{b}", f"v_and_b32 v{t[3]}, 0xffff0000, v{b}"]
        o += [f"v_fma_f32 v{x}, v{x}, {vR}, {vNM}" for x in t]
        o += [f"v_cvt_pk_bf16_f32 v{a}, v{t[0]}, v{t[1]}", f"v_cvt_pk_bf16_f32 v{b}, v{t[2]}, v{t[3]}"]
    return o


def gelu_list(acc, pos):
    o = []
    for e in range(0, 16, 2):
        x0, x1 = f"v{acc+e}", f"v{acc+e+1}"
        t0, t1 = f"v{GT+(e & 2)}", f"v{GT+1+(e & 2)}"
        o += interleave([gelu_ops(x0, t0, vCA, vCB), gelu_ops(x1, t1, vCA, vCB)])
        o += [f"v_cvt_pk_bf16_f32 {x0}, {x0}, {x1}"]
        o += [f"v_accvgpr_write_b32 a{HB_+8*pos+e//2}, {x0}"]
    return o


def part_store_list(acc, sg, par1, cv):
    o = [f"v_cvt_pk_bf16_f32 v{cv+k}, v{acc+2*k}, v{acc+2*k+1}" for k in range(8)]
    A = "s64"
    base = sSB1 if par1 else sSB0
    if sg == 0:
        q = [f"s_add_u32 {A}, {base}, {8 << 18}"]
    else:
        q = [f"s_add_u32 {A}, {sC}, {sg}", f"s_and_b32 {A}, {A}, 7", f"s_lshl_b32 {A}, {A}, 18",
             f"s_add_u32 {A}, {A}, {base}"]
    o = o[:4] + q + [(f"buffer_store_dwordx4 {vr(cv,4)}, {vLN}, {WS}, {A} offen sc1{NT[1]}", None)][:3 - 2 * HALF[0]] + o[4:]
    o += [(f"buffer_store_dwordx4 {vr(cv+4,4)}, {vLN}, {WS}, {A} offen offset:1024 sc1{NT[1]}", f"ps{sg}_{par1}")]
    return o


def flag_publish(p, val):
    p("s_mov_b64 exec, 1")
    p(f"buffer_store_dword {vONE}, {vZ}, {WS}, {sFL} offen sc1")
    p("s_mov_b64 exec, -1")


def pair_publish_ops(p, sg, tag):
    o = [f"s_add_u32 {sPA}, {sC}, {sg}", f"s_and_b32 {sPA}, {sPA}, 7", f"s_lshl_b32 {sPA}, {sPA}, 10",
         f"s_add_u32 {sPA}, {sPA}, {sF7}"]

    def fin():
        if tag:
            p.wait_vm(tag)
        if sg == 8:
            p(f"s_and_b32 {sT0}, {sMm}, 1")
            p(f"s_lshr_b32 exec_lo, 2, {sT0}")
            p("s_mov_b32 exec_hi, 0")
        else:
            p("s_mov_b64 exec, 3")
        p(f"buffer_store_dword {vONE}, {vP2}, {WS}, {sPA} offen sc1")
        p("s_mov_b64 exec, -1")
    fin.cost = 24
    return o + [fin]


def flag_load(p, dst, addr):
    p(f"buffer_load_dword {dst}, {addr}, {WS}, 0 offen sc1")


def flag_check(p, reg, addr, val, mask):
    lp, ok = p.label("fc"), p.label("fcok")
    p.wait_regs(reg)
    p(f"{lp}:")
    p(f"v_cmp_gt_u32 vcc, {val}, {reg}")
    p(f"s_and_b32 {sT1}, vcc_lo, {mask}")
    p(f"s_cbranch_scc0 {ok}")
    s = p.side_begin()
    p(f"s_add_u32 {sCNT}, {sCNT}, 1")
    p(f"s_cmp_gt_u32 {sCNT}, {SPIN_MAX}")
    p(f"s_cbranch_scc1 {ok}")
    flag_load(p, reg, addr)
    p("s_waitcnt vmcnt(0)")
    p(f"s_branch {lp}")
    p.side_end(s)
    p(f"{ok}:")


def group_ops(p, g, slot, fl, check=True, load=True):
    o = [f"s_add_u32 {sGA}, {sC}, {8-g}", f"s_and_b32 {sGA}, {sGA}, 7", f"s_lshl_b32 {sGM}, {sGA}, 1",
         f"s_lshl_b32 {sGM}, 3, {sGM}", f"s_lshl_b32 {sGA}, {sGA}, 12", f"s_xor_b32 {sGA}, {sGA}, {sSC}",
         f"s_add_u32 {sGA}, {sGA}, {sPB}" if not LOCAL[0] else f"s_mov_b32 {sGA}, {sXB}"]
    if check:
        chk = lambda: flag_check(p, fl, vF6, 1, sGM)
        chk.cost = 24
        o.append(chk)
    if load:
        for k in range(0, 4, HALF[0]):
            o.append(f"buffer_load_dwordx4 {ar(PL+8*slot+4*k,4)}, {vLN}, {WS}, {sGA} offen offset:{k*1024} sc1{NT[0]}")
    return o


def residual_loads():
    sT0, sT1 = 's0', 's1'
    o = [f"s_lshl_b32 {sT0}, {sI}, 2", f"s_add_u32 {sT0}, {sT0}, {sW}", f"s_mul_i32 {sT0}, {sT0}, 36",
         f"s_lshl_b32 {sT1}, {sMm}, 1", f"s_add_u32 {sT0}, {sT0}, {sT1}", f"s_lshl_b32 {sT0}, {sT0}, 10",
         f"s_add_u32 {sT1}, {sT0}, {hx(HB)}", f"s_add_u32 {sT0}, {sT0}, {hx(X1)}"]
    for j, s in enumerate((sT1, sT0)):
        for k in range(2):
            o.append(f"buffer_load_dwordx4 {ar(PL+8*(15+j)+4*k,4)}, {vLN}, {WS}, {s} offen offset:{k*1024} sc1")
    return o


vC8T, vC8P, vC8A = f"v{ST+2}", f"v{ST+3}", f"v{ST+4}"
sC8, sC8X = "s65", "s66"


def c8_setup():
    sT0, sT1 = 's0', 's1'
    t, u, a = vC8T, vC8P, vC8A
    o = [f"s_and_b32 {sT0}, {sW}, 1", f"s_lshl_b32 {sT0}, {sT0}, 5", f"s_lshr_b32 {sT1}, {sW}, 1",
         f"s_lshl_b32 {sT1}, {sT1}, 4", f"s_add_u32 {sT0}, {sT0}, {sT1}",
         f"v_and_b32 {t}, 15, v1", f"v_add_u32 {t}, {sT0}, {t}", f"v_lshlrev_b32 {t}, 4, {t}",
         f"v_lshrrev_b32 {u}, 5, v1",
         f"v_mov_b32 {a}, {hx(X1-HB)}", f"v_mul_lo_u32 {a}, {u}, {a}", f"v_add_u32 {a}, {a}, {t}",
         f"v_lshl_add_u32 {t}, {u}, 11, {t}",
         f"v_bfe_u32 {u}, v1, 4, 1", f"v_lshl_add_u32 {a}, {u}, 27, {a}",
         f"s_lshl_b32 {sT0}, {sI}, 2", f"s_lshr_b32 {sT1}, {sMm}, 2", f"s_add_u32 {sT0}, {sT0}, {sT1}",
         f"s_mul_i32 {sT0}, {sT0}, 36", f"s_and_b32 {sT1}, {sMm}, 3", f"s_add_u32 {sT0}, {sT0}, {sT1}",
         f"s_add_u32 {sT0}, {sT0}, 32", f"s_lshl_b32 {sT0}, {sT0}, 10", f"s_add_u32 {sT0}, {sT0}, {hx(HB)}",
         f"buffer_load_dwordx4 {ar(PL8+16,4)}, {a}, {WS}, {sT0} offen sc1",
         f"v_sub_u32 {u}, {sC}, {u}",
         f"s_mul_i32 {sT0}, {sI}, 18", f"s_bfe_u32 {sT1}, {sMm}, 0x10001", f"s_add_u32 {sT0}, {sT0}, {sT1}",
         f"s_add_u32 {sT0}, {sT0}, 16", f"s_lshl_b32 {sT0}, {sT0}, 2", f"s_lshr_b32 {sT1}, {sMm}, 2",
         f"s_add_u32 {sT0}, {sT0}, {sT1}", f"s_lshl_b32 {sT0}, {sT0}, 15", f"s_and_b32 {sT1}, {sMm}, 1",
         f"s_lshl_b32 {sT1}, {sT1}, 10", f"s_add_u32 {sT0}, {sT0}, {sT1}", f"s_add_u32 {sC8}, {sT0}, {hx(PART)}",
         f"s_lshr_b32 {sT1}, {sMm}, 2", f"s_lshl_b32 {sT1}, {sT1}, 1", f"s_xor_b32 {sT1}, {sT1}, {sI}",
         f"s_and_b32 {sC8X}, {sT1}, {SCR[0]}"]
    assert OOB == 1 << 27
    return o


def c8_load(k):
    a = vC8A
    return [f"v_add_u32 {a}, {16 - 2*k - 1}, {vC8P}", f"v_and_b32 {a}, 7, {a}", f"v_xor_b32 {a}, {sC8X}, {a}",
            f"v_lshl_add_u32 {a}, {a}, 12, {vC8T}",
            f"buffer_load_dwordx4 {ar(PL8+4*k,4)}, {a}, {WS}, {sC8} offen sc1"]


def build_sequence():
    seq = []
    for s in range(36):
        seq.append(dict(acc=ACC[0], first=s == 0, b=vr(XB + 4 * s, 4), base=vH0, off=(s * 1024, s * 1024 + 256), seg=0))
    for cc in range(4):
        for par in range(2):
            n = 1 + 2 * cc + par
            for s in range(36):
                slot = (1 + 2 * cc + s // 18) % 4
                o = (s % 18) * 2048
                seq.append(dict(acc=ACC[n % 2], first=s == 0, b=vr(XB + 4 * s, 4), base=f"v{AB+2*slot+par}",
                                off=(o, o + 512), seg=1 + cc))
    for sg in range(9):
        slot = (9 + sg) % 4
        if sg == 0:
            order = [(s, c) for s in range(18) for c in range(2)]
            accs = (ACC[1], ACC[2])
        else:
            order = [(s, c) for c in range(2) for s in range(18)]
            accs = (ACC[0], ACC[1])
        for s, c in order:
            seq.append(dict(acc=accs[c], first=s == 0, b=ar(HB_ + 4 * s, 4), base=f"v{AB+2*slot+c}",
                            off=(s * 2048, s * 2048 + 512), seg=5 + sg))
    return seq


def main_loop(p, st, opts):
    seq = build_sequence()
    N = len(seq)
    start = {}
    for j, e in enumerate(seq):
        start.setdefault(e["seg"], j)
    seg_stages = {0: [0], 1: [1, 2], 2: [3, 4], 3: [5, 6], 4: [7, 8]}
    for sg in range(9):
        seg_stages[5 + sg] = [9 + sg]
    dma_after = {1: [4], 2: [5, 6], 3: [7, 8], 4: [9, 10], 5: [11, 12]}
    for k in range(6, 11):
        dma_after[k] = [7 + k]
    swapped = [False]

    def rd(j):
        e = seq[j]
        if e["seg"] >= 5 and not swapped[0]:
            swapped[0] = True
            p(f"s_and_b32 {sT1}, {sMm}, 1")
            p(f"s_xor_b32 {sT1}, {sT1}, 1")
            p(f"s_lshl_b32 {sT1}, {sT1}, 6")
            for r in range(AB, AB + 8):
                p(f"v_xor_b32 v{r}, {sT1}, v{r}")
        d = AFR + 4 * (j % NAF)
        for q in range(2):
            p(f"ds_read_b64_tr_b16 {ar(d+2*q,2)}, {e['base']} offset:{e['off'][q]}")

    F = Filler(p)
    add = F.add
    for n in range(9):
        e = 36 * (n + 1)
        add(e + 2, e + (34 if n < 8 else 29), gelu_list(ACC[n % 2], n))
    for k, taus in dma_after.items():
        ops = []
        for tau in taus:
            if tau == 9:
                r = Rec()
                rest = dma_pattern(r, "w4")
                ops += r.ops + rest + w4_bases()
            ops += tagged(stage_dma(tau), f"st{tau}")
        add(start[k] - 3, start[k] + (opts.get("dma3", 50) if k < 5 else opts.get("dma4", 31)), ops)
    E0 = start[5]
    if opts.get("pf60"):
        pf0 = lambda: weight_prefetch(p, opts, opts["pf60"], V=64)
        add(26, 27, [pf0])
    opts.setdefault("pf6", "4")
    if opts.get("pf6"):
        pf = lambda: weight_prefetch(p, opts, opts["pf6"], V=64)
        pf.cost = 60
        add(start[2] + 55, start[2] + 60, [pf])
    add(E0 + 38, E0 + 45, part_store_list(ACC[1], 0, 0, CV[0]))
    add(E0 + 46, E0 + 52, part_store_list(ACC[2], 0, 1, CV[1]))
    for sg in range(1, 9):
        e = start[5 + sg]
        add(e + 20, e + 28, part_store_list(ACC[0], sg, 0, CV[0]))
        if sg < 8:
            add(e + 38, e + 46, part_store_list(ACC[1], sg, 1, CV[1]))
    add(start[7], start[7] + 30, residual_loads())
    nslot = 0
    LAG = opts.get("lag", 0)
    pubpos, ldpos, chkpos = opts.get("pubpos", 30), opts.get("ldpos", 12), opts.get("chkpos", 28)
    for sg in range(1, 9):
        e = start[5 + sg]
        PL_ = opts.get("publag", 0)
        ps = sg - 1 - PL_
        tag = None if opts.get("x_nopubwait") else f"ps{ps}_1"
        pp = pubpos if sg < 8 else opts.get("pub8", 24)
        if ps < 0:
            pass
        elif ps == 0:
            w0 = lambda tag=tag: p.wait_vm(tag) if tag else None
            w0.cost = 4
            add(e + 30, e + 31, [w0])
            add(e + 40, e + 44, [lambda: flag_publish(p, 1)])
        else:
            o = pair_publish_ops(p, ps, tag)
            add(e + pp - 8, e + pp - 1, o[:-1])
            add(e + pp, e + pp + 1, o[-1:])
        g = sg - 2 - LAG
        if g >= 1 and not opts.get("x_nochk"):
            fl = (vFL, vFLb)[g & 1]
            add(e + ldpos, e + ldpos + 1, [lambda fl=fl: flag_load(p, fl, vF6)])
            o = group_ops(p, g, nslot, fl, not opts.get("x_nospin"), not opts.get("x_noload"))
            add(e + chkpos - 12, e + chkpos - 1, o[:7])
            if g % 2 == 0:
                o += c8_load(g // 2 - 1)
            add(e + chkpos, min(e + chkpos + 9, N - 1), o[7:])
        if g >= 1:
            nslot += 2
    add(start[6] + 10, start[7] - 6, c8_setup())
    add(start[8], start[8] + 30, tail_setup())

    again = p.label("again6")
    p(f"{again}:")
    stat_loads(p)
    xl = x_loads()
    emit_some(p, xl, opts.get("xahead", 12))
    st(p, "xiss")
    for j in range(PD):
        rd(j)
    stats(p)
    for o in check_ops(0) + norm_ops(0):
        p(o)
    issued = PD
    bounds = sorted(start.values())[1:]
    for j, e in enumerate(seq):
        d = AFR + 4 * (j % NAF)
        acc = vr(e["acc"], 16)
        if opts.get("wait2", 1) and j % 2 == 0 and j + 1 < issued:
            p.wait_regs(ar(AFR + 4 * ((j + 1) % NAF), 4))
        p(f"v_mfma_f32_32x32x16_bf16 {acc}, {ar(d,4)}, {e['b']}, {'0' if e['first'] else acc}")
        nb = next((b for b in bounds if b > j), None)
        if nb is not None and j == nb - 4:
            p.wait_lg()
            for tau in seg_stages[seq[nb]["seg"]]:
                p.wait_vm(f"st{tau}")
            p("s_barrier")
            if st:
                st(p, f"seg{seq[nb]['seg']}")
        lim = min(j + PD, N - 1)
        if nb is not None and j < nb - 4:
            lim = min(lim, nb - 1)
        emit_some(p, xl, 1)
        if j < 31:
            for o in check_ops(j + 1):
                p(o)
        if j == 31:
            for s_ in range(32, 36):
                for o in check_ops(s_):
                    p(o)
            redo_if_poison(p, vBAD, again, sCNT)
        if j < 35:
            for o in norm_ops(j + 1):
                p(o)
        while issued <= lim:
            rd(issued)
            issued += 1
        F.gap(j)
    assert F.done()
    return nslot


vO8, vOM = f"v{ST+6}", f"v{ST+7}"
sO8, sOM, sPM, sPP = "s4", "s5", "s6", "s7"


def tail_setup():
    a, b, t = 's0', 's1', f"v{ST+8}"
    return [f"s_mov_b32 s{R_C}, s{S_OUT}\ns_mov_b32 s{R_C+1}, s{S_OUT+1}",
            f"s_mov_b32 s{R_C+2}, {2048*1152}\ns_mov_b32 s{R_C+3}, 0x20000",
            f"v_and_b32 {vO8}, 15, v1", f"v_mul_u32_u24 {vO8}, 1152, {vO8}", f"v_lshrrev_b32 {t}, 5, v1",
            f"v_lshl_add_u32 {vO8}, {t}, 3, {vO8}",
            f"v_and_b32 {vOM}, 31, v1", f"v_mul_u32_u24 {vOM}, 1152, {vOM}", f"v_lshl_add_u32 {vOM}, {t}, 4, {vOM}",
            f"s_lshl_b32 {a}, {sI}, 2", f"s_lshr_b32 {b}, {sMm}, 2", f"s_add_u32 {a}, {a}, {b}",
            f"s_lshl_b32 {a}, {a}, 1", f"s_lshr_b32 {b}, {sW}, 1", f"s_add_u32 {a}, {a}, {b}",
            f"s_mul_i32 {a}, {a}, {16*1152}", f"s_and_b32 {b}, {sMm}, 3", f"s_lshl_b32 {b}, {b}, 5",
            f"s_add_u32 {a}, {a}, {b}", f"s_and_b32 {b}, {sW}, 1", f"s_lshl_b32 {b}, {b}, 4",
            f"s_add_u32 {sO8}, {a}, {b}",
            f"s_lshl_b32 {a}, {sI}, 2", f"s_add_u32 {a}, {a}, {sW}", f"s_mul_i32 {a}, {a}, 36864",
            f"s_lshl_b32 {b}, {sMm}, 6", f"s_add_u32 {sOM}, {a}, {b}",
            f"s_xor_b32 {a}, {sMm}, 1", f"s_lshl_b32 {sPM}, 1, {a}", f"s_lshl_b32 {a}, {a}, 11",
            f"s_xor_b32 {a}, {a}, {sSC}", f"s_add_u32 {sPP}, {a}, {sPB}"]


def tail(p, st, nslot, opts):
    acc = vr(ACC[1], 16)
    run = lambda ops: [o() if callable(o) else p(o) for o in ops]

    def addp(slot):
        p(f"v_mfma_f32_32x32x16_bf16 {acc}, {vr(ID0,4)}, {ar(PL+8*slot,4)}, {acc}")
        p(f"v_mfma_f32_32x32x16_bf16 {acc}, {vr(ID1,4)}, {ar(PL+8*slot+4,4)}, {acc}")

    a8 = vr(ACC8, 16)

    def add8(k):
        p(f"v_mfma_f32_32x32x16_bf16 {a8}, {vr(IDX,4)}, {ar(PL8+4*k,4)}, {'0' if k == 4 else a8}")

    todo = [15, 16] + list(range(nslot))
    n0 = opts.get("t0", 3)
    pubs = [pair_publish_ops(p, g, f"ps{g}_1") for g in range(8 - opts.get("publag", 0), 8)]
    pubs.append(pair_publish_ops(p, 8, "ps8_0"))
    flag_load(p, vFLb, vF6)
    run(pubs[0][:-1])
    for s in todo[:n0]:
        addp(s)
    run(pubs[0][-1:])
    for o in pubs[1:]:
        run(o)
    flag_load(p, vFL, vF6)
    for g in range(nslot // 2 + 1, 8):
        ops = group_ops(p, g, 2 * (g - 1), vFLb)
        if g == 7:
            ops.insert(7, f"s_bitset1_b32 {sGM}, 16")
            ops += c8_load(3)
        elif g % 2 == 0:
            ops += c8_load(g // 2 - 1)
        run(ops)
    n1 = n0 + opts.get("t1", 5)
    for s in todo[n0:n1]:
        addp(s)
    flag_check(p, vFL, vF6, 1, sPM)
    for k in range(2):
        p(f"buffer_load_dwordx4 {ar(PL+8*14+4*k,4)}, {vLN}, {WS}, {sPP} offen offset:{k*1024} sc1")
    for s in todo[n1:]:
        addp(s)
    for k in (4, 0, 1, 2, 3):
        add8(k)
    for s in range(nslot, 14):
        addp(s)
    t = ST + 10
    for k in range(4):
        p(f"v_mov_b32 v{t+k}, v{ACC8+k}")
    for k in range(4):
        p(f"v_permlane16_swap_b32 v{ACC8+k}, v{t+k}")
    for k in range(4):
        p(f"v_add_f32 v{ACC8+k}, v{ACC8+k}, v{t+k}")
    addp(14)
    p(f"v_cvt_pk_bf16_f32 v{ACC8}, v{ACC8}, v{ACC8+1}")
    p(f"v_cvt_pk_bf16_f32 v{ACC8+1}, v{ACC8+2}, v{ACC8+3}")
    p("s_mov_b32 exec_lo, 0xffff")
    p("s_mov_b32 exec_hi, 0xffff")
    p(f"buffer_store_dwordx2 {vr(ACC8,2)}, {vO8}, {RC}, {sO8} offen offset:1024{OST[0]}")
    p("s_mov_b64 exec, -1")
    a = ACC[1]
    for h in range(2):
        for k in range(4 * h, 4 * h + 4):
            p(f"v_cvt_pk_bf16_f32 v{CV[0]+k}, v{a+2*k}, v{a+2*k+1}")
        p(f"buffer_store_dwordx4 {vr(CV[0]+4*h,4)}, {vOM}, {RC}, {sOM} offen offset:{32*h}{OST[0]}")


def p6(p, st, opts, left):
    HALF[0] = opts.get("x_half", 1)
    OST[0] = opts.get("ost", "")
    LOCAL[0] = opts.get("x_local", 0)
    SCR[0] = opts.get("scr", 7)
    NT[0] = " nt" if opts.get("ntld") else ""
    NT[1] = " nt" if opts.get("ntst") else ""
    emit_some(p, left, 99)
    emit_list(p, stage_dma(3), "st3")
    setup(p)
    p.wait_vm("st0")
    p("s_barrier")
    st(p, "p5")
    stat_poll(p)
    st(p, "f5seen")
    nslot = main_loop(p, st, opts)
    st(p, "mlp")
    tail(p, st, nslot, opts)
```

```python
from common import *


def weight_prefetch(p, opts, which, V=243, R=R_C):
    RC = sr(R, 4)
    if not which:
        return
    a, t, u = f"v{V+5}", f"v{V+6}", f"v{V+4}"
    p(f"v_lshlrev_b32 {a}, 7, v0")
    p("v_cmp_gt_u32 vcc, 162, v0")
    p(f"v_mov_b32 {t}, {hx(OOB)}")
    p(f"v_cndmask_b32 {a}, {t}, {a}, vcc")
    p(f"s_mul_i32 s0, {sL}, 20736")
    for ch in which:
        ptr = {"o": S_WO, "1": S_W1, "2": S_W2, "3": S_W3, "4": S_W4}[ch]
        srd(p, R, ptr, 576 * 9216 if ch in "34" else 576 * 1152)
        if ch == "3":
            p(f"v_mul_u32_u24 {u}, 57, v0")
            p(f"v_lshrrev_b32 {u}, 9, {u}")
            p(f"v_mul_u32_u24 {u}, {9216-1152}, {u}")
            p(f"v_add_u32 {u}, {u}, {a}")
            p(f"s_mul_i32 s1, {sL}, {18*9216}")
            p(f"s_mul_i32 s69, {sX}, 1152")
            p("s_add_u32 s1, s1, s69")
            p(f"buffer_load_dword {t}, {u}, {RC}, s1 offen")
        elif ch == "4":
            p(f"s_mul_i32 s1, {sX}, {576*1152}")
            p("s_add_u32 s1, s1, s0")
            p(f"buffer_load_dword v{V+3}, {a}, {RC}, s1 offen")
        else:
            p(f"buffer_load_dword v{V + 'o12'.index(ch)}, {a}, {RC}, s0 offen")


def packed_prefetch(p, mat, V):
    L = p.label("ppf")
    p(f"s_cmp_eq_u32 {sW}, 0")
    p(f"s_cbranch_scc1 {L}")
    p(f"v_subrev_u32 v{V}, 64, v0")
    p(f"v_min_u32 v{V}, 179, v{V}")
    p(f"v_lshlrev_b32 v{V}, 7, v{V}")
    p(f"s_mul_i32 s69, {sL}, {180*128}")
    p(f"s_add_u32 s69, s69, {hx(WP + mat*16*45*1024)}")
    n = p.vm.n
    p(f"buffer_load_dword v{V+1}, v{V}, {WS}, s69 offen sc1")
    p.vm.n = n
    p.vm.pend.pop(("v", V + 1))
    p(f"{L}:")


def scalar_prefetch(which):
    o = []
    for ch in which:
        if ch == "3":
            o.append(f"s_mul_i32 s0, {sL}, 18\ns_add_u32 s0, s0, {sW}\ns_mul_i32 s0, s0, 9216\ns_mul_i32 s1, {sX}, 1152\n"
                     f"s_add_u32 s0, s0, s1\ns_add_u32 s0, s0, s{S_W3}\ns_addc_u32 s1, s{S_W3+1}, 0")
            o += [f"s_load_dword s69, s[0:1], {r*9216 + k*128}" for r in (0, 4, 8, 12) for k in range(9)]
            o.append(f"s_mul_i32 s0, {sL}, 18\ns_lshr_b32 s1, {sW}, 1\ns_add_u32 s0, s0, s1\ns_add_u32 s0, s0, 16\n"
                     f"s_mul_i32 s0, s0, 9216\ns_mul_i32 s1, {sX}, 1152\ns_add_u32 s0, s0, s1\ns_and_b32 s1, {sW}, 1\n"
                     f"s_lshl_b32 s1, s1, 9\ns_add_u32 s0, s0, s1\ns_add_u32 s0, s0, s{S_W3}\ns_addc_u32 s1, s{S_W3+1}, 0")
            o += [f"s_load_dword s69, s[0:1], {k*128}" for k in range(5)]
        else:
            o.append(f"s_mul_i32 s0, {sX}, {576*1152}\ns_mul_i32 s1, {sL}, 20736\ns_add_u32 s0, s0, s1\n"
                     f"s_mul_i32 s1, {sW}, {40*128}\ns_add_u32 s0, s0, s1\ns_add_u32 s0, s0, s{S_W4}\n"
                     f"s_addc_u32 s1, s{S_W4+1}, 0")
            o += [f"s_load_dword s69, s[0:1], {k*128}" for k in range(42)]
    return o
```

```python
from common import *

sQ, sMAT, sG, sKH, sT0, sT1, sB = "s48", "s49", "s50", "s51", "s53", "s54", "s52"
T = 96
FR = 152


NPREP = 27


def prep_issue(p):
    p(f"s_mul_i32 {sMAT}, {sQ}, 57")
    p(f"s_lshr_b32 {sMAT}, {sMAT}, 9")
    p(f"s_mul_i32 {sKH}, {sMAT}, 9")
    p(f"s_sub_u32 {sKH}, {sQ}, {sKH}")
    p(f"s_cmp_eq_u32 {sMAT}, 1")
    p(f"s_cselect_b32 s{R_A}, s{S_W1}, s{S_W2}")
    p(f"s_cselect_b32 s{R_A+1}, s{S_W1+1}, s{S_W2+1}")
    p(f"s_cmp_eq_u32 {sMAT}, 0")
    p(f"s_cselect_b32 s{R_A}, s{S_WO}, s{R_A}")
    p(f"s_cselect_b32 s{R_A+1}, s{S_WO+1}, s{R_A+1}")
    p(f"s_mov_b32 s{R_A+2}, {576*1152}")
    p(f"s_mov_b32 s{R_A+3}, 0x20000")
    p(f"s_cselect_b32 {sT0}, 18, 16")
    p(f"s_lshl_b32 {sT1}, {sKH}, 2")
    p(f"s_add_u32 {sT1}, {sT1}, {sW}")
    p(f"s_mul_i32 {sB}, {sT1}, {sT0}")
    p(f"s_mul_i32 {sT0}, {sW}, 144")
    p(f"s_add_u32 {sT0}, {sT0}, 16")
    p(f"s_cmp_eq_u32 {sQ}, 8")
    p(f"s_cselect_b32 {sB}, {sT0}, {sB}")
    p(f"s_cselect_b32 s55, {16*1152}, 0")
    p(f"s_mul_i32 {sB}, {sB}, 1152")
    p(f"s_mul_i32 s56, {sW}, 18432")
    p(f"v_lshlrev_b32 v{T+2}, 4, v1")
    for k in range(18):
        p(f"v_add_u32 v{T}, {64*k}, v1")
        p(f"v_mul_u32_u24 v{T}, 3641, v{T}")
        p(f"v_lshrrev_b32 v{T}, 19, v{T}")
        p(f"s_add_u32 m0, s56, {k*1024}")
        p(f"v_mul_u32_u24 v{T}, s55, v{T}")
        p(f"v_add3_u32 v{T}, v{T}, v{T+2}, {sB}")
        p(f"buffer_load_dwordx4 v{T}, {RA}, 0 offen lds")
        p(f"s_add_u32 {sB}, {sB}, 1024")


def prep_finish(p, st):
    a, h, ln = f"v{T}", f"v{T+1}", "v2"
    p(f"v_lshrrev_b32 {a}, 5, v1")
    p(f"v_bfe_u32 v{T+2}, v1, 2, 2")
    p(f"v_lshl_add_u32 {a}, {a}, 3, v{T+2}")
    p(f"v_mul_u32_u24 {a}, 1152, {a}")
    p(f"v_and_b32 v{T+2}, 1, v1")
    p(f"v_lshl_add_u32 {a}, v{T+2}, 4, {a}")
    p(f"v_bfe_u32 v{T+2}, v1, 1, 1")
    p(f"v_lshl_add_u32 {a}, v{T+2}, 3, {a}")
    p(f"s_mul_i32 {sT0}, {sW}, 288")
    p(f"v_add_u32 {h}, {sT0}, {a}")
    p(f"v_bfe_u32 v{T+2}, v1, 4, 1")
    p(f"v_lshl_add_u32 {a}, v{T+2}, 5, {h}")
    for ks in range(4):
        for t in range(5):
            for q in range(2):
                p(f"ds_read_b64_tr_b16 {vr(FR+20*ks+4*t+2*q,2)}, {a if t < 4 else h} offset:{ks*18432+q*4608+t*64}")
    p(f"s_lshl_b32 {sB}, {sMAT}, 2")
    p(f"s_add_u32 {sB}, {sB}, {sW}")
    p(f"s_mul_i32 {sB}, {sB}, {4*45*1024}")
    p(f"s_add_u32 {sB}, {sB}, {hx(WP)}")
    p(f"s_lshl_b32 {sT0}, {sKH}, 12")
    p(f"s_add_u32 {sT0}, {sT0}, {sB}")
    p(f"s_add_u32 {sT0}, {sT0}, {9*1024}")
    for t in range(4):
        for ks in range(4):
            p(f"buffer_store_dwordx4 {vr(FR+20*ks+4*t,4)}, {ln}, {WS}, {sT0} offen offset:{ks*1024} sc1")
        p(f"s_add_u32 {sT0}, {sT0}, {45*1024}")
    p("s_mov_b32 exec_lo, 0xffff")
    p("s_mov_b32 exec_hi, 0xffff")
    for ks in range(4):
        p(f"s_lshl_b32 {sT0}, {sKH}, 2")
        p(f"s_add_u32 {sT0}, {sT0}, {ks}")
        p(f"s_mul_i32 {sT1}, {sT0}, 57")
        p(f"s_lshr_b32 {sT1}, {sT1}, 9")
        p(f"s_mul_i32 {sT1}, {sT1}, 36")
        p(f"s_add_u32 {sT0}, {sT0}, {sT1}")
        p(f"s_lshl_b32 {sT0}, {sT0}, 10")
        p(f"s_add_u32 {sT0}, {sT0}, {sB}")
        p(f"buffer_store_dwordx4 {vr(FR+20*ks+16,4)}, {ln}, {WS}, {sT0} offen sc1")
    p("s_mov_b64 exec, -1")


def w3_warm(p, first, count):
    srd(p, R_A, S_W3, 576 * 9216)
    a, t = f"v{T}", f"v{T+1}"
    p(f"v_bfe_u32 {a}, v0, 2, 3")
    p(f"v_mul_u32_u24 {a}, 9, {a}")
    p(f"v_and_b32 {t}, 3, v0")
    p(f"v_lshlrev_b32 {t}, 2, {t}")
    p(f"s_mov_b32 {sT0}, 0x1540")
    p(f"v_lshrrev_b32 {t}, {t}, {sT0}")
    p(f"v_and_b32 {t}, 15, {t}")
    p(f"v_add_u32 {a}, {a}, {t}")
    p(f"v_lshlrev_b32 {a}, 7, {a}")
    p(f"v_lshrrev_b32 {t}, 5, v0")
    p(f"v_mul_u32_u24 {t}, 9216, {t}")
    p(f"v_add_u32 {a}, {a}, {t}")
    p(f"v_and_b32 {t}, 3, v0")
    p(f"v_cmp_eq_u32 vcc, 3, {t}")
    p(f"s_mul_i32 {sT0}, {first}, 9216")
    for k in range(count // 8):
        d = f"v{T+2+k % 20}"
        if k == 0:
            p(f"v_bfe_u32 v{T+23}, v0, 5, 1")
            p(f"v_mul_u32_u24 v{T+23}, {5*128}, v{T+23}")
            p(f"v_lshrrev_b32 v{T+24}, 5, v0")
        p(f"v_add_u32 v{T+25}, {first}, v{T+24}")
        p(f"v_add_u32 v{T+25}, {8*k+1}, v{T+25}")
        p(f"v_lshrrev_b32 v{T+25}, 1, v{T+25}")
        p(f"v_mul_u32_u24 v{T+25}, 9216, v{T+25}")
        p(f"v_sub_u32 v{T+25}, v{T+23}, v{T+25}")
        p(f"v_cndmask_b32 v{T+25}, 0, v{T+25}, vcc")
        p(f"v_add3_u32 v{T+25}, v{T+25}, {a}, {sT0}")
        p(f"buffer_load_dword {d}, v{T+25}, {RA}, 0 offen")
        p(f"s_add_u32 {sT0}, {sT0}, {8*9216}")
```

```python
from common import *
from sched import Filler

sT, sG, sT0, sT1, sWP, sWS, sC = "s65", "s66", "s53", "s54", "s67", "s52", "s55"
sD0 = "s68"
vLN, vBQ, vPL, vSRC, vBB, vBAD = "v2", "v3", "v4", "v5", "v6", "v7"
sRC = "s64"
TMP = 8
ACC, ACCH, CS, CSH = 32, 48, 64, 80
BF, NBF = 96, 6
XR = 120
HK = 130
vMU, vR1, vR12 = "v139", "v140", "v141"
CSH2 = 142
PH = 144

L_B = 110592
L_ST = L_B + 36864
L_HP = L_ST + 4096


def wreg(ph, f):
    if ph == 4:
        return ar(4 * f, 4)
    return ar(180 + 4 * f, 4) if f < 19 else vr(152 + 4 * (f - 19), 4)


def sg_ids(p):
    p(f"s_lshr_b32 {sT}, {sL}, 2")
    p(f"s_lshl_b32 {sT0}, {sX}, 3")
    p(f"s_add_u32 {sT}, {sT}, {sT0}")
    p(f"s_and_b32 {sG}, {sL}, 3")
    p(f"s_lshl_b32 {sWP}, {sG}, 2")
    p(f"s_add_u32 {sWP}, {sWP}, {sW}")
    p(f"s_mul_i32 {sWP}, {sWP}, {45*1024}")
    p(f"s_add_u32 {sWP}, {sWP}, {hx(WP)}")


def w_loads(ph):
    o = []
    for f in range(45):
        x = f"buffer_load_dwordx4 {wreg(ph, f)}, {vLN}, {WS}, {sD0} offen offset:{(f%4)*1024} sc1"
        if f < 9:
            x = "s_mov_b32 exec_lo, 0xffff\ns_mov_b32 exec_hi, 0xffff\n" + x + "\ns_mov_b64 exec, -1"
        if f % 4 == 0:
            x = f"s_add_u32 {sD0}, {sWP}, {(ph-3)*16*45*1024 + f*1024}\n" + x
        o.append(x)
    return o


def emit_some(p, l, n):
    for _ in range(min(n, len(l))):
        x = l.pop(0)
        p(*x) if isinstance(x, tuple) else p(x)


def half_exchange(p, src, dst):
    p(f"s_lshl_b32 {sT0}, {sW}, 11")
    p(f"s_add_u32 {sT0}, {sT0}, {L_HP}")
    p(f"v_lshlrev_b32 v{TMP}, 3, v1")
    p(f"v_add_u32 v{TMP+1}, {sT0}, v{TMP}")
    for j in range(4):
        p(f"ds_write_b64 v{TMP+1}, {vr(src+2*j,2)} offset:{j*512}", tag="hx")


def half_collect_reads(p):
    p(f"s_lshl_b32 {sT0}, {sW}, 9")
    p(f"s_add_u32 {sT0}, {sT0}, {L_HP}")
    p(f"v_lshlrev_b32 v{TMP}, 3, v1")
    p(f"v_add_u32 v{TMP}, {sT0}, v{TMP}")
    for k in range(4):
        p(f"ds_read_b64 {vr(PH+2*k,2)}, v{TMP} offset:{k*2048}")


def half_sum(p, d0, d1):
    p(f"v_add_f32 v{PH}, v{PH}, v{PH+2}")
    p(f"v_add_f32 v{PH+1}, v{PH+1}, v{PH+3}")
    p(f"v_add_f32 v{PH+4}, v{PH+4}, v{PH+6}")
    p(f"v_add_f32 v{PH+5}, v{PH+5}, v{PH+7}")
    p(f"v_add_f32 {d0}, v{PH}, v{PH+4}")
    p(f"v_add_f32 {d1}, v{PH+1}, v{PH+5}")


def colsums(p):
    for k in range(4):
        p(f"v_mov_b32 v{BF+k}, {sONE}")
    for j in range(9):
        p(f"v_mfma_f32_32x32x16_bf16 {vr(CSH,16)}, {wreg(4, j)}, {vr(BF,4)}, {'0' if j == 0 else vr(CSH,16)}")
    for s in range(36):
        p(f"v_mfma_f32_32x32x16_bf16 {vr(CS,16)}, {wreg(4, 9+s)}, {vr(BF,4)}, {'0' if s == 0 else vr(CS,16)}")
        if s == 4:
            half_exchange(p, CSH, None)
        if s == 12:
            p.wait_lg()
            p("s_barrier")
            half_collect_reads(p)
        if s == 20:
            half_sum(p, f"v{CSH2}", f"v{CSH2+1}")


def poll_addr(p, ph):
    a, b = f"v{TMP}", f"v{TMP+1}"
    if ph == 3:
        p(f"s_mul_i32 {sT0}, {sW}, 9")
        p(f"v_add_u32 {a}, {sT0}, v1")
        p(f"v_lshlrev_b32 {a}, 10, {a}")
        p(f"v_subrev_u32 {b}, 16, v1")
        p(f"v_lshrrev_b32 {vPL}, 2, {b}")
        p(f"v_lshlrev_b32 {vPL}, 9, {vPL}")
        p(f"v_and_b32 {b}, 3, {b}")
        p(f"v_lshl_add_u32 {vPL}, {b}, 2, {vPL}")
        p(f"v_add_u32 {vPL}, 32768, {vPL}")
        p("v_cmp_gt_u32 vcc, 16, v1")
        p(f"s_mul_i32 {sT0}, {sT}, 36864")
        p(f"v_cndmask_b32 {vPL}, {vPL}, {a}, vcc")
        p(f"s_add_u32 {sT0}, {sT0}, {hx(OB)}")
        p(f"v_add_u32 {vPL}, {sT0}, {vPL}")
        return [f"s_cmp_eq_u32 {sW}, 3", "s_cselect_b32 exec_hi, 0xffff, 0", f"s_cselect_b32 {sT0}, 0xffff0000, 0",
                f"s_or_b32 exec_lo, {sT0}, 0x1ff"]
    if ph == 4:
        p(f"s_lshl_b32 {sT0}, {sT}, 2")
        p(f"s_add_u32 {sT0}, {sT0}, {sW}")
        p(f"s_lshl_b32 {sT0}, {sT0}, 10")
        p(f"s_add_u32 {sT0}, {sT0}, {hx(ST3)}")
        p(f"v_lshl_add_u32 {vPL}, v1, 8, {sT0}")
        return ["s_mov_b64 exec, 15"]
    p(f"s_sub_u32 {sT0}, {sT}, 1")
    p(f"s_max_i32 {sT0}, {sT0}, 0")
    p(f"s_add_u32 {sT1}, {sT}, 1")
    p(f"s_min_u32 {sT1}, {sT1}, 63")
    p(f"s_bitcmp1_b32 {sW}, 0")
    p(f"s_cselect_b32 {sT0}, {sT1}, {sT0}")
    p(f"s_sub_u32 {sT0}, {sT0}, {sT}")
    p(f"s_mul_i32 {sT0}, {sT0}, 36864")
    p(f"v_bfe_i32 {a}, v1, 2, 1")
    p(f"v_and_b32 {a}, {sT0}, {a}")
    p(f"v_and_b32 {b}, 3, v1")
    p(f"v_lshl_add_u32 {a}, {b}, 11, {a}")
    p(f"s_mul_i32 {sT0}, {sT}, 36")
    p(f"s_mul_i32 {sT1}, {sW}, 9")
    p(f"s_add_u32 {sT0}, {sT0}, {sT1}")
    p(f"s_add_u32 {sT0}, {sT0}, 1")
    p(f"s_lshl_b32 {sT0}, {sT0}, 10")
    p(f"s_add_u32 {sT0}, {sT0}, {hx(H1)}")
    p(f"v_add_u32 {vPL}, {sT0}, {a}")
    return ["s_mov_b64 exec, 0xff"]


def poison_ops(V, ln):
    import p2
    A, B = "s0", "s1"
    d = vr(V, 4)
    o = ["\n".join(f"v_mov_b32 v{V+k}, -1" for k in range(4))]
    o.append(f"s_mul_i32 {A}, {p2.sB}, 72\ns_add_u32 {A}, {A}, {p2.sH}\ns_lshl_b32 {A}, {A}, 10\n"
             f"s_add_u32 {A}, {A}, {hx(OB)}")
    o.append(f"buffer_store_dwordx4 {d}, {ln}, {WS}, {A} offen sc1")
    o.append(f"s_add_u32 {A}, {A}, 36864\nbuffer_store_dwordx4 {d}, {ln}, {WS}, {A} offen sc1")
    o.append(f"s_mul_i32 {B}, {sT}, 36\ns_mul_i32 {A}, {sG}, 9\ns_add_u32 {B}, {B}, {A}\ns_lshl_b32 {B}, {B}, 10\n"
             f"s_lshl_b32 {A}, {sW}, 11\ns_add_u32 {A}, {A}, {B}\ns_add_u32 {A}, {A}, {hx(HB)}")
    assert H1 - HB == X1 - H1
    for k in range(3):
        o.append(f"buffer_store_dwordx4 {d}, {ln}, {WS}, {A} offen sc1")
        o.append(f"buffer_store_dwordx4 {d}, {ln}, {WS}, {A} offen offset:1024 sc1"
                 + (f"\ns_add_u32 {A}, {A}, {hx(H1-HB)}" if k < 2 else ""))
    o.append(f"s_mul_i32 {A}, {sW}, {hx(H1-HB)}\ns_add_u32 {A}, {A}, {B}\ns_add_u32 {A}, {A}, {hx(HB+8192)}\n"
             f"s_lshl_b32 {B}, {sT}, 2\ns_add_u32 {B}, {B}, {sG}\ns_lshl_b32 {B}, {B}, 10\n"
             f"s_add_u32 {B}, {B}, {hx(ST3)}\ns_cmp_eq_u32 {sW}, 3\ns_cselect_b32 {A}, {B}, {A}")
    o.append(f"buffer_store_dwordx4 {d}, {ln}, {WS}, {A} offen sc1")
    o.append(f"s_lshl_b32 {A}, {sW}, 9\ns_add_u32 {B}, {B}, {A}\ns_add_u32 {B}, {B}, {hx(ST5-ST3-1024)}\n"
             f"s_lshl_b32 {A}, {p2.sB}, 1\ns_add_u32 {A}, {A}, {sW}\ns_mul_i32 {A}, {A}, 72\n"
             f"s_add_u32 {A}, {A}, {p2.sU}\ns_lshl_b32 {A}, {A}, 9\ns_add_u32 {A}, {A}, {hx(OB+32768)}\n"
             f"s_cmp_ge_u32 {sW}, 2\ns_cselect_b32 {A}, {B}, {A}")
    o.append(f"s_mov_b32 exec_hi, 0\nbuffer_store_dwordx4 {d}, {ln}, {WS}, {A} offen sc1\ns_mov_b64 exec, -1")
    return o


def b_src(p, ph):
    if ph != 5:
        p(f"s_mul_i32 {sWS}, {sT}, 36864")
        p(f"s_mul_i32 {sT0}, {sW}, 9216")
        p(f"s_add_u32 {sWS}, {sWS}, {sT0}")
        p(f"s_add_u32 {sWS}, {sWS}, {hx(OB if ph == 3 else HB)}")
        p(f"v_mov_b32 {vSRC}, {vLN}")
        return
    p(f"s_lshr_b32 {sT0}, {sW}, 1")
    p(f"s_add_u32 {sT0}, {sT0}, 1")
    p(f"s_sub_u32 {sT1}, 0, {sT0}")
    p(f"s_bitcmp1_b32 {sW}, 0")
    p(f"s_cselect_b32 {sT0}, {sT0}, {sT1}")
    p(f"s_lshl_b32 {sT1}, {sT}, 5")
    p(f"s_add_u32 {sT0}, {sT0}, {sT1}")
    p(f"v_and_b32 v{TMP}, 31, v1")
    p(f"v_add_u32 v{TMP}, {sT0}, v{TMP}")
    p(f"v_lshrrev_b32 v{TMP+1}, 5, v{TMP}")
    p(f"v_mul_u32_u24 v{TMP+1}, 36864, v{TMP+1}")
    p(f"v_and_b32 v{TMP+2}, 31, v{TMP}")
    p(f"v_lshl_add_u32 v{TMP+1}, v{TMP+2}, 4, v{TMP+1}")
    p(f"v_lshrrev_b32 v{TMP+2}, 5, v1")
    p(f"v_lshl_add_u32 v{TMP+1}, v{TMP+2}, 9, v{TMP+1}")
    p(f"v_mov_b32 v{TMP+2}, {hx(OOB)}")
    p(f"v_cmp_gt_u32 vcc, 2048, v{TMP}")
    p(f"v_cndmask_b32 {vSRC}, v{TMP+2}, v{TMP+1}, vcc")
    p(f"s_mul_i32 {sWS}, {sW}, 9216")
    p(f"s_add_u32 {sWS}, {sWS}, {hx(H1)}")


def b_dma(p, ph):
    p(f"s_mul_i32 {sT0}, {sW}, 9216")
    for j in range(9):
        if j % 4 == 0:
            p(f"s_add_u32 m0, {sT0}, {L_B + j*1024}")
            p(f"s_add_u32 {sT1}, {sWS}, {j*1024}")
        p(f"buffer_load_dwordx4 {vSRC}, {WS}, {sT1} offen offset:{(j%4)*1024} sc1 lds", tag="b")
    if ph == 4:
        p(f"s_lshl_b32 {sT0}, {sW}, 10")
        p(f"s_add_u32 m0, {sT0}, {L_ST}")
        p(f"s_lshl_b32 {sT1}, {sT}, 12")
        p(f"s_add_u32 {sT0}, {sT0}, {sT1}")
        p(f"s_add_u32 {sT0}, {sT0}, {hx(ST3)}")
        p(f"buffer_load_dwordx4 {vLN}, {WS}, {sT0} offen sc1 lds", tag="b")


def stats_consume(lds):
    a = f"v{TMP+2}"
    S, Q, t = f"v{TMP+4}", f"v{TMP+5}", f"v{TMP+3}"
    R = CSH
    o = [f"v_and_b32 {a}, 31, v1", f"v_lshlrev_b32 {a}, 3, {a}", f"v_lshrrev_b32 {t}, 5, v1",
         f"v_lshl_add_u32 {a}, {t}, 11, {a}", f"v_add_u32 {a}, {lds}, {a}"]
    o += [f"ds_read_b64 {vr(R+2*k,2)}, {a} offset:{k*256}" for k in range(8)]
    o += [None] * 3
    for k in range(4):
        o += [f"v_add_f32 v{R+4*k}, v{R+4*k}, v{R+4*k+2}", f"v_add_f32 v{R+4*k+1}, v{R+4*k+1}, v{R+4*k+3}"]
    for k in range(2):
        o += [f"v_add_f32 v{R+8*k}, v{R+8*k}, v{R+8*k+4}", f"v_add_f32 v{R+8*k+1}, v{R+8*k+1}, v{R+8*k+5}"]
    o += [f"v_add_f32 {S}, v{R}, v{R+8}", f"v_add_f32 {Q}, v{R+1}, v{R+9}"]
    o += [f"v_mov_b32 v{R}, {S}", f"v_mov_b32 v{R+1}, {Q}", None,
          f"v_permlane32_swap_b32 {S}, v{R}", f"v_permlane32_swap_b32 {Q}, v{R+1}",
          f"v_add_f32 {S}, {S}, v{R}", f"v_add_f32 {Q}, {Q}, v{R+1}",
          f"v_mul_f32 {vMU}, {hx(f2u(-1.0/576))}, {S}", f"v_mul_f32 {Q}, {hx(f2u(1.0/576))}, {Q}",
          f"v_fma_f32 {Q}, -{vMU}, {vMU}, {Q}", f"v_max_f32 {Q}, 0, {Q}",
          f"v_add_f32 {t}, {hx(f2u(EPS))}, {Q}", f"v_rsq_f32 {vR1}, {t}", None,
          f"v_mul_f32 {Q}, {Q}, {vR1}", f"v_mul_f32 {Q}, {Q}, {vR1}",
          f"v_add_f32 {Q}, {hx(f2u(EPS))}, {Q}", f"v_rsq_f32 {Q}, {Q}", None,
          f"v_mul_f32 {vR12}, {vR1}, {Q}"]
    return o


def residual_ops(ph):
    o = []
    if ph == 4:
        return o
    src = XR if ph == 3 else HK
    for k in range(9):
        o += [f"v_lshlrev_b32 v{CS+2*k}, 16, v{src+k}", f"v_and_b32 v{CS+2*k+1}, 0xffff0000, v{src+k}"]
    if ph == 5:
        o += [f"v_mul_f32 v{TMP+6}, {vMU}, {vR1}"]
        o += [f"v_fma_f32 v{CS+k}, v{CS+k}, {vR1}, v{TMP+6}" for k in range(18)]
    return o


def gemm(p, ph, nxt, opts, st, again):
    def rd(m):
        d = BF + 4 * (m % NBF)
        if m < 9:
            p(f"ds_read_b128 {vr(d,4)}, {vBQ} offset:{m*1024}")
        elif m < 45:
            p(f"ds_read_b128 {vr(d,4)}, {vBB} offset:{(m-9)*1024}")

    PD = NBF - 1
    BAR = opts.get("bar", 5)
    for m in range(PD):
        rd(m)
    p(f"v_mov_b32 {vBAD}, 0")
    if ph == 4:
        p(f"s_lshl_b32 {sT0}, {sW}, 10")
        p(f"s_add_u32 {sT0}, {sT0}, {L_ST}")
        p(f"v_add_u32 v{TMP}, {sT0}, {vLN}")
        p(f"ds_read_b128 {vr(PH,4)}, v{TMP}")
    F = Filler(p)
    n = opts.get(f"ng{ph}", opts.get("ng", 22))
    F.add(0, 43, [nxt.pop(0) for _ in range(min(n, len(nxt)))])
    F.add(0, 30, residual_ops(ph))
    if ph == 4:
        sc = stats_consume(L_ST)
        k = sc.index(None)
        F.add(10, 15, sc[:k])
        F.add(22, 43, [o for o in sc[k:] if o])
    issued = PD
    for m in range(45):
        d = BF + 4 * (m % NBF)
        if m % 2 == 0 and m + 1 < issued:
            p.wait_regs(vr(BF + 4 * ((m + 1) % NBF), 4))
        acc = vr(ACCH if m < 9 else ACC, 16)
        p(f"v_mfma_f32_32x32x16_bf16 {acc}, {wreg(ph, m)}, {vr(d,4)}, {'0' if m in (0, 9) else acc}")
        for mm in ([m] if m < BAR else (range(BAR, 9) if m == BAR else [])):
            dd = BF + 4 * (mm % NBF)
            if mm == 8 or (ph == 3 and mm >= 5):
                p(f"v_max3_u32 {vBAD}, v{dd}, v{dd+1}, {vBAD}")
                p(f"v_max3_u32 {vBAD}, v{dd+2}, v{dd+3}, {vBAD}")
            else:
                p(f"v_max_u32 {vBAD}, v{dd}, {vBAD}")
        if m == BAR:
            if ph == 4:
                p(f"v_max3_u32 {vBAD}, v{PH}, v{PH+2}, {vBAD}")
            redo_if_poison(p, vBAD, again, sRC)
            p("s_barrier")
            st(p, f"b{ph}")
        while issued <= min(m + PD, 44) and (issued < 9 or m >= BAR):
            rd(issued)
            issued += 1
        if m == 14:
            half_exchange(p, ACCH, None)
        if m == 19:
            p.wait_lg("hx")
            p("s_barrier")
            half_collect_reads(p)
        if m == 24:
            half_sum(p, f"v{ACCH}", f"v{ACCH+1}")
        F.gap(m)
    assert F.done()
    p("s_barrier")


GK = 2.0 * 0.7978845608028654 * 1.4426950408889634


def gelu_ops(x, t, ca, cb):
    return [f"v_mul_f32 {t}, {x}, {x}", f"v_fma_f32 {t}, {t}, {cb}, {ca}", f"v_mul_f32 {t}, {t}, {x}",
            f"v_exp_f32 {t}, {t}", f"v_add_f32 {t}, 1.0, {t}", f"v_rcp_f32 {t}, {t}", f"v_mul_f32 {x}, {x}, {t}"]


def interleave(lists):
    out = []
    for k in range(max(len(l) for l in lists)):
        for l in lists:
            if k < len(l):
                out.append(l[k])
    return out


def x_residual_loads(p):
    srd(p, R_B, S_X, 2048 * 1152)
    p(f"v_and_b32 v{TMP}, 31, v1")
    p(f"v_mul_u32_u24 v{TMP}, 1152, v{TMP}")
    p(f"v_lshrrev_b32 v{TMP+1}, 5, v1")
    p(f"v_lshl_add_u32 v{TMP}, v{TMP+1}, 4, v{TMP}")
    p(f"s_mul_i32 {sT0}, {sT}, 36864")
    p(f"s_mul_i32 {sT1}, {sG}, 288")
    p(f"s_add_u32 {sT0}, {sT0}, {sT1}")
    p(f"s_lshl_b32 {sT1}, {sW}, 6")
    p(f"s_add_u32 {sT1}, {sT1}, {sT0}")
    p(f"buffer_load_dwordx4 {vr(XR,4)}, v{TMP}, {RB}, {sT1} offen")
    p(f"buffer_load_dwordx4 {vr(XR+4,4)}, v{TMP}, {RB}, {sT1} offen offset:32")
    p(f"s_lshl_b32 {sT1}, {sW}, 2")
    p(f"s_add_u32 {sT1}, {sT1}, {sT0}")
    p(f"buffer_load_dword v{XR+8}, v{TMP}, {RB}, {sT1} offen offset:256")


def epilogue(p, ph, nxt, opts):
    vals = [f"v{ACC+k}" for k in range(16)] + [f"v{ACCH}", f"v{ACCH+1}"]
    dst = HK if ph == 3 else XR
    buf = {3: HB, 4: H1, 5: X1}[ph]
    p(f"s_mul_i32 {sT0}, {sT}, 36")
    p(f"s_mul_i32 {sT1}, {sG}, 9")
    p(f"s_add_u32 {sT0}, {sT0}, {sT1}")
    p(f"s_lshl_b32 {sT0}, {sT0}, 10")
    p(f"s_add_u32 {sT0}, {sT0}, {hx(buf)}")
    p(f"s_lshl_b32 {sT1}, {sW}, 11")
    p(f"s_lshl_b32 {sC}, {sW}, 2")
    p(f"s_add_u32 {sT1}, {sT1}, {sT0}")
    p(f"s_add_u32 {sC}, {sC}, {sT0}")
    p(f"s_add_u32 {sC}, {sC}, 8192")
    groups = [(16, 18), (0, 8), (8, 16)]
    stores = [f"buffer_store_dword v{dst+8}, {vLN}, {WS}, {sC} offen sc1",
              f"buffer_store_dwordx4 {vr(dst,4)}, {vLN}, {WS}, {sT1} offen sc1",
              f"buffer_store_dwordx4 {vr(dst+4,4)}, {vLN}, {WS}, {sT1} offen offset:1024 sc1"]
    if ph == 4:
        cs = [f"v{CS+k}" for k in range(16)] + [f"v{CSH2}", f"v{CSH2+1}"]
        p(f"v_mov_b32 v{TMP}, {hx(f2u(-GK))}")
        p(f"v_mov_b32 v{TMP+1}, {hx(f2u(-GK*0.044715))}")
    for (k0, k1), st_ in zip(groups, stores):
        if ph == 4:
            for q in range(k0, k1, 4):
                ops = [[f"v_fma_f32 {vals[k]}, {cs[k]}, {vMU}, {vals[k]}", f"v_mul_f32 {vals[k]}, {vals[k]}, {vR12}"]
                       + gelu_ops(vals[k], f"v{BF+k}", f"v{TMP}", f"v{TMP+1}") for k in range(q, min(q + 4, k1))]
                for o in interleave(ops):
                    p(o)
                emit_some(p, nxt, opts.get("ne", 2))
        else:
            for k in range(k0, k1):
                p(f"v_add_f32 {vals[k]}, {vals[k]}, v{CS+k}")
        for k in range(k0 // 2, k1 // 2):
            p(f"v_cvt_pk_bf16_f32 v{dst+k}, {vals[2*k]}, {vals[2*k+1]}")
        p(f"v_min_u32 v{dst+k0//2}, {CLEAN}, v{dst+k0//2}")
        p(st_, tag="out")
    if ph in (3, 5):
        S, Q, S2, Q2 = f"v{TMP+2}", f"v{TMP+3}", f"v{TMP+4}", f"v{TMP+5}"
        p(f"v_add_f32 {S}, {vals[0]}, {vals[1]}")
        p(f"v_mul_f32 {Q}, {vals[0]}, {vals[0]}")
        p(f"v_fmac_f32 {Q}, {vals[1]}, {vals[1]}")
        for k in range(2, 18):
            p(f"v_add_f32 {S}, {S}, {vals[k]}")
            p(f"v_fmac_f32 {Q}, {vals[k]}, {vals[k]}")
        p(f"v_mov_b32 {S2}, {S}")
        p(f"v_mov_b32 {Q2}, {Q}")
        p(f"v_lshlrev_b32 v{TMP}, 3, v1")
        p(f"s_lshl_b32 {sT0}, {sT}, 4")
        p(f"v_permlane32_swap_b32 {S}, {S2}")
        p(f"v_permlane32_swap_b32 {Q}, {Q2}")
        p(f"s_lshl_b32 {sT1}, {sG}, 2")
        p(f"s_add_u32 {sT0}, {sT0}, {sT1}")
        p(f"s_add_u32 {sT0}, {sT0}, {sW}")
        p(f"s_lshl_b32 {sT0}, {sT0}, 8")
        p(f"s_add_u32 {sT0}, {sT0}, {hx(ST3 if ph == 3 else ST5)}")
        p(f"v_add_f32 {S}, {S}, {S2}")
        p(f"v_add_f32 {Q}, {Q}, {Q2}")
        p(f"v_min_u32 {S}, {CLEAN}, {S}")
        p("s_mov_b32 exec_hi, 0")
        p(f"buffer_store_dwordx2 {vr(TMP+2,2)}, v{TMP}, {WS}, {sT0} offen sc1", tag="out")
        p("s_mov_b64 exec, -1")


def sg_phase(p, st, ph, opts, left, nxt):
    emit_some(p, left, 99)
    if ph == 3:
        x_residual_loads(p)
        p(f"s_mul_i32 {sT0}, {sW}, 9216")
        p(f"s_add_u32 {sT0}, {sT0}, {L_B}")
        p(f"v_add_u32 {vBQ}, {sT0}, {vLN}")
        p(f"v_add_u32 {vBB}, {L_B}, {vLN}")
    ex = poll_addr(p, ph)
    b_src(p, ph)
    p(f"s_mov_b32 {sRC}, 0")
    if ph == 4:
        colsums(p)
    st(p, f"p{ph-1}")
    for o in ex:
        p(o)
    poll_data(p, lambda: p(f"buffer_load_dword v{TMP}, {vPL}, {WS}, 0 offen sc1"), f"v{TMP}")
    p("s_mov_b64 exec, -1")
    st(p, f"f{ph}")
    again = p.label("again")
    p(f"{again}:")
    b_dma(p, ph)
    emit_some(p, nxt, opts.get(f"nb{ph}", opts.get("nb", 8)))
    p.wait_vm("b")
    gemm(p, ph, nxt, opts, st, again)
    st(p, f"g{ph}")
    epilogue(p, ph, nxt, opts)
    st(p, f"e{ph}")
```

```python
import sys, os
sys.path.insert(0, os.path.dirname(os.path.abspath(__file__)))
from common import *
from pf import weight_prefetch, packed_prefetch
import p1

HEADER = open(os.path.join(os.path.dirname(os.path.abspath(__file__)), "header.txt")).read()


def late_p1(p, opts):
    p("v_lshlrev_b32 v126, 2, v1")
    p(f"s_cmp_eq_u32 {sW}, 0")
    p(f"s_cselect_b32 s69, 0, {hx(OOB)}")
    p("s_mov_b32 exec_hi, 0")
    p(f"buffer_load_dword v127, v126, {RC}, s69 offen sc1")
    p("s_mov_b64 exec, -1")
    weight_prefetch(p, opts, opts.get("pf1", ""), V=144, R=R_B)


def check_cleared(p):
    ok = p.label("clr")
    p("v_cmp_gt_u32 vcc, 1, v127")
    p("s_cmp_eq_u32 vcc_lo, 0")
    p(f"s_cbranch_scc1 {ok}")
    s = p.side_begin()
    poll(p, "v126", "v127", 32, srd_=RC)
    p.side_end(s)
    p(f"{ok}:")


def code_prefetch(p, opts):
    if not opts.get("pf", 1):
        return
    pc = p.label("pc")
    p("s_getpc_b64 s[0:1]")
    p(f"{pc}:")
    p(f"s_sub_u32 s0, s0, {pc}-{KNAME}")
    p("s_subb_u32 s1, s1, 0")
    p("v_and_b32 v126, 31, v0")
    p(f"v_lshl_add_u32 v126, v126, 5, {sL}")
    p("v_lshlrev_b32 v126, 7, v126")
    p(f"v_min_u32 v126, L_end-{KNAME}, v126")
    p("global_load_dword v127, v126, s[0:1]")


def gen(stop=99, stamps=False, opts=None):
    opts = opts or {}
    p = Prog()
    SLEEP[0] = opts.get('sleep', 0)
    st = Stamps(stamps, opts.get('only'))
    END = "L_end"
    p(f"{KNAME}:")
    p("s_cmp_ge_u32 s2, 256")
    p(f"s_cbranch_scc1 {END}")
    p("s_load_dwordx16 s[4:19], s[0:1], 0")
    p("s_load_dwordx4 s[20:23], s[0:1], 64")
    p("s_load_dwordx2 s[24:25], s[0:1], 80")
    st(p, "start")
    p("v_and_b32 v1, 63, v0")
    p("v_lshrrev_b32 v2, 6, v0")
    p(f"s_and_b32 {sX}, s2, 7")
    p(f"v_readfirstlane_b32 {sW}, v2")
    p(f"s_lshr_b32 {sL}, s2, 3")
    p(f"s_mov_b32 {sONE}, {hx(ONES)}")
    p1.p1_ids(p)
    p1.p1_dma_addr(p)
    import p2, sg
    p2.p2_ids(p)
    sg.sg_ids(p)
    p("s_waitcnt lgkmcnt(0)")
    srd(p, R_B, S_X, 2048 * 1152)
    srd(p, R_A, S_WQKV, 576 * 3456)
    srd(p, R_WS, S_WS, WS_REC)
    srd(p, R_C, S_DBG, 256)
    import p2, sg, p6, prep
    if opts.get("probe"):
        p("s_getreg_b32 s70, hwreg(20, 0, 4)")
        p("s_sub_u32 s70, s70, s2")
        p("s_and_b32 s70, s70, 7")
        p("s_add_u32 s70, s70, 1")
        p("v_mov_b32 v144, s70")
        p("s_lshl_b32 s72, s2, 7")
        p("v_mov_b32 v145, s72")
        p(f"s_mov_b32 s71, {hx(STAMP)}")
        p(f"s_cmp_eq_u32 {sW}, 0")
        p(f"s_cselect_b32 s72, s71, {hx(OOB)}")
        p("s_mov_b64 exec, 1")
        p(f"buffer_store_dword v144, v145, {WS}, s72 offen sc1")
        p("s_mov_b64 exec, -1")
    IDLE, COMMON, IDLE2, NOPREP, P1V, P1DONE, P2 = ("L_idle", "L_common", "L_idle2", "L_noprep", "L_p1v", "L_p1done",
                                                    "L_p2")
    p(f"s_cmp_ge_u32 {sL}, 28")
    p(f"s_cbranch_scc1 {IDLE}")
    outer = p.side_begin()
    n1st, n2nd = opts.get("first", 2), opts.get("second", 0)
    for c in range(n1st):
        p1.emit_dma(p, c)
        if c == 0:
            code_prefetch(p, opts)
    p(f"s_branch {COMMON}")
    p(f"{IDLE}:")
    side = p.side_begin()
    code_prefetch(p, opts)
    p(f"s_sub_u32 {prep.sQ}, {sL}, 28")
    p(f"s_lshl_b32 {prep.sQ}, {prep.sQ}, 3")
    p(f"s_add_u32 {prep.sQ}, {prep.sQ}, {sX}")
    p(f"s_cmp_ge_u32 {prep.sQ}, {prep.NPREP}")
    p(f"s_cbranch_scc1 {COMMON}")
    prep.prep_issue(p)
    st(p, "prepiss")
    p.loose_end(side)
    p(f"{COMMON}:")
    p2.p2_setup(p)
    p(f"s_cmp_ge_u32 {sL}, 28")
    p(f"s_cbranch_scc1 {IDLE2}")
    for c in range(n1st, n1st + n2nd):
        p1.emit_dma(p, c)
    if opts.get("poi0") == -1:
        for o in sg.poison_ops(92, sg.vLN):
            p(o)
    p(f"s_cmp_ge_u32 {p1.sJ}, 9")
    p(f"s_cbranch_scc1 {P1V}")
    s2 = p.side_begin()
    p1.p1_read_addr(p, False)
    n0 = len(st.names)
    p1.p1_main(p, False, st, n1st + n2nd, opts, lambda p: late_p1(p, opts))
    st(p, "p1main")
    p1.p1_epilogue(p, False)
    st(p, "p1epi")
    p("s_waitcnt vmcnt(0)")
    p.side_end(s2)
    p(f"s_branch {P1DONE}")
    p(f"{P1V}:")
    p1.p1_read_addr(p, True)
    del st.names[n0:]
    p1.p1_main(p, True, st, n1st + n2nd, opts, lambda p: late_p1(p, opts))
    st(p, "p1main")
    p1.p1_epilogue(p, True)
    st(p, "p1epi")
    p("s_waitcnt vmcnt(0)")
    p(f"{P1DONE}:")
    p("s_barrier")
    st(p, "p1stored")
    p(f"s_cmp_lg_u32 {sW}, 0")
    p(f"s_cbranch_scc1 {P2}")
    check_cleared(p)
    p(f"s_mul_i32 s53, {p1.sI}, {FS}")
    p(f"s_lshl_b32 s54, {p1.sJ}, 3")
    p(f"s_add_u32 s53, s53, s54")
    p(f"s_add_u32 s53, s53, {hx(F1)}")
    set_flag(p, "v126", "v127", "s53")
    p(f"s_branch {P2}")
    p.side_end(outer)
    p(f"{IDLE2}:")
    side = p.side_begin()
    p(f"s_cmp_ge_u32 {prep.sQ}, {prep.NPREP}")
    p(f"s_cbranch_scc1 {NOPREP}")
    p("s_waitcnt vmcnt(0)")
    p("s_barrier")
    st(p, "prepld")
    prep.prep_finish(p, st)
    p(f"{NOPREP}:")
    p(f"s_lshl_b32 s54, {prep.sQ}, 12")
    p(f"s_add_u32 s54, s54, {hx(F7)}")
    p("v_lshlrev_b32 v96, 4, v0")
    for k in range(4):
        p(f"v_mov_b32 v{100+k}, 0")
    p(f"buffer_store_dwordx4 v[100:103], v96, {WS}, s54 offen sc1")
    p("v_lshrrev_b32 v97, 5, v0")
    p(f"v_mul_u32_u24 v97, {FS}, v97")
    p("v_and_b32 v98, 31, v0")
    p("v_lshl_add_u32 v97, v98, 2, v97")
    p(f"s_mul_i32 s54, {prep.sQ}, {8*FS}")
    p(f"s_add_u32 s54, s54, {hx(FB)}")
    p(f"buffer_store_dword v100, v97, {WS}, s54 offen sc1")
    for o in sg.poison_ops(104, sg.vLN):
        p(o)
    p("s_waitcnt vmcnt(0)")
    p("s_barrier")
    p(f"s_lshl_b32 s53, {prep.sQ}, 2")
    p("v_mov_b32 v97, 1")
    p(f"s_cmp_eq_u32 {sW}, 0")
    p(f"s_cselect_b32 s53, s53, {hx(OOB)}")
    p("s_mov_b64 exec, 1")
    p(f"buffer_store_dword v97, v100, {RC}, s53 offen sc1")
    p("s_mov_b64 exec, -1")
    st(p, "ann1")
    if opts.get("warm3", 1):
        n1, n2 = opts.get("warm_a", 8), opts.get("warm_b", 72)
        FREE = p.label("free")
        p(f"s_cmp_ge_u32 {prep.sQ}, {prep.NPREP}")
        p(f"s_cbranch_scc1 {FREE}")
        p(f"s_mul_i32 s56, {prep.sQ}, {n1}")
        prep.w3_warm(p, "s56", n1)
        p(f"s_branch L_warmed")
        p(f"{FREE}:")
        p(f"s_sub_u32 s56, {prep.sQ}, {prep.NPREP}")
        p(f"s_mul_i32 s56, s56, {n2}")
        p(f"s_add_u32 s56, s56, {prep.NPREP*n1}")
        prep.w3_warm(p, "s56", n2)
        p("L_warmed:")
    late_p1(p, opts)
    p("s_waitcnt vmcnt(0)")
    st(p, "warmed")
    p(f"s_cmp_lg_u32 {sW}, 0")
    p(f"s_cbranch_scc1 {P2}")
    check_cleared(p)
    p.side_end(side)
    p(f"{P2}:")
    pf = lambda which: (lambda p: weight_prefetch(p, opts, which, V=16))
    w3, w4, w5, w6 = sg.w_loads(3), sg.w_loads(4), sg.w_loads(5), p6.prefill_ops()
    for lst, key, dflt in ((w4, "pfb3", ""), (w5, "pfb4", ""), (w6, "pfb5", "")):
        r = p6.Rec()
        weight_prefetch(r, opts, opts.get(key, dflt), V=24)
        if r.ops:
            lst.insert(0, "\n".join(r.ops))
    p2.p2(p, st, opts, w3)
    sg.sg_phase(p, st, 3, opts, w3, w4)
    sg.sg_phase(p, st, 4, opts, w4, w5)
    sg.sg_phase(p, st, 5, opts, w5, w6)
    p6.p6(p, st, opts, w6)
    if opts.get("probe"):
        p("v_lshlrev_b32 v10, 7, v0")
        p(f"buffer_load_dword v11, v10, {WS}, s71 offen sc1")
        p("v_cmp_ne_u32 vcc, s70, v11")
        p("s_nop 1")
        p("s_cbranch_vccz L_nodelay")
        p("s_mov_b32 s72, 0")
        p("L_delay:")
        p("s_sleep 16")
        p("s_add_u32 s72, s72, 1")
        p("s_cmp_lt_u32 s72, 100")
        p("s_cbranch_scc1 L_delay")
        p("L_nodelay:")
    st(p, "end")
    if opts.get("enc"):
        k = len(st.names) - 1
        p("s_waitcnt lgkmcnt(0)")
        if k:
            p(f"s_cmp_eq_u32 s{70+2*k}, 0")
            p(f"s_cselect_b32 s70, s70, s{70+2*k}")
        p("s_add_u32 s70, s70, 10000")
        p("s_mov_b32 s74, 0")
        p("L_enc:")
        p("s_memrealtime s[72:73]")
        p("s_add_u32 s74, s74, 1")
        p("s_cmp_gt_u32 s74, 100000")
        p("s_cbranch_scc1 L_end")
        p("s_waitcnt lgkmcnt(0)")
        p("s_sub_u32 s72, s72, s70")
        p("s_cmp_lt_i32 s72, 0")
        p("s_cbranch_scc1 L_enc")
    else:
        st.flush(p)
    p(f"{END}:")
    p("s_endpgm")
    body = p.text()
    head = HEADER + f"; @launch grid=(256,1,1) block=(256,1,1) lds={LDS_BYTES}\n"
    head += f'.amdgcn_target "amdgcn-amd-amdhsa--gfx950"\n.text\n.globl {KNAME}\n.p2align 8\n.type {KNAME},@function\n'
    tail = f""".section .rodata,"a"
.p2align 6
.amdhsa_kernel {KNAME}
  .amdhsa_next_free_vgpr 512
  .amdhsa_next_free_sgpr 102
  .amdhsa_accum_offset 256
  .amdhsa_group_segment_fixed_size 0
  .amdhsa_kernarg_size 88
  .amdhsa_user_sgpr_count 2
  .amdhsa_user_sgpr_kernarg_segment_ptr 1
  .amdhsa_system_sgpr_workgroup_id_x 1
  .amdhsa_float_denorm_mode_32 3
.end_amdhsa_kernel
"""
    return head + body + tail, st.names, p


if __name__ == "__main__":
    import argparse, json
    ap = argparse.ArgumentParser()
    ap.add_argument("-o", default="k.s")
    ap.add_argument("--stop", type=int, default=99)
    ap.add_argument("--stamps", type=int, default=0)
    ap.add_argument("--opts", default="{}")
    ap.add_argument("--note", action="store_true")
    a = ap.parse_args()
    txt, names, p = gen(a.stop, a.stamps, json.loads(a.opts))
    if names:
        txt = txt.replace("; @launch", f"; stampmode: {a.stamps}\n; stamps: " + ",".join(names) + "\n; @launch", 1)
    if a.stamps or a.note:
        o = {k: v for k, v in json.loads(a.opts).items() if k != "only"}
        txt = txt.replace("; @launch", f"; opts: {json.dumps(o)}\n; @launch", 1)
    open(a.o, "w").write(txt)
    print(f"wrote {a.o}: {len(txt)} bytes, {len(p.out)} lines, {p.nnop} nops, {p.nwait_auto} auto waits; stamps {names}")
```

```python
from common import *
from sched import Filler
from pf import w3_first_lines

sI, sJ, sKC, sXB, sWB, sT0, sT1, sM = "s48", "s49", "s50", "s51", "s52", "s53", "s54", "s55"
vX, vW, vB, vA = 96, 100, 104, 108
vS, vQ, vC = "v112", "v113", "v114"
XF, W0F, ACC, AG = 152, 240, 176, 232
QSCALE = (18 ** -0.5) * 1.4426950408889634


def p1_ids(p):
    p(f"s_and_b32 {sT0}, {sL}, 3")
    p(f"s_lshr_b32 {sT1}, {sL}, 2")
    p(f"s_and_b32 {sI}, {sX}, 3")
    p(f"s_lshl_b32 {sI}, {sI}, 2")
    p(f"s_add_u32 {sI}, {sI}, {sT0}")
    p(f"s_lshr_b32 {sJ}, {sX}, 2")
    p(f"s_mul_i32 {sJ}, {sJ}, 7")
    p(f"s_add_u32 {sJ}, {sJ}, {sT1}")
    p(f"s_lshl_b32 {sT1}, {sT1}, 2")
    p(f"s_mul_i32 {sT0}, {sT0}, 7")
    p(f"s_add_u32 {sKC}, {sT0}, {sT1}")
    p(f"s_add_u32 {sKC}, {sKC}, {sX}")
    p(f"s_mul_i32 {sT0}, {sKC}, 57")
    p(f"s_lshr_b32 {sT0}, {sT0}, 9")
    p(f"s_mul_i32 {sT0}, {sT0}, 9")
    p(f"s_sub_u32 {sKC}, {sKC}, {sT0}")
    p(f"s_lshl_b32 {sXB}, {sI}, 2")
    p(f"s_add_u32 {sXB}, {sXB}, {sW}")
    p(f"s_mul_i32 {sXB}, {sXB}, 36864")
    p(f"s_mul_i32 {sWB}, {sW}, {16*3456}")
    p(f"s_lshl_b32 {sT0}, {sJ}, 8")
    p(f"s_add_u32 {sWB}, {sWB}, {sT0}")
    p(f"s_lshl_b32 {sM}, {sW}, 12")


def p1_dma_addr(p):
    p("v_lshrrev_b32 v115, 3, v1")
    p("v_mul_u32_u24 v115, 1152, v115")
    p("v_lshrrev_b32 v116, 4, v1")
    p("v_and_b32 v117, 7, v1")
    p("v_xor_b32 v117, v117, v116")
    p(f"v_lshl_add_u32 v{vX}, v117, 4, v115")
    p("v_xor_b32 v117, 4, v117")
    p(f"v_lshl_add_u32 v{vX+1}, v117, 4, v115")
    p(f"v_add_u32 v{vX+2}, {2*8192}, v{vX}")
    p(f"v_add_u32 v{vX+3}, {3*8192}, v{vX+1}")
    p(f"v_add_u32 v{vX+1}, {8192}, v{vX+1}")
    p("v_bfe_u32 v117, v1, 2, 2")
    p("v_xor_b32 v117, v117, v116")
    p("v_mul_u32_u24 v116, 3456, v116")
    p("v_lshl_add_u32 v116, v117, 6, v116")
    p("v_and_b32 v117, 3, v1")
    p(f"v_lshl_add_u32 v{vW}, v117, 4, v116")
    for q in range(1, 4):
        p(f"v_add_u32 v{vW+q}, {q*(4*3456-1024)}, v{vW}")


def p1_dma_ops(c):
    o = []
    slot = (c % 5) * 32768
    o.append(f"s_lshl_b32 {sT0}, {sKC}, 7")
    o.append(f"s_add_u32 {sT0}, {sT0}, {sXB}")
    o.append(f"s_add_u32 m0, {sM}, {slot}")
    o.append(f"s_mul_i32 {sT1}, {sKC}, {64*3456}")
    for q in range(4):
        o.append(f"buffer_load_dwordx4 v{vX+q}, {RB}, {sT0} offen offset:{q*1024} lds")
    o.append(f"s_add_u32 m0, {sM}, {slot+16384}")
    o.append(f"s_add_u32 {sT1}, {sT1}, {sWB}")
    for q in range(4):
        o.append(f"buffer_load_dwordx4 v{vW+q}, {RA}, {sT1} offen offset:{q*1024} lds")
    o.append(f"s_add_u32 {sKC}, {sKC}, 1\ns_cmp_eq_u32 {sKC}, 9\ns_cselect_b32 {sKC}, 0, {sKC}")
    return o


def emit_dma(p, c):
    ops = p1_dma_ops(c)
    last = max(k for k, o in enumerate(ops) if o.startswith("buffer"))
    for k, o in enumerate(ops):
        p(o, tag=f"p1c{c}" if k == last else None)


def p1_read_addr(p, vmode):
    p("v_and_b32 v115, 31, v1")
    p("v_lshlrev_b32 v115, 7, v115")
    p(f"v_add_u32 v115, {sM}, v115")
    p("v_bfe_u32 v116, v1, 1, 3")
    p("v_lshrrev_b32 v117, 5, v1")
    p("v_xor_b32 v116, v116, v117")
    for s in range(4):
        p(f"v_xor_b32 v118, {2*s}, v116")
        p(f"v_lshl_add_u32 v{vB+s}, v118, 4, v115")
    p("v_bfe_u32 v115, v1, 2, 2")
    p("v_lshl_add_u32 v116, v117, 3, v115")
    p("v_lshlrev_b32 v116, 8, v116")
    p("v_bfe_u32 v118, v1, 4, 1")
    p("v_lshl_add_u32 v116, v118, 5, v116")
    if vmode:
        p("v_and_b32 v118, 3, v1")
        p("v_lshl_add_u32 v116, v118, 3, v116")
    else:
        p("v_and_b32 v118, 1, v1")
        p("v_lshl_add_u32 v116, v118, 4, v116")
        p("v_bfe_u32 v118, v1, 1, 1")
        p("v_lshl_add_u32 v116, v118, 3, v116")
    for t in range(4):
        p(f"s_add_u32 {sT0}, {sW}, {t}")
        p(f"s_and_b32 {sT0}, {sT0}, 3")
        p(f"v_xor_b32 v118, {sT0}, v115")
        p(f"v_lshl_add_u32 v{vA+t}, v118, 6, v116")


def afrag(g, t):
    pb = g & 1
    return (W0F + 4 * (g & 3), "v") if t == 0 else (AG + 12 * pb + 4 * (t - 1), "a")


def reads(g):
    c, s = divmod(g, 4)
    so = ((c % 5) % 2) * 32768
    out = [[f"ds_read_b128 {vr(XF+4*(g&3),4)}, v{vB+s} offset:{so}"], [], [], []]
    for t in range(4):
        b, k = afrag(g, t)
        for q in range(2):
            out[t].append(f"ds_read_b64_tr_b16 {vr(b+2*q,2,k)}, v{vA+t} offset:{so+16384+s*4096+q*1024}")
    return out


def tagged_dma(c):
    ops = p1_dma_ops(c)
    last = max(k for k, o in enumerate(ops) if o.startswith("buffer"))
    return [(o, f"p1c{c}") if k == last else o for k, o in enumerate(ops)]


def stat_ops(vmode):
    CSL = 131072
    a = ["v_mov_b32 v115, " + vC, "v_and_b32 v116, 31, v1", "v_lshlrev_b32 v116, 2, v116",
         f"v_permlane32_swap_b32 {vC}, v115", f"s_lshl_b32 {sT0}, {sW}, 7\ns_add_u32 {sT0}, {sT0}, {CSL}",
         f"v_add_f32 {vC}, {vC}, v115", f"v_add_u32 v117, {sT0}, v116", (f"ds_write_b32 v117, {vC}", "csw"),
         f"v_mov_b32 v115, {vS}", f"v_mov_b32 v118, {vQ}", "v_cmp_gt_u32 vcc, 32, v1",
         f"v_permlane32_swap_b32 {vS}, v115", f"v_permlane32_swap_b32 {vQ}, v118",
         f"v_add_f32 {vS}, {vS}, v115", f"v_add_f32 {vQ}, {vQ}, v118"]
    b = []
    for t in range(4):
        b += [f"s_add_u32 {sT0}, {sW}, {t}\ns_and_b32 {sT0}, {sT0}, 3\ns_lshl_b32 {sT0}, {sT0}, 7\n"
              f"s_add_u32 {sT0}, {sT0}, {CSL}\nv_add_u32 v117, {sT0}, v116\nds_read_b32 v{122+t}, v117"]
    b += [f"v_mul_f32 {vS}, {hx(f2u(-1.0/576))}, {vS}",
          f"v_mul_f32 {vQ}, {hx(f2u(1.0/576))}, {vQ}",
          f"v_fma_f32 {vQ}, -{vS}, {vS}, {vQ}", f"v_max_f32 {vQ}, 0, {vQ}", f"v_add_f32 {vQ}, {hx(f2u(EPS))}, {vQ}",
          f"v_rsq_f32 {vQ}, {vQ}",
          f"v_cndmask_b32 {vS}, 0, {vS}, vcc",
          f"v_cvt_pk_bf16_f32 v{MU}, {vS}, {vS}", f"v_mov_b32 v{MU+2}, 0", f"v_mov_b32 v{MU+3}, 0",
          f"v_and_b32 v118, 0xffff0000, v{MU}", f"v_sub_f32 v118, {vS}, v118", f"v_cvt_pk_bf16_f32 v{MU+1}, v118, 0"]
    for t in range(4):
        q = CSF + 4 * t
        b += [f"v_cvt_pk_bf16_f32 v{q+1}, v{122+t}, 0", f"v_mov_b32 v{q+2}, 0", f"v_lshlrev_b32 v118, 16, v{q+1}",
              f"v_sub_f32 v118, v{122+t}, v118", f"v_mov_b32 v{q+3}, 0", f"v_cvt_pk_bf16_f32 v{q}, v{122+t}, v118"]
    return a, b


MU, CSF = 80, 128


def p1_main(p, vmode, st, first, opts, late):
    p(f"v_mov_b32 {vS}, 0")
    p(f"v_mov_b32 {vQ}, 0")
    p(f"v_mov_b32 {vC}, 0")
    p.wait_vm("p1c0")
    p("s_barrier")
    st(p, "c0")
    for grp in reads(0):
        for o in grp:
            p(o)
    F = Filler(p)
    sched = opts.get("p1s")
    if sched:
        for c, (a, b) in zip(range(first, 9), sched):
            assert c < 5 or a >= 16 * (c - 5) + 12
            assert b < 16 * (c - 1) + 12
            F.add(a, b, tagged_dma(c))
    else:
        ops = []
        for c in range(first, 5):
            ops += tagged_dma(c)
        F.add(0, 11, ops)
        for c in range(4):
            F.add(16 * c + 12, 16 * c + 12 + opts.get("p1dma", 12), tagged_dma(c + 5))
    late.__dict__["cost"] = 24
    F.add(opts.get('late', 128), opts.get('late', 128) + 2, [lambda: late(p)])
    import sg
    if opts.get("w3f"):
        F.add(opts["w3f"], opts["w3f"] + 8, w3_first_lines(144, R_B))
    if opts.get("poi0", 80) >= 0:
        F.add(opts.get("poi0", 80), opts.get("poi1", 120), sg.poison_ops(92, sg.vLN))

    def dots(k0, k1):
        for kk in range(k0, k1):
            p(f"v_dot2c_f32_bf16 {vS}, {sONE}, v{XF+kk}")
            p(f"v_dot2c_f32_bf16 {vQ}, v{XF+kk}, v{XF+kk}")
            p(f"v_dot2c_f32_bf16 {vC}, {sONE}, v{W0F+kk}")

    sa, sb = stat_ops(vmode)
    for g in range(36):
        c, s = divmod(g, 4)
        xf = XF + 4 * (g & 3)
        nxt = reads(g + 1) if g < 35 else [[], [], [], []]
        for t in range(4):
            j = 4 * g + t
            b, k = afrag(g, t)
            acc = vr(ACC + 16 * t, 16)
            cin = "0" if g == 0 else acc
            A, B = vr(b, 4, k), vr(xf, 4)
            if vmode:
                A, B = B, A
            if t == 0 and s == 3 and c < 8:
                p.wait_lg()
                dots(0, 16)
            if g == 34 and t == 0:
                for o in nxt[0]:
                    p(o)
                nxt[0] = []
                p.wait_lg()
                dots(0, 16)
                F.add(j, j + 2, sa)
            if t in (0, 2):
                b2, k2 = afrag(g, t + 1)
                p.wait_regs(vr(b2, 4, k2))
            p(f"v_mfma_f32_32x32x16_bf16 {acc}, {A}, {B}, {cin}")
            if t == 0 and s == 3 and c < 8:
                p.wait_vm(f"p1c{c+1}")
                p("s_barrier")
                w0, w1 = (c % 5) // 2, ((c + 1) % 5) // 2
                if w0 != w1:
                    for r in list(range(vB, vB + 4)) + list(range(vA, vA + 4)):
                        p(f"v_add_u32 v{r}, {hx((w1-w0)*65536)}, v{r}")
            for o in nxt[t]:
                p(o)
            if g == 34 and t == 3:
                p.wait_lg("csw")
                p("s_barrier")
                F.add(j, j + 4, sb)
            F.gap(j)
    assert F.done()


def p1_epilogue(p, vmode):
    for t in range(4):
        acc = vr(ACC + 16 * t, 16)
        A, B = vr(CSF + 4 * t, 4), vr(MU, 4)
        if vmode:
            A, B = B, A
        p(f"v_mfma_f32_32x32x16_bf16 {acc}, {A}, {B}, {acc}")
    RBC = 64
    if vmode:
        p(f"v_cndmask_b32 v118, 0, {vQ}, vcc")
        p(f"v_cvt_pk_bf16_f32 v119, v118, 0")
        p(f"v_lshlrev_b32 v119, 16, v119")
        p(f"v_sub_f32 v119, v118, v119")
        p(f"v_cvt_pk_bf16_f32 v84, v118, v119")
        p(f"v_and_b32 v120, 0xffff0000, v84")
        p(f"v_sub_f32 v120, v119, v120")
        p(f"v_cvt_pk_bf16_f32 v85, v120, 0")
        p("v_mov_b32 v86, 0")
        p("v_mov_b32 v87, 0")
        for k in range(4):
            p(f"v_mov_b32 v{88+k}, {sONE}")
        p(f"v_mfma_f32_32x32x16_bf16 {vr(RBC,16)}, v[84:87], v[88:91], 0")
        p("v_and_b32 v116, 31, v1")
        p("v_lshlrev_b32 v116, 5, v116")
        p("v_lshrrev_b32 v117, 5, v1")
        p("v_lshl_add_u32 v116, v117, 4, v116")
        p("v_add_u32 v117, 18432, v116")
    else:
        p("v_lshlrev_b32 v116, 4, v1")
    p(f"s_lshl_b32 {sXB}, {sI}, 2")
    p(f"s_add_u32 {sXB}, {sXB}, {sW}")
    p(f"s_mul_i32 {sXB}, {sXB}, {36864 if vmode else 144*512}")
    p(f"s_add_u32 {sXB}, {sXB}, {hx(VT - 36*1024 if vmode else QK)}")
    for t in range(4):
        a = ACC + 16 * t
        p(f"s_add_u32 {sT0}, {sW}, {t}")
        p(f"s_and_b32 {sT0}, {sT0}, 3")
        p(f"s_lshl_b32 {sT1}, {sJ}, 2")
        p(f"s_add_u32 {sT0}, {sT0}, {sT1}")
        if vmode:
            for k in range(0, 16, 2):
                p(f"v_pk_mul_f32 {vr(a+k,2)}, {vr(a+k,2)}, {vr(RBC+k,2)}")
            p(f"s_lshl_b32 {sT1}, {sT0}, 10")
        else:
            p(f"s_cmp_lt_u32 {sT0}, 18")
            p(f"s_cselect_b32 {sT1}, {hx(f2u(QSCALE))}, 1.0")
            p(f"v_mul_f32 v118, {sT1}, {vQ}")
            for k in range(0, 16, 2):
                p(f"v_pk_mul_f32 {vr(a+k,2)}, {vr(a+k,2)}, v[118:119] op_sel_hi:[1,0]")
            p(f"s_lshl_b32 {sT1}, {sT0}, 11")
        for k in range(8):
            p(f"v_cvt_pk_bf16_f32 v{a+k}, v{a+2*k}, v{a+2*k+1}")
        p(f"s_add_u32 {sT1}, {sT1}, {sXB}")
        if vmode:
            p(f"s_cmp_lt_u32 {sT0}, 54")
            p(f"s_cselect_b32 {sT1}, {sT1}, {hx(OOB)}")
            p(f"buffer_store_dwordx4 {vr(a,4)}, v116, {WS}, {sT1} offen sc1")
            p(f"buffer_store_dwordx4 {vr(a+4,4)}, v117, {WS}, {sT1} offen sc1")
        else:
            p(f"buffer_store_dwordx4 {vr(a,4)}, v116, {WS}, {sT1} offen sc1")
            p(f"buffer_store_dwordx4 {vr(a+4,4)}, v116, {WS}, {sT1} offen offset:1024 sc1")
```

```python
from common import *
from pf import scalar_prefetch

sB, sU, sH, sG0, sO2, sT0, sT1, sKO, sVO = "s57", "s58", "s59", "s60", "s61", "s53", "s54", "s55", "s56"
sA, sB2 = "s62", "s63"
KA, VA = 0, 80
vLN, vV0, vV1, vPL = "v2", "v3", "v4", "v5"
QF = 16
CD, CO = 32, 48
SB = 64
PB = 96
OA = 112
vM0, vM1 = "v10", "v11"
HI = "0xffffffff00000000"
NEG_INF = 0xFF800000


def exec_lo(p):
    p("s_mov_b32 exec_hi, 0")


def exec_hi(p):
    p("s_mov_b64 exec, -1")
    p("s_mov_b32 exec_lo, 0")


def exec_all(p):
    p("s_mov_b64 exec, -1")


def p2_ids(p):
    p(f"s_and_b32 {sB}, {sL}, 3")
    p(f"s_lshl_b32 {sT0}, {sX}, 2")
    p(f"s_add_u32 {sB}, {sB}, {sT0}")
    p(f"s_lshr_b32 {sU}, {sL}, 2")
    p(f"s_lshl_b32 {sH}, {sU}, 2")
    p(f"s_add_u32 {sH}, {sH}, {sW}")
    p(f"s_mul_i32 {sG0}, {sH}, 18")
    p(f"s_lshr_b32 {sG0}, {sG0}, 3")
    p(f"s_and_b32 {sO2}, {sH}, 3")
    p(f"v_lshlrev_b32 {vLN}, 4, v1")


def p2_setup(p):
    p("v_and_b32 v6, 0x13, v1")
    p("v_bfe_u32 v7, v1, 2, 1")
    p("v_lshl_add_u32 v6, v7, 3, v6")
    p("v_bfe_u32 v7, v1, 3, 1")
    p("v_lshl_add_u32 v6, v7, 2, v6")
    p("v_lshrrev_b32 v7, 5, v1")
    p("v_lshlrev_b32 v8, 4, v7")
    p(f"v_lshl_add_u32 {vV0}, v6, 5, v8")
    p(f"v_add_u32 {vV1}, 18432, {vV0}")
    p("v_and_b32 v6, 31, v1")
    p("v_lshlrev_b32 v7, 2, v7")
    p("v_sub_u32 v6, v6, v7")
    p(f"v_mov_b32 v8, {hx(NEG_INF)}")
    p("v_mov_b32 v9, 0")
    for r in range(16):
        c = 8 * (r // 4) + r % 4
        p(f"v_cmp_le_i32 vcc, {c}, v6")
        p(f"v_cndmask_b32 v{CD+r}, v8, v9, vcc")
        p(f"v_cndmask_b32 v{CO+r}, v9, v8, vcc")
    p("v_and_b32 v6, 27, v1")
    p("v_cmp_eq_u32 vcc, 18, v6")
    p(f"v_mov_b32 v7, {sONE}")
    p("v_cndmask_b32 v6, 0, v7, vcc")
    p("s_mov_b32 exec_lo, 0xfffc0000")
    p("s_mov_b32 exec_hi, 0xfffc0000")
    for r in range(80):
        p(f"v_accvgpr_write_b32 a{VA+r}, v6")
    exec_hi(p)
    p(f"s_lshl_b32 {sT0}, {sB}, 1")
    for k in range(10):
        p(f"s_cmp_ge_u32 {sT0}, {max(8-k,0)}")
        p(f"s_cselect_b32 {sT1}, 0x3f800000, 0x3f80ff80")
        p(f"v_accvgpr_write_b32 a{KA+8*k+4}, {sT1}")
        p(f"v_accvgpr_write_b32 a{KA+8*k+5}, {sONE}")
        p(f"v_accvgpr_write_b32 a{KA+8*k+6}, 0")
        p(f"v_accvgpr_write_b32 a{KA+8*k+7}, 0")
    for a in range(2):
        p(f"v_mov_b32 v{QF+8*a+4}, 0x3f80")
        for r in range(5, 8):
            p(f"v_mov_b32 v{QF+8*a+r}, 0")
    exec_all(p)
    p("v_mul_u32_u24 v6, 43, v1")
    p("v_lshrrev_b32 v6, 8, v6")
    p("v_mul_u32_u24 v7, 6, v6")
    p("v_sub_u32 v7, v1, v7")
    p(f"s_lshr_b32 {sT0}, {sB}, 1")
    p(f"v_sub_u32 v6, {sT0}, v6")
    p("v_max_i32 v6, 0, v6")
    p("v_lshrrev_b32 v8, 1, v7")
    p("v_mul_u32_u24 v8, 576, v8")
    p("v_and_b32 v7, 1, v7")
    p("v_mul_u32_u24 v7, 71, v7")
    p(f"s_mul_i32 {sT0}, {sU}, 72")
    p(f"v_add3_u32 v7, v7, v8, {sT0}")
    p("v_lshrrev_b32 v7, 7, v7")
    p("v_lshlrev_b32 v7, 3, v7")
    p(f"v_mul_u32_u24 v6, {FS}, v6")
    p(f"s_mov_b32 {sT0}, {hx(F1)}")
    p(f"v_add3_u32 {vPL}, v6, v7, {sT0}")


sQ0, sQ1 = "s48", "s49"


def load_bases(p):
    p(f"s_mul_i32 {sQ0}, {sB}, {2*144}")
    p(f"s_add_u32 {sQ0}, {sQ0}, {sG0}")
    p(f"s_lshl_b32 {sQ0}, {sQ0}, 9")
    p(f"s_add_u32 {sQ0}, {sQ0}, {hx(QK)}")
    p(f"s_add_u32 {sQ1}, {sQ0}, {144*512}")
    p(f"s_add_u32 {sKO}, {sQ0}, {hx(72*512 - 8*144*512)}")
    p(f"s_mul_i32 {sVO}, {sB}, {2*36864}")
    p(f"s_mul_i32 {sA}, {sH}, {18*32}")
    p(f"s_add_u32 {sVO}, {sVO}, {sA}")
    p(f"s_add_u32 {sVO}, {sVO}, {hx(VT - 8*36864)}")
    p(f"s_lshl_b32 {sB2}, {sB}, 1")


def qk_loads(p):
    def koff(k):
        p(f"s_add_u32 {sA}, {sKO}, {k*144*512}")
        if k < 8:
            p(f"s_cmp_ge_u32 {sB2}, {8-k}")
            p(f"s_cselect_b32 {sA}, {sA}, {hx(OOB)}")

    p(f"buffer_load_dwordx4 {vr(QF,4)}, {vLN}, {WS}, {sQ0} offen sc1")
    exec_lo(p)
    p(f"buffer_load_dwordx4 {vr(QF+4,4)}, {vLN}, {WS}, {sQ0} offen offset:1024 sc1")
    exec_all(p)
    for k in range(10):
        koff(k)
        p(f"buffer_load_dwordx4 {ar(KA+8*k,4)}, {vLN}, {WS}, {sA} offen sc1")
        exec_lo(p)
        p(f"buffer_load_dwordx4 {ar(KA+8*k+4,4)}, {vLN}, {WS}, {sA} offen offset:1024 sc1")
        exec_all(p)
        if k == 8:
            p(f"buffer_load_dwordx4 {vr(QF+8,4)}, {vLN}, {WS}, {sQ1} offen sc1")
            exec_lo(p)
            p(f"buffer_load_dwordx4 {vr(QF+12,4)}, {vLN}, {WS}, {sQ1} offen offset:1024 sc1")
            exec_all(p)


def v_loads():
    o = []
    for k in range(10):
        x = [f"s_add_u32 {sA}, {sVO}, {k*36864}"]
        if k < 8:
            x += [f"s_cmp_ge_u32 {sB2}, {8-k}", f"s_cselect_b32 {sA}, {sA}, {hx(OOB)}"]
        x += ["s_mov_b32 exec_lo, 0x3ffff", "s_mov_b32 exec_hi, 0x3ffff",
              f"buffer_load_dwordx4 {ar(VA+8*k,4)}, {vV0}, {WS}, {sA} offen sc1",
              f"buffer_load_dwordx4 {ar(VA+8*k+4,4)}, {vV1}, {WS}, {sA} offen sc1", "s_mov_b64 exec, -1"]
        o.append("\n".join(x))
    return o


def q_mask(p, a):
    q = QF + 8 * a
    exec_lo(p)
    for d in range(3):
        p(f"s_cmp_gt_u32 {sO2}, {d}")
        p(f"s_cselect_b32 {sT0}, 0, -1")
        p(f"v_and_b32 v{q+d}, {sT0}, v{q+d}")
    for d in range(1, 4):
        p(f"s_cmp_ge_u32 {sO2}, {d}")
        p(f"s_cselect_b32 {sT0}, -1, 0")
        p(f"v_and_b32 v{q+4+d}, {sT0}, v{q+4+d}")
    exec_all(p)


def s_mfmas(a, bi):
    k = a + bi
    s = vr(SB + 16 * (bi & 1), 16)
    c = vr(CO, 16) if bi == 0 else (vr(CD, 16) if bi == 8 else "0")
    q = QF + 8 * a
    return [f"v_mfma_f32_32x32x16_bf16 {s}, {ar(KA+8*k,4)}, {vr(q,4)}, {c}",
            f"v_mfma_f32_32x32x16_bf16 {s}, {ar(KA+8*k+4,4)}, {vr(q+4,4)}, {s}"]


def pass1(p, a, fill):
    for o in s_mfmas(a, 0):
        p(o)
    for bi in range(9):
        s = SB + 16 * (bi & 1)
        if bi < 8:
            for o in s_mfmas(a, bi + 1):
                p(o)
        if fill and (bi % 2 == 0):
            p(fill.pop(0))
        for k in range(8):
            m = vM0 if k % 2 == 0 else vM1
            if bi == 0 and k < 2:
                p(f"v_max_f32 {m}, v{s+2*k}, v{s+2*k+1}")
            else:
                p(f"v_max3_f32 {m}, v{s+2*k}, v{s+2*k+1}, {m}")
    p(f"v_max_f32 {vM0}, {vM0}, {vM1}")
    xhalf(p, "v_max_f32", vM0, vM1)
    q = QF + 8 * a + 4
    p(f"v_sub_f32 {vM0}, 0, {vM0}")
    p(f"v_cvt_pk_bf16_f32 v12, {vM0}, {vM0}")
    p(f"v_and_b32 v12, 0xffff0000, v12")
    p(f"v_sub_f32 v13, {vM0}, v12")
    p(f"v_cvt_pk_bf16_f32 v14, v13, v13")
    p(f"v_and_b32 v14, 0xffff0000, v14")
    p(f"v_sub_f32 v14, v13, v14")
    exec_hi(p)
    p(f"v_or_b32 v{q}, 0x3f80, v12")
    p(f"v_cvt_pk_bf16_f32 v{q+1}, v13, v14")
    exec_all(p)


def pv_mfmas(a, bi):
    k = a + bi
    o = vr(OA + 16 * a, 16)
    pb = PB + 8 * (bi & 1)
    return [f"v_mfma_f32_32x32x16_bf16 {o}, {ar(VA+8*k,4)}, {vr(pb,4)}, {'0' if bi == 0 else o}",
            f"v_mfma_f32_32x32x16_bf16 {o}, {ar(VA+8*k+4,4)}, {vr(pb+4,4)}, {o}"]


FJ = [(0, 1, 2)]
SN = [1]


def pass2(p, a, fill=None, sfill=None):
    fill = fill if fill is not None else []
    for o in s_mfmas(a, 0):
        p(o)
    for bi in range(9):
        s = SB + 16 * (bi & 1)
        pb = PB + 8 * (bi & 1)
        mf = (s_mfmas(a, bi + 1) if bi < 8 else [None, None]) + (pv_mfmas(a, bi - 1) if bi > 0 else [None, None])
        ex = lambda r: p(f"v_exp_f32 v{s+r}, v{s+r}")
        cv = lambda k: p(f"v_cvt_pk_bf16_f32 v{pb+k}, v{s+2*k}, v{s+2*k+1}")
        plan = [([0, 1, 2, 3], []), ([4, 5, 6, 7, 8], [0]), ([9, 10, 11, 12], [1, 2, 3]), ([13, 14, 15], [4, 5, 6, 7])]
        for j in range(4):
            if mf[j]:
                p(mf[j])
            if fill and j in FJ[0]:
                p(fill.pop(0))
            for _ in range(SN[0] if j != 3 else 0):
                if sfill:
                    p(sfill.pop(0))
            es, cs = plan[j]
            if j == 3:
                for r in es:
                    ex(r)
                for k in cs:
                    cv(k)
            else:
                for k in cs:
                    cv(k)
                for r in es:
                    ex(r)
    for o in pv_mfmas(a, 8):
        p(o)


def o_store(p, a):
    o = OA + 16 * a
    p(f"v_rcp_f32 v12, v{o+10}")
    p(f"s_lshl_b32 {sT0}, {sB}, 1")
    p(f"s_add_u32 {sT0}, {sT0}, {a}")
    p(f"s_mul_i32 {sT0}, {sT0}, 36")
    p(f"s_add_u32 {sT1}, {sT0}, {sH}")
    p(f"s_lshl_b32 {sT1}, {sT1}, 10")
    p(f"s_add_u32 {sT1}, {sT1}, {hx(OB)}")
    for r in range(10):
        p(f"v_mul_f32 v{o+r}, v{o+r}, v12")
    for k in range(5):
        p(f"v_cvt_pk_bf16_f32 v{o+k}, v{o+2*k}, v{o+2*k+1}")
    for k in range(5):
        p(f"v_min_u32 v{o+k}, {CLEAN}, v{o+k}")
    p(f"buffer_store_dwordx4 {vr(o,4)}, {vLN}, {WS}, {sT1} offen sc1")
    p(f"s_add_u32 {sT0}, {sT0}, 32")
    p(f"s_lshl_b32 {sT0}, {sT0}, 10")
    p(f"s_lshr_b32 {sT1}, {sH}, 2")
    p(f"s_lshl_b32 {sT1}, {sT1}, 9")
    p(f"s_add_u32 {sT0}, {sT0}, {sT1}")
    p(f"s_lshl_b32 {sT1}, {sO2}, 2")
    p(f"s_add_u32 {sT0}, {sT0}, {sT1}")
    p(f"s_add_u32 {sT0}, {sT0}, {hx(OB)}")
    exec_lo(p)
    p(f"buffer_store_dword v{o+4}, {vLN}, {WS}, {sT0} offen sc1", tag="out")
    exec_all(p)


def publish(p):
    L = p.label("f2")
    p(f"s_cmp_lg_u32 {sW}, 0")
    p(f"s_cbranch_scc1 {L}")
    s = p.side_begin()
    p(f"s_mul_i32 {sT0}, {sB}, {FS}")
    p(f"s_lshl_b32 {sT1}, {sU}, 4")
    p(f"s_add_u32 {sT0}, {sT0}, {sT1}")
    p(f"s_add_u32 {sT0}, {sT0}, {F2}")
    set_flag(p, "v62", "v63", sT0)
    p.side_end(s)
    p(f"{L}:")


def p2(p, st, opts, fill):
    load_bases(p)
    L = p.label("p2go")
    p(f"s_cmp_lg_u32 {sW}, 0")
    p(f"s_cbranch_scc1 {L}")
    s = p.side_begin()
    poll(p, vPL, "v6", 18)
    p.side_end(s)
    p(f"{L}:")
    p("s_barrier")
    st(p, "f1seen")
    qk_loads(p)
    st(p, "p2ld")
    vl = v_loads()
    q_mask(p, 0)
    pass1(p, 0, vl)
    q_mask(p, 1)
    pass1(p, 1, vl)
    assert not vl
    st(p, "pass1")
    p("v_lshrrev_b32 v6, 4, v1")
    p(f"v_lshl_add_u32 v6, {sW}, 2, v6")
    p(f"v_mul_u32_u24 v6, {FS}, v6")
    p("v_and_b32 v7, 15, v1")
    p("v_min_u32 v7, 13, v7")
    p("v_lshl_add_u32 v6, v7, 3, v6")
    p(f"v_add_u32 v8, {hx(F1)}, v6")
    p(f"buffer_load_dword v9, v8, {WS}, 0 offen sc1")
    p("v_min_u32 v7, 4, v1")
    p("v_lshlrev_b32 v7, 2, v7")
    p("v_add_u32 v7, 128, v7")
    p(f"s_cmp_eq_u32 {sW}, 3")
    p(f"s_cselect_b32 {sA}, 0, {hx(OOB)}")
    p(f"buffer_load_dword v6, v7, {RC}, {sA} offen sc1")
    n = opts.get("n2", 45)
    FJ[0] = (0, 1, 2) if n > 36 else ((0, 2) if n > 18 else (1,))
    mine = fill[:n]
    del fill[:n]
    sf = scalar_prefetch(opts.get("spf", ""))
    SN[0] = (len(sf) + 53) // 54
    pass2(p, 0, mine, sf)
    o_store(p, 0)
    pass2(p, 1, mine, sf)
    assert not sf
    assert not mine
    o_store(p, 1)
    st(p, "p2e")
    ok = p.label("allf1")
    p("v_cmp_gt_u32 vcc, 1, v9")
    p("s_nop 1")
    p(f"s_cbranch_vccz {ok}")
    s = p.side_begin()
    poll(p, "v8", "v9", 64)
    p.side_end(s)
    p(f"{ok}:")
    ok = p.label("cs")
    p("v_cmp_gt_u32 vcc, 1, v6")
    p(f"s_cmp_lg_u32 {sW}, 3")
    p(f"s_cbranch_scc1 {ok}")
    p(f"s_cbranch_vccz {ok}")
    s = p.side_begin()
    poll(p, "v7", "v6", 5, srd_=RC)
    p.side_end(s)
    p(f"{ok}:")
    p("s_barrier")
```

```python
from common import *
from pf import weight_prefetch
from sched import Filler
from sg import gelu_ops, interleave, GK, emit_some

sI, sMm, sC, sFO, sFH, sT0, sT1, sLW, sDA, sDB, sPB, sFL, sT2, sCNT = (
    "s48", "s49", "s50", "s51", "s26", "s27", "s3", "s10", "s56", "s57", "s58", "s59", "s60", "s61")
vLN, vF6, vF68, vH0, vZ = "v2", "v3", "v4", "v5", "v6"
AB = 8
DO = 16
vCA, vCB = "v25", "v26"
GT = 27
vHS = 31
ID0, ID1, IDX = 32, 36, 40
vFL, vFL8, vFLb = "v44", "v45", "v62"
ST = 46
ACC = [80, 96, 64]
ACC8 = 112
CV = [128, 136]
XB = 112
HB_ = 0
AFR, NAF = 72, 7
PL = 100
PL8 = PL + 17 * 8
SLOT = 36864
PD = NAF - 1
NT = ['', '']
SCR = [7]
HALF = [1]
GX = [8]
ND = [1]
LOCAL = [0]
OST = ['']
sSC = 's67'
sF7 = 's68'
vP2 = 'v7'
sXO, sXB = 's52', 's55'
vBAD = 'v63'
sSB0, sSB1, sGA, sGM, sPA = 's12', 's13', 's14', 's11', 's15'
vONE = 'v31'


def ids(p):
    lg = GX[0].bit_length() - 1
    p(f"s_and_b32 {sMm}, {sL}, {16 // GX[0] - 1}")
    p(f"s_and_b32 {sT0}, {sX}, {GX[0] - 1}")
    p(f"s_lshl_b32 {sT0}, {sT0}, {4 - lg}")
    p(f"s_add_u32 {sMm}, {sMm}, {sT0}")
    p(f"s_lshr_b32 {sI}, {sL}, {4 - lg}")
    p(f"s_lshr_b32 {sT0}, {sX}, {lg}")
    p(f"s_lshl_b32 {sT0}, {sT0}, {lg + 1}")
    p(f"s_add_u32 {sI}, {sI}, {sT0}")
    p(f"s_lshr_b32 {sC}, {sMm}, 1")
    p(f"s_mul_i32 {sFO}, {sMm}, 288")
    p(f"s_bitcmp1_b32 {sMm}, 0")
    p(f"s_cselect_b32 {sT0}, 0, 256")
    p(f"s_cselect_b32 {sT1}, 32, 0")
    p(f"s_add_u32 {sFH}, {sFO}, {sT0}")
    p(f"s_add_u32 {sFO}, {sFO}, {sT1}")
    p(f"s_mul_i32 {sLW}, {sW}, 9216")
    srd(p, R_A, S_W3, 576 * 9216)
    srd(p, R_B, S_W4, 4608 * 1152)


def dma_pattern(p, kind):
    t, u = (f"v{GT}", f"v{GT+1}") if kind != "w4" else ("v76", "v77")
    if kind == "half":
        p(f"v_lshrrev_b32 {t}, 2, v1")
        p(f"v_mul_u32_u24 {t}, 9216, {t}")
        p(f"v_and_b32 {u}, 3, v1")
        p(f"v_lshl_add_u32 v{DO}, {u}, 4, {t}")
        step = 16 * 9216
    else:
        stride = 9216 if kind == "w3" else 1152
        p(f"v_lshrrev_b32 {t}, 3, v1")
        p(f"v_mul_u32_u24 {t}, {stride}, {t}")
        p(f"v_bfe_u32 {u}, v1, 4, 1")
        p(f"v_lshlrev_b32 {u}, 2, {u}")
        p(f"v_xor_b32 {u}, {u}, v1")
        p(f"v_and_b32 {u}, 7, {u}")
        p(f"v_lshl_add_u32 v{DO}, {u}, 4, {t}")
        step = 8 * stride
    k0 = lambda k: k - 4 if (kind == "w4" and k >= 4) else k
    return [f"v_add_u32 v{DO+k}, {k0(k)*step - (k%4)*1024}, v{DO}" for k in range(1, 9)]


def stage_dma(tau):
    o = []
    slot = (tau % 4) * SLOT
    if tau == 0:
        o += [f"s_mul_i32 {sDA}, {sW}, {144*9216}", f"s_lshl_b32 {sT0}, {sFH}, 1", f"s_add_u32 {sDA}, {sDA}, {sT0}"]
        so = lambda k: sDA
        r = RA
    elif tau < 9:
        cc, kh = divmod(tau - 1, 2)
        o += [f"s_mul_i32 {sDA}, {sW}, {72*9216}", f"s_lshl_b32 {sT0}, {sFO}, 1", f"s_add_u32 {sDA}, {sDA}, {sT0}"]
        if kh or cc:
            o += [f"s_add_u32 {sDA}, {sDA}, {kh*288*9216 + cc*128}"]
        so = lambda k: sDA
        r = RA
    else:
        sg = tau - 9
        if sg == 0:
            o += [f"s_mov_b32 {sT0}, {8*128}"]
        else:
            o += [f"s_add_u32 {sT0}, {sC}, {sg}", f"s_and_b32 {sT0}, {sT0}, 7", f"s_lshl_b32 {sT0}, {sT0}, 7"]
        o += [f"s_add_u32 {sDA}, s62, {sT0}", f"s_add_u32 {sDB}, s63, {sT0}"]
        so = lambda k: sDA if k < 4 else sDB
        r = RB
    o = ["\n".join(o)]
    for k in range(9):
        if k % 4 == 0:
            o.append(f"s_add_u32 m0, {sLW}, {slot + k*1024}")
        o.append(f"buffer_load_dwordx4 v{DO+k}, {r}, {so(k)} offen offset:{(k%4)*1024} lds")
    return o


def w4_bases():
    return ["\n".join([f"s_sub_u32 s63, {sFO}, 32", f"s_cmp_eq_u32 {sW}, 0", f"s_cselect_b32 s62, {sFH}, s63",
                       f"s_mul_i32 {sT0}, {sW}, 72", f"s_add_u32 s62, s62, {sT0}", f"s_add_u32 s63, {sFO}, {sT0}",
                       f"s_mul_i32 s62, s62, 1152", f"s_mul_i32 s63, s63, 1152"])]


def emit_list(p, ops, tag):
    last = max(k for k, o in enumerate(ops) if o.startswith("buffer"))
    for k, o in enumerate(ops):
        p(o, tag=tag if k == last else None)


class Rec:
    def __init__(self):
        self.ops = []

    def __call__(self, text, tag=None):
        self.ops.append(text)


def tagged(ops, tag):
    last = max(k for k, o in enumerate(ops) if o.startswith("buffer"))
    return [(o, tag) if k == last else o for k, o in enumerate(ops)]


def prefill_ops():
    r = Rec()
    ids(r)
    o = ["\n".join(r.ops)]
    r = Rec()
    rest = dma_pattern(r, "half")
    o.append("\n".join(r.ops + rest))
    o += tagged(stage_dma(0), "st0")
    r = Rec()
    rest = dma_pattern(r, "w3")
    o.append("\n".join(r.ops + rest))
    for tau in (1, 2):
        o += tagged(stage_dma(tau), f"st{tau}")
    return o


def setup(p):
    t, u, d = f"v{GT}", f"v{GT+1}", f"v{GT+2}"
    p(f"v_bfe_u32 {t}, v1, 4, 1")
    p(f"v_lshlrev_b32 {t}, 5, {t}")
    p(f"v_and_b32 {u}, 1, v1")
    p(f"v_lshl_add_u32 {t}, {u}, 4, {t}")
    p(f"v_bfe_u32 {u}, v1, 1, 1")
    p(f"v_lshl_add_u32 {t}, {u}, 3, {t}")
    p(f"v_bfe_u32 {u}, v1, 2, 2")
    p(f"v_lshrrev_b32 {d}, 5, v1")
    p(f"v_lshl_add_u32 {u}, {d}, 3, {u}")
    p(f"v_lshl_add_u32 {vH0}, {u}, 6, {t}")
    p(f"v_lshl_add_u32 {t}, {u}, 7, {t}")
    p(f"v_bfe_u32 {u}, v1, 3, 1")
    p(f"v_lshl_add_u32 v{AB}, {u}, 6, {t}")
    p(f"v_xor_b32 v{AB+1}, 64, v{AB}")
    for s in range(1, 4):
        p(f"v_add_u32 v{AB+2*s}, {s*SLOT}, v{AB}")
        p(f"v_add_u32 v{AB+2*s+1}, {s*SLOT}, v{AB+1}")
    p(f"v_mov_b32 {vCA}, {hx(f2u(-GK))}")
    p(f"v_mov_b32 {vCB}, {hx(f2u(-GK*0.044715))}")
    p(f"v_min_u32 {u}, {16 + 2 * ND[0]}, v1")
    p(f"s_lshl_b32 {sFL}, {sI}, 6")
    p(f"s_add_u32 {sFL}, {sFL}, {sW}")
    p(f"s_lshl_b32 {sFL}, {sFL}, 7")
    p(f"s_add_u32 {sFL}, {sFL}, {F7}")
    p(f"s_lshl_b32 {sF7}, {sMm}, 2")
    p(f"s_add_u32 {sF7}, {sF7}, {sFL}")
    p(f"s_lshl_b32 {sT2}, {sMm}, 9")
    p(f"s_add_u32 {sT0}, {sFL}, {sT2}")
    p(f"v_lshl_add_u32 {vF6}, {u}, 2, {sT0}")
    p(f"v_lshlrev_b32 {vP2}, 9, v1")
    p(f"v_lshrrev_b32 {u}, 1, v1")
    p(f"v_sub_u32 {t}, {sC}, {u}")
    p(f"v_add_u32 {t}, 7, {t}")
    p(f"v_and_b32 {t}, 7, {t}")
    p(f"v_lshlrev_b32 {t}, 10, {t}")
    p(f"v_lshl_add_u32 {t}, {u}, 3, {t}")
    p(f"v_and_b32 {u}, 1, v1")
    p(f"v_lshl_add_u32 {t}, {u}, 9, {t}")
    p(f"s_and_b32 {sT1}, {sMm}, 1")
    p(f"s_lshl_b32 {sT1}, {sT1}, 2")
    p(f"s_add_u32 {sT1}, {sT1}, 68")
    p(f"v_add_u32 {vF68}, {sT1}, {t}")
    p(f"s_xor_b32 {sT2}, {sT2}, 512")
    p(f"s_add_u32 {sT2}, {sT2}, 64")
    p(f"v_writelane_b32 {vF68}, {sT2}, {2 * ND[0]}")
    p(f"v_mov_b32 {vZ}, 0")
    p(f"s_lshl_b32 {sT0}, {sW}, 1")
    p(f"s_xor_b32 {sT0}, {sT0}, {sI}")
    p(f"s_and_b32 {sT0}, {sT0}, {SCR[0]}")
    p(f"s_lshl_b32 {sSC}, {sT0}, 12")
    p(f"s_mul_i32 {sPB}, {sI}, 72")
    p(f"s_add_u32 {sPB}, {sPB}, {sW}")
    p(f"s_lshl_b32 {sPB}, {sPB}, 15")
    p(f"s_add_u32 {sPB}, {sPB}, {hx(PART)}")
    p(f"s_lshl_b32 {sT0}, {sMm}, 11")
    p(f"s_xor_b32 {sT0}, {sT0}, {sSC}")
    p(f"s_add_u32 {sT0}, {sT0}, {sPB}")
    p(f"s_and_b32 {sT1}, {sMm}, 1")
    p(f"s_lshl_b32 {sT1}, {sT1}, 17")
    p(f"s_add_u32 {sSB1}, {sT0}, {sT1}")
    p(f"s_xor_b32 {sT1}, {sT1}, {1 << 17}")
    p(f"s_add_u32 {sSB0}, {sT0}, {sT1}")
    p(f"s_lshl_b32 {sT0}, {sMm}, 17")
    p(f"s_add_u32 {sPB}, {sPB}, {sT0}")
    p(f"v_mov_b32 {vONE}, 1")


def select_ops():
    t, u, d = f"v{ST+10}", f"v{ST+11}", f"v{ST+12}"
    o = [f"v_and_b32 {t}, 0x13, v1", f"v_bfe_u32 {u}, v1, 2, 1", f"v_lshl_add_u32 {t}, {u}, 3, {t}",
         f"v_bfe_u32 {u}, v1, 3, 1", f"v_lshl_add_u32 {t}, {u}, 2, {t}", f"v_lshrrev_b32 {d}, 5, v1",
         f"v_lshlrev_b32 {d}, 3, {d}", f"v_sub_u32 {t}, {t}, {d}",
         f"v_and_b32 {u}, 31, v1"]
    for src, bases in ((t, ((ID0, 0), (ID1, 8))), (u, ((IDX, 0),))):
        o += [f"v_and_b32 {d}, 1, {src}", f"v_lshlrev_b32 {d}, 4, {d}", f"v_mov_b32 v{ST+13}, 0x3f80",
              f"v_lshlrev_b32 {d}, {d}, v{ST+13}", f"v_ashrrev_i32 {src}, 1, {src}"]
        for base, sub in bases:
            for k in range(4):
                o += [f"v_cmp_eq_u32 s[8:9], {sub+k}, {src}\ns_nop 1\nv_cndmask_b32 v{base+k}, 0, {d}, s[8:9]"]
    return o


def stat_poll(p):
    t = f"v{GT}"
    p(f"s_lshl_b32 {sT0}, {sI}, 2")
    p(f"s_add_u32 {sT0}, {sT0}, {sW}")
    p(f"s_lshl_b32 {sT1}, {sT0}, 12")
    p(f"s_add_u32 {sT1}, {sT1}, {hx(ST5)}")
    p(f"s_mul_i32 {sXB}, {sT0}, 36864")
    p(f"s_add_u32 {sXB}, {sXB}, {hx(X1)}")
    p(f"v_lshlrev_b32 {t}, 8, v1")
    p("s_mov_b64 exec, 0xffff")
    poll_data(p, lambda: p(f"buffer_load_dword v{GT+1}, {t}, {WS}, {sT1} offen sc1"), f"v{GT+1}")
    p("s_mov_b64 exec, -1")


def stat_loads(p):
    t = f"v{GT}"
    p(f"s_lshl_b32 {sT0}, {sI}, 2")
    p(f"s_add_u32 {sT0}, {sT0}, {sW}")
    p(f"s_lshl_b32 {sT1}, {sT0}, 12")
    p(f"s_add_u32 {sT1}, {sT1}, {hx(ST5)}")
    p(f"v_and_b32 {t}, 31, v1")
    p(f"v_lshlrev_b32 {t}, 3, {t}")
    p(f"v_lshrrev_b32 v{GT+1}, 5, v1")
    p(f"v_lshl_add_u32 {t}, v{GT+1}, 11, {t}")
    for k in range(8):
        p(f"buffer_load_dwordx2 {vr(ST+2*k,2)}, {t}, {WS}, {sT1} offen offset:{k*256} sc1")


def x_loads():
    o = []
    for s in range(36):
        x = f"buffer_load_dwordx4 {vr(XB+4*s,4)}, {vLN}, {WS}, {sXO} offen offset:{(s%4)*1024} sc1"
        if s % 4 == 0:
            x = f"s_add_u32 {sXO}, {sXB}, {s*1024}\n" + x
        o.append(x)
    return o


def check_ops(s):
    d = XB + 4 * s
    if s % 9 == 8:
        return [f"v_max3_u32 {vBAD}, v{d}, v{d+1}, {vBAD}", f"v_max3_u32 {vBAD}, v{d+2}, v{d+3}, {vBAD}"]
    return [f"v_max_u32 {vBAD}, v{d}, {vBAD}"]


vR, vNM = f"v{ST}", f"v{ST+1}"


def stats(p):
    R = ST
    p(f"v_max3_u32 {vBAD}, v{R}, v{R+2}, v{R+4}")
    p(f"v_max3_u32 {vBAD}, v{R+6}, v{R+8}, {vBAD}")
    p(f"v_max3_u32 {vBAD}, v{R+10}, v{R+12}, {vBAD}")
    p(f"v_max_u32 {vBAD}, v{R+14}, {vBAD}")
    for step in (8, 4, 2):
        for k in range(0, step, 2):
            p(f"v_add_f32 v{R+k}, v{R+k}, v{R+k+step}")
            p(f"v_add_f32 v{R+k+1}, v{R+k+1}, v{R+k+step+1}")
    S, Q = f"v{R}", f"v{R+1}"
    xhalf(p, "v_add_f32", S, f"v{R+2}")
    xhalf(p, "v_add_f32", Q, f"v{R+3}")
    p(f"v_mul_f32 v{R+2}, {hx(f2u(-1.0/576))}, {S}")
    p(f"v_mul_f32 {Q}, {hx(f2u(1.0/576))}, {Q}")
    p(f"v_fma_f32 {Q}, -v{R+2}, v{R+2}, {Q}")
    p(f"v_max_f32 {Q}, 0, {Q}")
    p(f"v_add_f32 {Q}, {hx(f2u(EPS))}, {Q}")
    p(f"v_rsq_f32 {vR}, {Q}")
    p(f"v_mul_f32 {vNM}, v{R+2}, {vR}")


def norm_ops(s):
    o = []
    for k in range(0, 4, 2):
        a, b = XB + 4 * s + k, XB + 4 * s + k + 1
        t = [ST + 2 + 4 * (k // 2) + j for j in range(4)]
        o += [f"v_lshlrev_b32 v{t[0]}, 16, v{a}", f"v_and_b32 v{t[1]}, 0xffff0000, v{a}",
              f"v_lshlrev_b32 v{t[2]}, 16, v{b}", f"v_and_b32 v{t[3]}, 0xffff0000, v{b}"]
        o += [f"v_fma_f32 v{x}, v{x}, {vR}, {vNM}" for x in t]
        o += [f"v_cvt_pk_bf16_f32 v{a}, v{t[0]}, v{t[1]}", f"v_cvt_pk_bf16_f32 v{b}, v{t[2]}, v{t[3]}"]
    return o


def gelu_list(acc, pos):
    o = []
    for e in range(0, 16, 2):
        x0, x1 = f"v{acc+e}", f"v{acc+e+1}"
        t0, t1 = f"v{GT+(e & 2)}", f"v{GT+1+(e & 2)}"
        o += interleave([gelu_ops(x0, t0, vCA, vCB), gelu_ops(x1, t1, vCA, vCB)])
        o += [f"v_cvt_pk_bf16_f32 {x0}, {x0}, {x1}"]
        o += [f"v_accvgpr_write_b32 a{HB_+8*pos+e//2}, {x0}"]
    return o


def part_store_list(acc, sg, par1, cv):
    o = [f"v_cvt_pk_bf16_f32 v{cv+k}, v{acc+2*k}, v{acc+2*k+1}" for k in range(8)]
    if sg >= 8 - ND[0]:
        o.insert(4, f"v_min_u32 v{cv}, {CLEAN}, v{cv}")
        o.append(f"v_min_u32 v{cv+4}, {CLEAN}, v{cv+4}")
        o = o[:5], o[5:]
    else:
        o = o[:4], o[4:]
    A = "s64"
    base = sSB1 if par1 else sSB0
    if sg == 0:
        q = [f"s_add_u32 {A}, {base}, {8 << 18}"]
    else:
        q = [f"s_add_u32 {A}, {sC}, {sg}", f"s_and_b32 {A}, {A}, 7", f"s_lshl_b32 {A}, {A}, 18",
             f"s_add_u32 {A}, {A}, {base}"]
    o = o[0] + q + [(f"buffer_store_dwordx4 {vr(cv,4)}, {vLN}, {WS}, {A} offen sc1{NT[1]}", None)] + o[1]
    o += [(f"buffer_store_dwordx4 {vr(cv+4,4)}, {vLN}, {WS}, {A} offen offset:1024 sc1{NT[1]}", f"ps{sg}_{par1}")]
    return o


LV = 144


def direct_ops(g):
    A = "s1"
    o = [f"s_add_u32 {A}, {sC}, {8-g}\ns_and_b32 {A}, {A}, 7\ns_lshl_b32 {A}, {A}, 12\ns_xor_b32 {A}, {A}, {sSC}\n"
         f"s_add_u32 {A}, {A}, {sPB}"]
    return o + [f"buffer_load_dwordx4 {vr(LV+8+16*(7-g)+4*k,4)}, {vLN}, {WS}, {A} offen offset:{k*1024} sc1"
                for k in range(4)]


def late_poison():
    V, A = 72, "s0"
    o = [f"v_mov_b32 v{V+k}, -1" for k in range(4)]
    for sg, base in [(g, b) for g in range(8 - ND[0], 8) for b in (sSB0, sSB1)] + [(8, sSB0)]:
        o += [f"s_add_u32 {A}, {sC}, {sg}\ns_and_b32 {A}, {A}, 7\ns_lshl_b32 {A}, {A}, 18\ns_add_u32 {A}, {A}, {base}"]
        o += [f"buffer_store_dwordx4 {vr(V,4)}, {vLN}, {WS}, {A} offen offset:{k*1024} sc1" for k in range(2)]
    return o


def flag_publish(p, val):
    p(f"s_mov_b64 exec, {hx((2 << (2 * ND[0])) - 1)}")
    p(f"buffer_store_dword {vONE}, {vF68}, {WS}, {sFL} offen sc1")
    p("s_mov_b64 exec, -1")


def pair_publish_ops(p, sg, tag):
    o = [f"s_add_u32 {sPA}, {sC}, {sg}", f"s_and_b32 {sPA}, {sPA}, 7", f"s_lshl_b32 {sPA}, {sPA}, 10",
         f"s_add_u32 {sPA}, {sPA}, {sF7}"]

    def fin():
        if tag:
            p.wait_vm(tag)
        if sg == 8:
            p(f"s_and_b32 {sT0}, {sMm}, 1")
            p(f"s_lshr_b32 exec_lo, 2, {sT0}")
            p("s_mov_b32 exec_hi, 0")
        else:
            p("s_mov_b64 exec, 3")
        p(f"buffer_store_dword {vONE}, {vP2}, {WS}, {sPA} offen sc1")
        p("s_mov_b64 exec, -1")
    fin.cost = 24
    return o + [fin]


def flag_load(p, dst, addr):
    p(f"buffer_load_dword {dst}, {addr}, {WS}, 0 offen sc1")


def flag_check(p, reg, addr, val, mask):
    lp, ok = p.label("fc"), p.label("fcok")
    p.wait_regs(reg)
    p(f"{lp}:")
    p(f"v_cmp_gt_u32 vcc, {val}, {reg}")
    p(f"s_and_b32 {sT1}, vcc_lo, {mask}")
    p(f"s_cbranch_scc0 {ok}")
    s = p.side_begin()
    p(f"s_add_u32 {sCNT}, {sCNT}, 1")
    p(f"s_cmp_gt_u32 {sCNT}, {SPIN_MAX}")
    p(f"s_cbranch_scc1 {ok}")
    flag_load(p, reg, addr)
    p("s_waitcnt vmcnt(0)")
    p(f"s_branch {lp}")
    p.side_end(s)
    p(f"{ok}:")


def group_ops(p, g, slot, fl, check=True, load=True):
    o = [f"s_add_u32 {sGA}, {sC}, {8-g}", f"s_and_b32 {sGA}, {sGA}, 7", f"s_lshl_b32 {sGM}, {sGA}, 1",
         f"s_lshl_b32 {sGM}, 3, {sGM}", f"s_lshl_b32 {sGA}, {sGA}, 12", f"s_xor_b32 {sGA}, {sGA}, {sSC}",
         f"s_add_u32 {sGA}, {sGA}, {sPB}" if not LOCAL[0] else f"s_mov_b32 {sGA}, {sXB}"]
    if check:
        chk = lambda: flag_check(p, fl, vF6, 1, sGM)
        chk.cost = 24
        o.append(chk)
    if load:
        for k in range(0, 4, HALF[0]):
            o.append(f"buffer_load_dwordx4 {ar(PL+8*slot+4*k,4)}, {vLN}, {WS}, {sGA} offen offset:{k*1024} sc1{NT[0]}")
    return o


def residual_loads():
    sT0, sT1 = 's0', 's1'
    o = [f"s_lshl_b32 {sT0}, {sI}, 2", f"s_add_u32 {sT0}, {sT0}, {sW}", f"s_mul_i32 {sT0}, {sT0}, 36",
         f"s_lshl_b32 {sT1}, {sMm}, 1", f"s_add_u32 {sT0}, {sT0}, {sT1}", f"s_lshl_b32 {sT0}, {sT0}, 10",
         f"s_add_u32 {sT1}, {sT0}, {hx(HB)}", f"s_add_u32 {sT0}, {sT0}, {hx(X1)}"]
    for j, s in enumerate((sT1, sT0)):
        for k in range(2):
            o.append(f"buffer_load_dwordx4 {ar(PL+8*(15+j)+4*k,4)}, {vLN}, {WS}, {s} offen offset:{k*1024} sc1")
    return o


vC8T, vC8P, vC8A = f"v{ST+2}", f"v{ST+3}", f"v{ST+4}"
sC8, sC8X = "s65", "s66"


def c8_setup():
    sT0, sT1 = 's0', 's1'
    t, u, a = vC8T, vC8P, vC8A
    o = [f"s_and_b32 {sT0}, {sW}, 1", f"s_lshl_b32 {sT0}, {sT0}, 5", f"s_lshr_b32 {sT1}, {sW}, 1",
         f"s_lshl_b32 {sT1}, {sT1}, 4", f"s_add_u32 {sT0}, {sT0}, {sT1}",
         f"v_and_b32 {t}, 15, v1", f"v_add_u32 {t}, {sT0}, {t}", f"v_lshlrev_b32 {t}, 4, {t}",
         f"v_lshrrev_b32 {u}, 5, v1",
         f"v_mov_b32 {a}, {hx(X1-HB)}", f"v_mul_lo_u32 {a}, {u}, {a}", f"v_add_u32 {a}, {a}, {t}",
         f"v_lshl_add_u32 {t}, {u}, 11, {t}",
         f"v_bfe_u32 {u}, v1, 4, 1", f"v_lshl_add_u32 {a}, {u}, 27, {a}",
         f"s_lshl_b32 {sT0}, {sI}, 2", f"s_lshr_b32 {sT1}, {sMm}, 2", f"s_add_u32 {sT0}, {sT0}, {sT1}",
         f"s_mul_i32 {sT0}, {sT0}, 36", f"s_and_b32 {sT1}, {sMm}, 3", f"s_add_u32 {sT0}, {sT0}, {sT1}",
         f"s_add_u32 {sT0}, {sT0}, 32", f"s_lshl_b32 {sT0}, {sT0}, 10", f"s_add_u32 {sT0}, {sT0}, {hx(HB)}",
         f"buffer_load_dwordx4 {ar(PL8+16,4)}, {a}, {WS}, {sT0} offen sc1",
         f"v_sub_u32 {u}, {sC}, {u}",
         f"s_mul_i32 {sT0}, {sI}, 18", f"s_bfe_u32 {sT1}, {sMm}, 0x10001", f"s_add_u32 {sT0}, {sT0}, {sT1}",
         f"s_add_u32 {sT0}, {sT0}, 16", f"s_lshl_b32 {sT0}, {sT0}, 2", f"s_lshr_b32 {sT1}, {sMm}, 2",
         f"s_add_u32 {sT0}, {sT0}, {sT1}", f"s_lshl_b32 {sT0}, {sT0}, 15", f"s_and_b32 {sT1}, {sMm}, 1",
         f"s_lshl_b32 {sT1}, {sT1}, 10", f"s_add_u32 {sT0}, {sT0}, {sT1}", f"s_add_u32 {sC8}, {sT0}, {hx(PART)}",
         f"s_lshr_b32 {sT1}, {sMm}, 2", f"s_lshl_b32 {sT1}, {sT1}, 1", f"s_xor_b32 {sT1}, {sT1}, {sI}",
         f"s_and_b32 {sC8X}, {sT1}, {SCR[0]}"]
    assert OOB == 1 << 27
    return o


def c8_load(k):
    a = vC8A
    return [f"v_add_u32 {a}, {16 - 2*k - 1}, {vC8P}", f"v_and_b32 {a}, 7, {a}", f"v_xor_b32 {a}, {sC8X}, {a}",
            f"v_lshl_add_u32 {a}, {a}, 12, {vC8T}",
            f"buffer_load_dwordx4 {ar(PL8+4*k,4)}, {a}, {WS}, {sC8} offen sc1"]


def build_sequence():
    seq = []
    for s in range(36):
        seq.append(dict(acc=ACC[0], first=s == 0, b=vr(XB + 4 * s, 4), base=vH0, off=(s * 1024, s * 1024 + 256), seg=0))
    for cc in range(4):
        for par in range(2):
            n = 1 + 2 * cc + par
            for s in range(36):
                slot = (1 + 2 * cc + s // 18) % 4
                o = (s % 18) * 2048
                seq.append(dict(acc=ACC[n % 2], first=s == 0, b=vr(XB + 4 * s, 4), base=f"v{AB+2*slot+par}",
                                off=(o, o + 512), seg=1 + cc))
    for sg in range(9):
        slot = (9 + sg) % 4
        if sg == 0:
            order = [(s, c) for s in range(18) for c in range(2)]
            accs = (ACC[1], ACC[2])
        else:
            order = [(s, c) for c in range(2) for s in range(18)]
            accs = (ACC[0], ACC[1])
        for s, c in order:
            seq.append(dict(acc=accs[c], first=s == 0, b=ar(HB_ + 4 * s, 4), base=f"v{AB+2*slot+c}",
                            off=(s * 2048, s * 2048 + 512), seg=5 + sg))
    return seq


def main_loop(p, st, opts):
    seq = build_sequence()
    N = len(seq)
    start = {}
    for j, e in enumerate(seq):
        start.setdefault(e["seg"], j)
    seg_stages = {0: [0], 1: [1, 2], 2: [3, 4], 3: [5, 6], 4: [7, 8]}
    for sg in range(9):
        seg_stages[5 + sg] = [9 + sg]
    dma_after = {1: [4], 2: [5, 6], 3: [7, 8], 4: [9, 10], 5: [11, 12]}
    for k in range(6, 11):
        dma_after[k] = [7 + k]
    swapped = [False]

    def rd(j):
        e = seq[j]
        if e["seg"] >= 5 and not swapped[0]:
            swapped[0] = True
            p(f"s_and_b32 {sT1}, {sMm}, 1")
            p(f"s_xor_b32 {sT1}, {sT1}, 1")
            p(f"s_lshl_b32 {sT1}, {sT1}, 6")
            for r in range(AB, AB + 8):
                p(f"v_xor_b32 v{r}, {sT1}, v{r}")
        d = AFR + 4 * (j % NAF)
        for q in range(2):
            p(f"ds_read_b64_tr_b16 {ar(d+2*q,2)}, {e['base']} offset:{e['off'][q]}")

    F = Filler(p)
    add = F.add
    for n in range(9):
        e = 36 * (n + 1)
        add(e + 2, e + (34 if n < 8 else 29), gelu_list(ACC[n % 2], n))
    for k, taus in dma_after.items():
        ops = []
        for tau in taus:
            if tau == 9:
                r = Rec()
                rest = dma_pattern(r, "w4")
                ops += r.ops + rest + w4_bases()
            ops += tagged(stage_dma(tau), f"st{tau}")
        add(start[k] - 3, start[k] + (opts.get("dma3", 50) if k < 5 else opts.get("dma4", 31)), ops)
    E0 = start[5]
    if opts.get("pf60"):
        pf0 = lambda: weight_prefetch(p, opts, opts["pf60"], V=64)
        add(26, 27, [pf0])
    opts.setdefault("pf6", "4")
    if opts.get("pf6"):
        pf = lambda: weight_prefetch(p, opts, opts["pf6"], V=64)
        pf.cost = 60
        add(start[2] + 55, start[2] + 60, [pf])
    add(E0 + 38, E0 + 45, part_store_list(ACC[1], 0, 0, CV[0]))
    add(E0 + 46, E0 + 52, part_store_list(ACC[2], 0, 1, CV[1]))
    for sg in range(1, 9):
        e = start[5 + sg]
        add(e + 20, e + 28, part_store_list(ACC[0], sg, 0, CV[0]))
        if sg < 8:
            add(e + 38, e + 46, part_store_list(ACC[1], sg, 1, CV[1]))
    add(start[7], start[7] + 30, residual_loads())
    nslot = 0
    LAG = opts.get("lag", ND[0] - 1)
    pubpos, ldpos, chkpos = opts.get("pubpos", 30), opts.get("ldpos", 12), opts.get("chkpos", 28)
    for sg in range(1, 9):
        e = start[5 + sg]
        PL_ = opts.get("publag", 0)
        ps = sg - 1 - PL_
        tag = None if opts.get("x_nopubwait") else f"ps{ps}_1"
        pp = pubpos if sg < 8 else opts.get("pub8", 24)
        if ps < 0 or ps >= 8 - ND[0]:
            pass
        elif ps == 0:
            w0 = lambda tag=tag: p.wait_vm(tag) if tag else None
            w0.cost = 4
            add(e + 30, e + 31, [w0])
            add(e + 40, e + 44, [lambda: flag_publish(p, 1)])
        else:
            o = pair_publish_ops(p, ps, tag)
            add(e + pp - 8, e + pp - 1, o[:-1])
            add(e + pp, e + pp + 1, o[-1:])
        g = sg - 2 - LAG
        if g >= 8 - ND[0]:
            continue
        if g >= 1 and not opts.get("x_nochk"):
            fl = (vFL, vFLb)[g & 1]
            add(e + ldpos, e + ldpos + 1, [lambda fl=fl: flag_load(p, fl, vF6)])
            o = group_ops(p, g, nslot, fl, not opts.get("x_nospin"), not opts.get("x_noload"))
            if g == 1:
                o[3] += f"\ns_or_b32 {sGM}, {sGM}, {hx(((2 << (2 * ND[0])) - 1) << 16)}"
            add(e + chkpos - 12, e + chkpos - 1, o[:7])
            for k in range(4):
                need = max([1] + [q for q in (2 * k + 1, 2 * k + 2) if q < 8 - ND[0]])
                if need == g:
                    o += c8_load(k)
            add(e + chkpos, min(e + chkpos + 9, N - 1), o[7:])
        if g >= 1:
            nslot += 2
    add(start[6] + 10, start[7] - 6, c8_setup())
    add(start[8], start[8] + 30, tail_setup())
    add(start[opts.get("lps", 1)] + 4, start[opts.get("lps", 1)] + 68, late_poison())
    for q, g in enumerate(range(8 - ND[0], 7)):
        e = start[13] + opts.get("spec0", 0) + q * opts.get("specd", 14)
        add(e, e + 8, direct_ops(g))
    add(start[11] + 4, start[13], select_ops())
    add(opts.get("st3a", 24), opts.get("st3b", 31), tagged(stage_dma(3), "st3"))

    again = p.label("again6")
    p(f"{again}:")
    stat_loads(p)
    xl = x_loads()
    emit_some(p, xl, opts.get("xahead", 12))
    st(p, "xiss")
    setup(p)
    for j in range(PD):
        rd(j)
    stats(p)
    for o in check_ops(0) + norm_ops(0):
        p(o)
    issued = PD
    bounds = sorted(start.values())[1:]
    for j, e in enumerate(seq):
        d = AFR + 4 * (j % NAF)
        acc = vr(e["acc"], 16)
        if opts.get("wait2", 1) and j % 2 == 0 and j + 1 < issued:
            p.wait_regs(ar(AFR + 4 * ((j + 1) % NAF), 4))
        p(f"v_mfma_f32_32x32x16_bf16 {acc}, {ar(d,4)}, {e['b']}, {'0' if e['first'] else acc}")
        nb = next((b for b in bounds if b > j), None)
        if nb is not None and j == nb - 4:
            p.wait_lg()
            for tau in seg_stages[seq[nb]["seg"]]:
                p.wait_vm(f"st{tau}")
            p("s_barrier")
            if st:
                st(p, f"seg{seq[nb]['seg']}")
        lim = min(j + PD, N - 1)
        if nb is not None and j < nb - 4:
            lim = min(lim, nb - 1)
        emit_some(p, xl, 1)
        if j < 31:
            for o in check_ops(j + 1):
                p(o)
        if j == 31:
            for s_ in range(32, 36):
                for o in check_ops(s_):
                    p(o)
            redo_if_poison(p, vBAD, again, sCNT)
        if j < 35:
            for o in norm_ops(j + 1):
                p(o)
        while issued <= lim:
            rd(issued)
            issued += 1
        F.gap(j)
    assert F.done()
    return nslot


vO8, vOM = f"v{ST+6}", f"v{ST+7}"
sO8, sOM, sG7, sPP = "s4", "s5", "s6", "s7"


def tail_setup():
    a, b, t = 's0', 's1', f"v{ST+8}"
    return [f"s_mov_b32 s{R_C}, s{S_OUT}\ns_mov_b32 s{R_C+1}, s{S_OUT+1}",
            f"s_mov_b32 s{R_C+2}, {2048*1152}\ns_mov_b32 s{R_C+3}, 0x20000",
            f"v_and_b32 {vO8}, 15, v1", f"v_mul_u32_u24 {vO8}, 1152, {vO8}", f"v_lshrrev_b32 {t}, 5, v1",
            f"v_lshl_add_u32 {vO8}, {t}, 3, {vO8}",
            f"v_and_b32 {vOM}, 31, v1", f"v_mul_u32_u24 {vOM}, 1152, {vOM}", f"v_lshl_add_u32 {vOM}, {t}, 4, {vOM}",
            f"s_lshl_b32 {a}, {sI}, 2", f"s_lshr_b32 {b}, {sMm}, 2", f"s_add_u32 {a}, {a}, {b}",
            f"s_lshl_b32 {a}, {a}, 1", f"s_lshr_b32 {b}, {sW}, 1", f"s_add_u32 {a}, {a}, {b}",
            f"s_mul_i32 {a}, {a}, {16*1152}", f"s_and_b32 {b}, {sMm}, 3", f"s_lshl_b32 {b}, {b}, 5",
            f"s_add_u32 {a}, {a}, {b}", f"s_and_b32 {b}, {sW}, 1", f"s_lshl_b32 {b}, {b}, 4",
            f"s_add_u32 {sO8}, {a}, {b}",
            f"s_lshl_b32 {a}, {sI}, 2", f"s_add_u32 {a}, {a}, {sW}", f"s_mul_i32 {a}, {a}, 36864",
            f"s_lshl_b32 {b}, {sMm}, 6", f"s_add_u32 {sOM}, {a}, {b}",
            f"s_xor_b32 {a}, {sMm}, 1", f"s_lshl_b32 {a}, {a}, 11",
            f"s_xor_b32 {a}, {a}, {sSC}", f"s_add_u32 {sPP}, {a}, {sPB}"]


def tail(p, st, nslot, opts):
    nd = ND[0]
    assert nslot == 2 * (7 - nd)
    acc = vr(ACC[1], 16)

    def addr(r):
        p(f"v_mfma_f32_32x32x16_bf16 {acc}, {vr(ID0,4)}, {r(0)}, {acc}")
        p(f"v_mfma_f32_32x32x16_bf16 {acc}, {vr(ID1,4)}, {r(4)}, {acc}")

    addp = lambda slot: addr(lambda k: ar(PL + 8 * slot + k, 4))
    addv = lambda t: addr(lambda k: vr(LV + 8 * t + k, 4))
    a8 = vr(ACC8, 16)

    def add8(k):
        p(f"v_mfma_f32_32x32x16_bf16 {a8}, {vr(IDX,4)}, {ar(PL8+4*k,4)}, {'0' if k == 4 else a8}")

    def fetch(g):
        for o in direct_ops(g):
            p(o)

    def partner():
        for k in range(2):
            p(f"buffer_load_dwordx4 {vr(LV+4*k,4)}, {vLN}, {WS}, {sPP} offen offset:{k*1024} sc1")

    def bad():
        regs = [f"v{LV+4*k}" for k in range(2 + 4 * nd)][::-1]
        p(f"v_max_u32 {vBAD}, {regs[0]}, {regs[1]}")
        for k in range(2, len(regs), 2):
            p(f"v_max3_u32 {vBAD}, {regs[k]}, {regs[k+1]}, {vBAD}")

    todo = [15, 16] + list(range(nslot))
    n0 = opts.get("t0", 4)
    fetch(7)
    for s in todo[:n0]:
        addp(s)
    partner()
    for s in todo[n0:]:
        addp(s)
    for k in (4, 3, 0, 1, 2):
        add8(k)
    ok = p.label("tailok")
    bad()
    p(f"v_cmp_eq_u32 vcc, -1, {vBAD}")
    p("s_nop 1")
    p(f"s_cbranch_vccz {ok}")
    sd = p.side_begin()
    poll_data(p, lambda: ([fetch(g) for g in range(8 - nd, 8)], partner()), vBAD, multi=bad)
    p.side_end(sd)
    p(f"{ok}:")
    for t in range(2 * nd, 0, -1):
        addv(t)
    t = ST + 10
    for k in range(4):
        p(f"v_mov_b32 v{t+k}, v{ACC8+k}")
    for k in range(4):
        p(f"v_permlane16_swap_b32 v{ACC8+k}, v{t+k}")
    for k in range(4):
        p(f"v_add_f32 v{ACC8+k}, v{ACC8+k}, v{t+k}")
    addv(0)
    p(f"v_cvt_pk_bf16_f32 v{ACC8}, v{ACC8}, v{ACC8+1}")
    p(f"v_cvt_pk_bf16_f32 v{ACC8+1}, v{ACC8+2}, v{ACC8+3}")
    p("s_mov_b32 exec_lo, 0xffff")
    p("s_mov_b32 exec_hi, 0xffff")
    p(f"buffer_store_dwordx2 {vr(ACC8,2)}, {vO8}, {RC}, {sO8} offen offset:1024{OST[0]}")
    p("s_mov_b64 exec, -1")
    a = ACC[1]
    for h in range(2):
        for k in range(4 * h, 4 * h + 4):
            p(f"v_cvt_pk_bf16_f32 v{CV[0]+k}, v{a+2*k}, v{a+2*k+1}")
        p(f"buffer_store_dwordx4 {vr(CV[0]+4*h,4)}, {vOM}, {RC}, {sOM} offen offset:{32*h}{OST[0]}")


def p6(p, st, opts, left):
    HALF[0] = opts.get("x_half", 1)
    OST[0] = opts.get("ost", "")
    LOCAL[0] = opts.get("x_local", 0)
    ND[0] = opts.get("nd", 1)
    SCR[0] = opts.get("scr", 7)
    NT[0] = " nt" if opts.get("ntld") else ""
    NT[1] = " nt" if opts.get("ntst") else ""
    emit_some(p, left, 99)
    p(f"s_mov_b32 {sCNT}, 0")
    st(p, "p5")
    stat_poll(p)
    st(p, "f5seen")
    nslot = main_loop(p, st, opts)
    st(p, "mlp")
    tail(p, st, nslot, opts)
```

```python
from common import *


def weight_prefetch(p, opts, which, V=243, R=R_C):
    RC = sr(R, 4)
    if not which:
        return
    a, t, u = f"v{V+5}", f"v{V+6}", f"v{V+4}"
    p(f"v_lshlrev_b32 {a}, 7, v0")
    p("v_cmp_gt_u32 vcc, 162, v0")
    p(f"v_mov_b32 {t}, {hx(OOB)}")
    p(f"v_cndmask_b32 {a}, {t}, {a}, vcc")
    p(f"s_mul_i32 s0, {sL}, 20736")
    for ch in which:
        ptr = {"o": S_WO, "1": S_W1, "2": S_W2, "3": S_W3, "4": S_W4}[ch]
        srd(p, R, ptr, 576 * 9216 if ch in "34" else 576 * 1152)
        if ch == "3":
            p(f"v_mul_u32_u24 {u}, 57, v0")
            p(f"v_lshrrev_b32 {u}, 9, {u}")
            p(f"v_mul_u32_u24 {u}, {9216-1152}, {u}")
            p(f"v_add_u32 {u}, {u}, {a}")
            p(f"s_mul_i32 s1, {sL}, {18*9216}")
            p(f"s_mul_i32 s69, {sX}, 1152")
            p("s_add_u32 s1, s1, s69")
            p(f"buffer_load_dword {t}, {u}, {RC}, s1 offen")
        elif ch == "4":
            p(f"s_mul_i32 s1, {sX}, {576*1152}")
            p("s_add_u32 s1, s1, s0")
            p(f"buffer_load_dword v{V+3}, {a}, {RC}, s1 offen")
        else:
            p(f"buffer_load_dword v{V + 'o12'.index(ch)}, {a}, {RC}, s0 offen")


def packed_prefetch(p, mat, V):
    L = p.label("ppf")
    p(f"s_cmp_eq_u32 {sW}, 0")
    p(f"s_cbranch_scc1 {L}")
    p(f"v_subrev_u32 v{V}, 64, v0")
    p(f"v_min_u32 v{V}, 179, v{V}")
    p(f"v_lshlrev_b32 v{V}, 7, v{V}")
    p(f"s_mul_i32 s69, {sL}, {180*128}")
    p(f"s_add_u32 s69, s69, {hx(WP + mat*16*45*1024)}")
    n = p.vm.n
    p(f"buffer_load_dword v{V+1}, v{V}, {WS}, s69 offen sc1")
    p.vm.n = n
    p.vm.pend.pop(("v", V + 1))
    p(f"{L}:")


def scalar_prefetch(which):
    o = []
    for ch in which:
        if ch == "3":
            o.append(f"s_mul_i32 s0, {sL}, 18\ns_add_u32 s0, s0, {sW}\ns_mul_i32 s0, s0, 9216\ns_mul_i32 s1, {sX}, 1152\n"
                     f"s_add_u32 s0, s0, s1\ns_add_u32 s0, s0, s{S_W3}\ns_addc_u32 s1, s{S_W3+1}, 0")
            o += [f"s_load_dword s69, s[0:1], {r*9216 + k*128}" for r in (0, 4, 8, 12) for k in range(9)]
            o.append(f"s_mul_i32 s0, {sL}, 18\ns_lshr_b32 s1, {sW}, 1\ns_add_u32 s0, s0, s1\ns_add_u32 s0, s0, 16\n"
                     f"s_mul_i32 s0, s0, 9216\ns_mul_i32 s1, {sX}, 1152\ns_add_u32 s0, s0, s1\ns_and_b32 s1, {sW}, 1\n"
                     f"s_lshl_b32 s1, s1, 9\ns_add_u32 s0, s0, s1\ns_add_u32 s0, s0, s{S_W3}\ns_addc_u32 s1, s{S_W3+1}, 0")
            o += [f"s_load_dword s69, s[0:1], {k*128}" for k in range(5)]
        else:
            o.append(f"s_mul_i32 s0, {sX}, {576*1152}\ns_mul_i32 s1, {sL}, 20736\ns_add_u32 s0, s0, s1\n"
                     f"s_mul_i32 s1, {sW}, {40*128}\ns_add_u32 s0, s0, s1\ns_add_u32 s0, s0, s{S_W4}\n"
                     f"s_addc_u32 s1, s{S_W4+1}, 0")
            o += [f"s_load_dword s69, s[0:1], {k*128}" for k in range(42)]
    return o


def w3_first_lines(V, R):
    a, t, e = f"v{V}", f"v{V+1}", f"v{V+2}"
    return [f"s_mov_b32 s{R}, s{S_W3}\ns_mov_b32 s{R+1}, s{S_W3+1}\ns_mov_b32 s{R+2}, {576*9216}\ns_mov_b32 s{R+3}, 0x20000",
            f"s_mul_i32 s0, s2, 72", f"s_mul_i32 s1, {sW}, 18", "s_add_u32 s0, s0, s1",
            f"v_min_u32 {e}, 17, v1", f"v_add_u32 {e}, s0, {e}",
            f"v_bfe_u32 {a}, {e}, 2, 3", f"v_mul_u32_u24 {a}, 9, {a}", f"v_and_b32 {t}, 3, {e}",
            f"v_lshlrev_b32 {t}, 2, {t}", "s_mov_b32 s1, 0x1540", f"v_lshrrev_b32 {t}, {t}, s1",
            f"v_and_b32 {t}, 15, {t}", f"v_add_u32 {a}, {a}, {t}", f"v_lshlrev_b32 {a}, 7, {a}",
            f"v_and_b32 {t}, 3, {e}", f"v_cmp_eq_u32 vcc, 3, {t}\nv_lshrrev_b32 {e}, 5, {e}\n"
            f"v_and_b32 {t}, 1, {e}\nv_mul_u32_u24 {t}, 640, {t}\nv_cndmask_b32 {t}, 0, {t}, vcc\n"
            f"v_add_u32 {a}, {a}, {t}\nv_lshrrev_b32 {t}, 1, {e}\nv_cndmask_b32 {e}, {e}, {t}, vcc",
            f"v_mul_u32_u24 {e}, 9216, {e}", f"v_add_u32 {a}, {a}, {e}",
            f"buffer_load_dword v{V+3}, {a}, {sr(R,4)}, 0 offen"]
```

```python
from common import *

sQ, sMAT, sG, sKH, sT0, sT1, sB = "s48", "s49", "s50", "s51", "s53", "s54", "s52"
T = 96
FR = 152


NPREP = 27


def prep_issue(p):
    p(f"s_mul_i32 {sMAT}, {sQ}, 57")
    p(f"s_lshr_b32 {sMAT}, {sMAT}, 9")
    p(f"s_mul_i32 {sKH}, {sMAT}, 9")
    p(f"s_sub_u32 {sKH}, {sQ}, {sKH}")
    p(f"s_cmp_eq_u32 {sMAT}, 1")
    p(f"s_cselect_b32 s{R_A}, s{S_W1}, s{S_W2}")
    p(f"s_cselect_b32 s{R_A+1}, s{S_W1+1}, s{S_W2+1}")
    p(f"s_cmp_eq_u32 {sMAT}, 0")
    p(f"s_cselect_b32 s{R_A}, s{S_WO}, s{R_A}")
    p(f"s_cselect_b32 s{R_A+1}, s{S_WO+1}, s{R_A+1}")
    p(f"s_mov_b32 s{R_A+2}, {576*1152}")
    p(f"s_mov_b32 s{R_A+3}, 0x20000")
    p(f"s_cselect_b32 {sT0}, 18, 16")
    p(f"s_lshl_b32 {sT1}, {sKH}, 2")
    p(f"s_add_u32 {sT1}, {sT1}, {sW}")
    p(f"s_mul_i32 {sB}, {sT1}, {sT0}")
    p(f"s_mul_i32 {sT0}, {sW}, 144")
    p(f"s_add_u32 {sT0}, {sT0}, 16")
    p(f"s_cmp_eq_u32 {sQ}, 8")
    p(f"s_cselect_b32 {sB}, {sT0}, {sB}")
    p(f"s_cselect_b32 s55, {16*1152}, 0")
    p(f"s_mul_i32 {sB}, {sB}, 1152")
    p(f"s_mul_i32 s56, {sW}, 18432")
    p(f"v_lshlrev_b32 v{T+2}, 4, v1")
    for k in range(18):
        p(f"v_add_u32 v{T}, {64*k}, v1")
        p(f"v_mul_u32_u24 v{T}, 3641, v{T}")
        p(f"v_lshrrev_b32 v{T}, 19, v{T}")
        p(f"s_add_u32 m0, s56, {k*1024}")
        p(f"v_mul_u32_u24 v{T}, s55, v{T}")
        p(f"v_add3_u32 v{T}, v{T}, v{T+2}, {sB}")
        p(f"buffer_load_dwordx4 v{T}, {RA}, 0 offen lds")
        p(f"s_add_u32 {sB}, {sB}, 1024")


def prep_finish(p, st):
    a, h, ln = f"v{T}", f"v{T+1}", "v2"
    p(f"v_lshrrev_b32 {a}, 5, v1")
    p(f"v_bfe_u32 v{T+2}, v1, 2, 2")
    p(f"v_lshl_add_u32 {a}, {a}, 3, v{T+2}")
    p(f"v_mul_u32_u24 {a}, 1152, {a}")
    p(f"v_and_b32 v{T+2}, 1, v1")
    p(f"v_lshl_add_u32 {a}, v{T+2}, 4, {a}")
    p(f"v_bfe_u32 v{T+2}, v1, 1, 1")
    p(f"v_lshl_add_u32 {a}, v{T+2}, 3, {a}")
    p(f"s_mul_i32 {sT0}, {sW}, 288")
    p(f"v_add_u32 {h}, {sT0}, {a}")
    p(f"v_bfe_u32 v{T+2}, v1, 4, 1")
    p(f"v_lshl_add_u32 {a}, v{T+2}, 5, {h}")
    for ks in range(4):
        for t in range(5):
            for q in range(2):
                p(f"ds_read_b64_tr_b16 {vr(FR+20*ks+4*t+2*q,2)}, {a if t < 4 else h} offset:{ks*18432+q*4608+t*64}")
    p(f"s_lshl_b32 {sB}, {sMAT}, 2")
    p(f"s_add_u32 {sB}, {sB}, {sW}")
    p(f"s_mul_i32 {sB}, {sB}, {4*45*1024}")
    p(f"s_add_u32 {sB}, {sB}, {hx(WP)}")
    p(f"s_lshl_b32 {sT0}, {sKH}, 12")
    p(f"s_add_u32 {sT0}, {sT0}, {sB}")
    p(f"s_add_u32 {sT0}, {sT0}, {9*1024}")
    for t in range(4):
        for ks in range(4):
            p(f"buffer_store_dwordx4 {vr(FR+20*ks+4*t,4)}, {ln}, {WS}, {sT0} offen offset:{ks*1024} sc1")
        p(f"s_add_u32 {sT0}, {sT0}, {45*1024}")
    p("s_mov_b32 exec_lo, 0xffff")
    p("s_mov_b32 exec_hi, 0xffff")
    for ks in range(4):
        p(f"s_lshl_b32 {sT0}, {sKH}, 2")
        p(f"s_add_u32 {sT0}, {sT0}, {ks}")
        p(f"s_mul_i32 {sT1}, {sT0}, 57")
        p(f"s_lshr_b32 {sT1}, {sT1}, 9")
        p(f"s_mul_i32 {sT1}, {sT1}, 36")
        p(f"s_add_u32 {sT0}, {sT0}, {sT1}")
        p(f"s_lshl_b32 {sT0}, {sT0}, 10")
        p(f"s_add_u32 {sT0}, {sT0}, {sB}")
        p(f"buffer_store_dwordx4 {vr(FR+20*ks+16,4)}, {ln}, {WS}, {sT0} offen sc1")
    p("s_mov_b64 exec, -1")


def w3_warm(p, first, count):
    srd(p, R_A, S_W3, 576 * 9216)
    a, t = f"v{T}", f"v{T+1}"
    p(f"v_bfe_u32 {a}, v0, 2, 3")
    p(f"v_mul_u32_u24 {a}, 9, {a}")
    p(f"v_and_b32 {t}, 3, v0")
    p(f"v_lshlrev_b32 {t}, 2, {t}")
    p(f"s_mov_b32 {sT0}, 0x1540")
    p(f"v_lshrrev_b32 {t}, {t}, {sT0}")
    p(f"v_and_b32 {t}, 15, {t}")
    p(f"v_add_u32 {a}, {a}, {t}")
    p(f"v_lshlrev_b32 {a}, 7, {a}")
    p(f"v_lshrrev_b32 {t}, 5, v0")
    p(f"v_mul_u32_u24 {t}, 9216, {t}")
    p(f"v_add_u32 {a}, {a}, {t}")
    p(f"v_and_b32 {t}, 3, v0")
    p(f"v_cmp_eq_u32 vcc, 3, {t}")
    p(f"s_mul_i32 {sT0}, {first}, 9216")
    for k in range(count // 8):
        d = f"v{T+2+k % 20}"
        if k == 0:
            p(f"v_bfe_u32 v{T+23}, v0, 5, 1")
            p(f"v_mul_u32_u24 v{T+23}, {5*128}, v{T+23}")
            p(f"v_lshrrev_b32 v{T+24}, 5, v0")
        p(f"v_add_u32 v{T+25}, {first}, v{T+24}")
        p(f"v_add_u32 v{T+25}, {8*k+1}, v{T+25}")
        p(f"v_lshrrev_b32 v{T+25}, 1, v{T+25}")
        p(f"v_mul_u32_u24 v{T+25}, 9216, v{T+25}")
        p(f"v_sub_u32 v{T+25}, v{T+23}, v{T+25}")
        p(f"v_cndmask_b32 v{T+25}, 0, v{T+25}, vcc")
        p(f"v_add3_u32 v{T+25}, v{T+25}, {a}, {sT0}")
        p(f"buffer_load_dword {d}, v{T+25}, {RA}, 0 offen")
        p(f"s_add_u32 {sT0}, {sT0}, {8*9216}")


def w1_colsums(p):
    D, A = 96, 240
    srd(p, R_A, S_W1, 576 * 1152)
    p(f"v_lshrrev_b32 v{A}, 4, v0")
    p(f"v_mul_u32_u24 v{A}, 1152, v{A}")
    p(f"v_and_b32 v{A+1}, 15, v0")
    p(f"v_lshl_add_u32 v{A}, v{A+1}, 4, v{A}")
    p(f"s_sub_u32 {sKH}, {sQ}, {NPREP}")
    p(f"s_lshl_b32 {sB}, {sKH}, 8")
    for k in range(36):
        p(f"buffer_load_dwordx4 {vr(D+4*k,4)}, v{A}, {RA}, {sB} offen")
        p(f"s_add_u32 {sB}, {sB}, {16*1152}")
    p(f"s_mov_b32 {sT0}, 0x3f80")
    p(f"s_mov_b32 {sT1}, 0x3f800000")
    for k in range(8):
        p(f"v_mov_b32 v{A+k}, 0")
    for k in range(36):
        for d in range(4):
            p(f"v_dot2c_f32_bf16 v{A+2*d}, {sT0}, v{D+4*k+d}")
            p(f"v_dot2c_f32_bf16 v{A+2*d+1}, {sT1}, v{D+4*k+d}")
    for op in ("v_permlane16_swap_b32", "v_permlane32_swap_b32"):
        for k in range(8):
            p(f"v_mov_b32 v{D+k}, v{A+k}")
        for k in range(8):
            p(f"{op} v{A+k}, v{D+k}")
        for k in range(8):
            p(f"v_add_f32 v{A+k}, v{A+k}, v{D+k}")
    p(f"v_and_b32 v{D}, 15, v1")
    p(f"v_lshlrev_b32 v{D}, 5, v{D}")
    p(f"s_lshl_b32 {sT0}, {sW}, 9")
    p(f"v_add_u32 v{D}, {sT0}, v{D}")
    p(f"ds_write_b128 v{D}, {vr(A,4)}")
    p(f"ds_write_b128 v{D}, {vr(A+4,4)} offset:16")
    p.wait_lg()
    p("s_barrier")
    p(f"v_and_b32 v{D}, 31, v1")
    p(f"v_lshlrev_b32 v{D}, 4, v{D}")
    for k in range(4):
        p(f"ds_read_b128 {vr(D+4+4*k,4)}, v{D} offset:{k*512}")
    for k in range(1, 4):
        for j in range(4):
            p(f"v_add_f32 v{D+4+j}, v{D+4+j}, v{D+4+4*k+j}")
    p(f"s_lshl_b32 {sT0}, {sKH}, 9")
    p(f"s_add_u32 {sT0}, {sT0}, {hx(CSP)}")
    p(f"s_cmp_eq_u32 {sW}, 0")
    p(f"s_cselect_b32 {sT0}, {sT0}, {hx(OOB)}")
    p("s_mov_b32 exec_hi, 0")
    p(f"buffer_store_dwordx4 {vr(D+4,4)}, v{D}, {WS}, {sT0} offen sc1")
    p("s_mov_b64 exec, -1")
```

```python
from asmgen import TRANS


def cost1(line):
    op = line.split()[0]
    if op.startswith(TRANS):
        return 8
    if op.startswith("buffer_"):
        return 20 if line.rstrip().endswith("lds") else 16
    if op.startswith("ds_"):
        return 6
    return 4


def cost(o):
    if callable(o):
        return getattr(o, "cost", 16)
    if isinstance(o, tuple):
        o = o[0]
    return sum(cost1(l) for l in o.split("\n") if l.strip())


MODE = ['mix']


class Filler:
    def __init__(self, p):
        self.p = p
        self.streams = []
        self.credit = 0.0

    def add(self, start, end, ops):
        self.streams.append([start, end, list(ops)])

    def emit(self, o):
        if callable(o):
            o()
        elif isinstance(o, tuple):
            self.p(o[0], tag=o[1])
        else:
            self.p(o)

    def gap(self, j):
        if MODE[0] == "edf":
            return self.gap_edf(j)
        act = sorted((s for s in self.streams if s[2] and s[0] <= j), key=lambda s: s[1])
        for s in act:
            if len(s) == 3:
                s.append(0.0)
            rem = sum(map(cost, s[2])) - s[3]
            s[3] += rem / (max(s[1], j) - j + 1)
        busy = True
        while busy:
            busy = False
            for s in act:
                if s[2] and (s[1] <= j or s[3] >= cost(s[2][0]) * 0.5):
                    o = s[2].pop(0)
                    s[3] -= cost(o)
                    self.emit(o)
                    busy = True

    def gap_edf(self, j, floor=0.0):
        live = [s for s in self.streams if s[2]]
        act = sorted((s for s in live if s[0] <= j), key=lambda s: s[1])
        rate = floor
        for s in act:
            d = max(s[1], j)
            tot = sum(sum(map(cost, t[2])) for t in live if t[1] <= d)
            rate = max(rate, tot / (d - j + 1))
        self.credit = min(self.credit, 0.0) + rate
        while True:
            act = sorted((s for s in self.streams if s[2] and s[0] <= j), key=lambda s: s[1])
            if not act:
                self.credit = 0.0
                return
            s = act[0]
            due = s[1] <= j
            c = cost(s[2][0])
            if not due and self.credit < c / 2:
                return
            self.emit(s[2].pop(0))
            self.credit -= c

    def done(self):
        return all(not s[2] for s in self.streams)
```

```python
from common import *
from sched import Filler

sT, sG, sT0, sT1, sWP, sWS, sC = "s65", "s66", "s53", "s54", "s67", "s52", "s55"
sD0 = "s68"
vLN, vBQ, vPL, vSRC, vBB, vBAD = "v2", "v3", "v4", "v5", "v6", "v7"
sRC = "s64"
TMP = 8
ACC, ACCH, CS, CSH = 32, 48, 64, 80
BF, NBF = 96, 6
XR = 120
HK = 130
vMU, vR1, vR12 = "v139", "v140", "v141"
CSH2 = 142
PH = 144

L_B = 110592
L_ST = L_B + 36864
L_HP = L_ST + 4096


def wreg(ph, f):
    if ph == 4:
        return ar(4 * f, 4)
    return ar(180 + 4 * f, 4) if f < 19 else vr(152 + 4 * (f - 19), 4)


def sg_ids(p):
    p(f"s_lshr_b32 {sT}, {sL}, 2")
    p(f"s_lshl_b32 {sT0}, {sX}, 3")
    p(f"s_add_u32 {sT}, {sT}, {sT0}")
    p(f"s_and_b32 {sG}, {sL}, 3")
    p(f"s_lshl_b32 {sWP}, {sG}, 2")
    p(f"s_add_u32 {sWP}, {sWP}, {sW}")
    p(f"s_mul_i32 {sWP}, {sWP}, {45*1024}")
    p(f"s_add_u32 {sWP}, {sWP}, {hx(WP)}")


def w_loads(ph):
    o = []
    for f in range(45):
        x = f"buffer_load_dwordx4 {wreg(ph, f)}, {vLN}, {WS}, {sD0} offen offset:{(f%4)*1024} sc1"
        if f < 9:
            x = "s_mov_b32 exec_lo, 0xffff\ns_mov_b32 exec_hi, 0xffff\n" + x + "\ns_mov_b64 exec, -1"
        if f % 4 == 0:
            x = f"s_add_u32 {sD0}, {sWP}, {(ph-3)*16*45*1024 + f*1024}\n" + x
        o.append(x)
    return o


def emit_some(p, l, n):
    for _ in range(min(n, len(l))):
        x = l.pop(0)
        p(*x) if isinstance(x, tuple) else p(x)


def half_exchange(p, src, dst):
    p(f"s_lshl_b32 {sT0}, {sW}, 11")
    p(f"s_add_u32 {sT0}, {sT0}, {L_HP}")
    p(f"v_lshlrev_b32 v{TMP}, 3, v1")
    p(f"v_add_u32 v{TMP+1}, {sT0}, v{TMP}")
    for j in range(4):
        p(f"ds_write_b64 v{TMP+1}, {vr(src+2*j,2)} offset:{j*512}", tag="hx")


def half_collect_reads(p):
    p(f"s_lshl_b32 {sT0}, {sW}, 9")
    p(f"s_add_u32 {sT0}, {sT0}, {L_HP}")
    p(f"v_lshlrev_b32 v{TMP}, 3, v1")
    p(f"v_add_u32 v{TMP}, {sT0}, v{TMP}")
    for k in range(4):
        p(f"ds_read_b64 {vr(PH+2*k,2)}, v{TMP} offset:{k*2048}")


def half_sum(p, d0, d1):
    p(f"v_add_f32 v{PH}, v{PH}, v{PH+2}")
    p(f"v_add_f32 v{PH+1}, v{PH+1}, v{PH+3}")
    p(f"v_add_f32 v{PH+4}, v{PH+4}, v{PH+6}")
    p(f"v_add_f32 v{PH+5}, v{PH+5}, v{PH+7}")
    p(f"v_add_f32 {d0}, v{PH}, v{PH+4}")
    p(f"v_add_f32 {d1}, v{PH+1}, v{PH+5}")


def colsum_loads(p):
    a = f"v{TMP+6}"
    p(f"v_lshrrev_b32 {a}, 5, v1")
    p(f"v_lshlrev_b32 {a}, 5, {a}")
    p(f"s_mul_i32 {sT0}, {sG}, 576")
    p(f"s_add_u32 {sT0}, {sT0}, {hx(CSP)}")
    p(f"s_lshl_b32 {sT1}, {sW}, 7")
    p(f"s_add_u32 {sT1}, {sT1}, {sT0}")
    for k in range(4):
        p(f"buffer_load_dwordx4 {vr(CS+4*k,4)}, {a}, {WS}, {sT1} offen offset:{64*(k//2)+16*(k%2)} sc1")
    p(f"s_lshl_b32 {sT1}, {sW}, 3")
    p(f"s_add_u32 {sT1}, {sT1}, {sT0}")
    p(f"buffer_load_dwordx2 {vr(CSH2,2)}, {a}, {WS}, {sT1} offen offset:512 sc1")


def poll_addr(p, ph):
    a, b = f"v{TMP}", f"v{TMP+1}"
    if ph == 3:
        p(f"s_mul_i32 {sT0}, {sW}, 9")
        p(f"v_add_u32 {a}, {sT0}, v1")
        p(f"v_lshlrev_b32 {a}, 10, {a}")
        p(f"v_subrev_u32 {b}, 16, v1")
        p(f"v_lshrrev_b32 {vPL}, 2, {b}")
        p(f"v_lshlrev_b32 {vPL}, 9, {vPL}")
        p(f"v_and_b32 {b}, 3, {b}")
        p(f"v_lshl_add_u32 {vPL}, {b}, 2, {vPL}")
        p(f"v_add_u32 {vPL}, 32768, {vPL}")
        p("v_cmp_gt_u32 vcc, 16, v1")
        p(f"s_mul_i32 {sT0}, {sT}, 36864")
        p(f"v_cndmask_b32 {vPL}, {vPL}, {a}, vcc")
        p(f"s_add_u32 {sT0}, {sT0}, {hx(OB)}")
        p(f"v_add_u32 {vPL}, {sT0}, {vPL}")
        return [f"s_cmp_eq_u32 {sW}, 3", "s_cselect_b32 exec_hi, 0xffff, 0", f"s_cselect_b32 {sT0}, 0xffff0000, 0",
                f"s_or_b32 exec_lo, {sT0}, 0x1ff"]
    if ph == 4:
        p(f"s_lshl_b32 {sT0}, {sT}, 2")
        p(f"s_add_u32 {sT0}, {sT0}, {sW}")
        p(f"s_lshl_b32 {sT0}, {sT0}, 10")
        p(f"s_add_u32 {sT0}, {sT0}, {hx(ST3)}")
        p(f"v_lshl_add_u32 {vPL}, v1, 8, {sT0}")
        return ["s_mov_b64 exec, 15"]
    p(f"s_sub_u32 {sT0}, {sT}, 1")
    p(f"s_max_i32 {sT0}, {sT0}, 0")
    p(f"s_add_u32 {sT1}, {sT}, 1")
    p(f"s_min_u32 {sT1}, {sT1}, 63")
    p(f"s_bitcmp1_b32 {sW}, 0")
    p(f"s_cselect_b32 {sT0}, {sT1}, {sT0}")
    p(f"s_sub_u32 {sT0}, {sT0}, {sT}")
    p(f"s_mul_i32 {sT0}, {sT0}, 36864")
    p(f"v_bfe_i32 {a}, v1, 2, 1")
    p(f"v_and_b32 {a}, {sT0}, {a}")
    p(f"v_and_b32 {b}, 3, v1")
    p(f"v_lshl_add_u32 {a}, {b}, 11, {a}")
    p(f"s_mul_i32 {sT0}, {sT}, 36")
    p(f"s_mul_i32 {sT1}, {sW}, 9")
    p(f"s_add_u32 {sT0}, {sT0}, {sT1}")
    p(f"s_add_u32 {sT0}, {sT0}, 1")
    p(f"s_lshl_b32 {sT0}, {sT0}, 10")
    p(f"s_add_u32 {sT0}, {sT0}, {hx(H1)}")
    p(f"v_add_u32 {vPL}, {sT0}, {a}")
    return ["s_mov_b64 exec, 0xff"]


def poison_ops(V, ln):
    import p2
    A, B = "s0", "s1"
    d = vr(V, 4)
    o = ["\n".join(f"v_mov_b32 v{V+k}, -1" for k in range(4))]
    o.append(f"s_mul_i32 {A}, {p2.sB}, 72\ns_add_u32 {A}, {A}, {p2.sH}\ns_lshl_b32 {A}, {A}, 10\n"
             f"s_add_u32 {A}, {A}, {hx(OB)}")
    o.append(f"buffer_store_dwordx4 {d}, {ln}, {WS}, {A} offen sc1")
    o.append(f"s_add_u32 {A}, {A}, 36864\nbuffer_store_dwordx4 {d}, {ln}, {WS}, {A} offen sc1")
    o.append(f"s_mul_i32 {B}, {sT}, 36\ns_mul_i32 {A}, {sG}, 9\ns_add_u32 {B}, {B}, {A}\ns_lshl_b32 {B}, {B}, 10\n"
             f"s_lshl_b32 {A}, {sW}, 11\ns_add_u32 {A}, {A}, {B}\ns_add_u32 {A}, {A}, {hx(HB)}")
    assert H1 - HB == X1 - H1
    for k in range(3):
        o.append(f"buffer_store_dwordx4 {d}, {ln}, {WS}, {A} offen sc1")
        o.append(f"buffer_store_dwordx4 {d}, {ln}, {WS}, {A} offen offset:1024 sc1"
                 + (f"\ns_add_u32 {A}, {A}, {hx(H1-HB)}" if k < 2 else ""))
    o.append(f"s_mul_i32 {A}, {sW}, {hx(H1-HB)}\ns_add_u32 {A}, {A}, {B}\ns_add_u32 {A}, {A}, {hx(HB+8192)}\n"
             f"s_lshl_b32 {B}, {sT}, 2\ns_add_u32 {B}, {B}, {sG}\ns_lshl_b32 {B}, {B}, 10\n"
             f"s_add_u32 {B}, {B}, {hx(ST3)}\ns_cmp_eq_u32 {sW}, 3\ns_cselect_b32 {A}, {B}, {A}")
    o.append(f"buffer_store_dwordx4 {d}, {ln}, {WS}, {A} offen sc1")
    o.append(f"s_lshl_b32 {A}, {sW}, 9\ns_add_u32 {B}, {B}, {A}\ns_add_u32 {B}, {B}, {hx(ST5-ST3-1024)}\n"
             f"s_lshl_b32 {A}, {p2.sB}, 1\ns_add_u32 {A}, {A}, {sW}\ns_mul_i32 {A}, {A}, 72\n"
             f"s_add_u32 {A}, {A}, {p2.sU}\ns_lshl_b32 {A}, {A}, 9\ns_add_u32 {A}, {A}, {hx(OB+32768)}\n"
             f"s_cmp_ge_u32 {sW}, 2\ns_cselect_b32 {A}, {B}, {A}")
    o.append(f"s_mov_b32 exec_hi, 0\nbuffer_store_dwordx4 {d}, {ln}, {WS}, {A} offen sc1\ns_mov_b64 exec, -1")
    return o


def b_src(p, ph):
    if ph != 5:
        p(f"s_mul_i32 {sWS}, {sT}, 36864")
        p(f"s_mul_i32 {sT0}, {sW}, 9216")
        p(f"s_add_u32 {sWS}, {sWS}, {sT0}")
        p(f"s_add_u32 {sWS}, {sWS}, {hx(OB if ph == 3 else HB)}")
        p(f"v_mov_b32 {vSRC}, {vLN}")
        return
    p(f"s_lshr_b32 {sT0}, {sW}, 1")
    p(f"s_add_u32 {sT0}, {sT0}, 1")
    p(f"s_sub_u32 {sT1}, 0, {sT0}")
    p(f"s_bitcmp1_b32 {sW}, 0")
    p(f"s_cselect_b32 {sT0}, {sT0}, {sT1}")
    p(f"s_lshl_b32 {sT1}, {sT}, 5")
    p(f"s_add_u32 {sT0}, {sT0}, {sT1}")
    p(f"v_and_b32 v{TMP}, 31, v1")
    p(f"v_add_u32 v{TMP}, {sT0}, v{TMP}")
    p(f"v_lshrrev_b32 v{TMP+1}, 5, v{TMP}")
    p(f"v_mul_u32_u24 v{TMP+1}, 36864, v{TMP+1}")
    p(f"v_and_b32 v{TMP+2}, 31, v{TMP}")
    p(f"v_lshl_add_u32 v{TMP+1}, v{TMP+2}, 4, v{TMP+1}")
    p(f"v_lshrrev_b32 v{TMP+2}, 5, v1")
    p(f"v_lshl_add_u32 v{TMP+1}, v{TMP+2}, 9, v{TMP+1}")
    p(f"v_mov_b32 v{TMP+2}, {hx(OOB)}")
    p(f"v_cmp_gt_u32 vcc, 2048, v{TMP}")
    p(f"v_cndmask_b32 {vSRC}, v{TMP+2}, v{TMP+1}, vcc")
    p(f"s_mul_i32 {sWS}, {sW}, 9216")
    p(f"s_add_u32 {sWS}, {sWS}, {hx(H1)}")


def b_dma(p, ph):
    p(f"s_mul_i32 {sT0}, {sW}, 9216")
    for j in range(9):
        if j % 4 == 0:
            p(f"s_add_u32 m0, {sT0}, {L_B + j*1024}")
            p(f"s_add_u32 {sT1}, {sWS}, {j*1024}")
        p(f"buffer_load_dwordx4 {vSRC}, {WS}, {sT1} offen offset:{(j%4)*1024} sc1 lds", tag="b")
    if ph == 4:
        p(f"s_lshl_b32 {sT0}, {sW}, 10")
        p(f"s_add_u32 m0, {sT0}, {L_ST}")
        p(f"s_lshl_b32 {sT1}, {sT}, 12")
        p(f"s_add_u32 {sT0}, {sT0}, {sT1}")
        p(f"s_add_u32 {sT0}, {sT0}, {hx(ST3)}")
        p(f"buffer_load_dwordx4 {vLN}, {WS}, {sT0} offen sc1 lds", tag="b")


def stats_consume(lds):
    a = f"v{TMP+2}"
    S, Q, t = f"v{TMP+4}", f"v{TMP+5}", f"v{TMP+3}"
    R = CSH
    o = [f"v_and_b32 {a}, 31, v1", f"v_lshlrev_b32 {a}, 3, {a}", f"v_lshrrev_b32 {t}, 5, v1",
         f"v_lshl_add_u32 {a}, {t}, 11, {a}", f"v_add_u32 {a}, {lds}, {a}"]
    o += [f"ds_read_b64 {vr(R+2*k,2)}, {a} offset:{k*256}" for k in range(8)]
    o += [None] * 3
    for k in range(4):
        o += [f"v_add_f32 v{R+4*k}, v{R+4*k}, v{R+4*k+2}", f"v_add_f32 v{R+4*k+1}, v{R+4*k+1}, v{R+4*k+3}"]
    for k in range(2):
        o += [f"v_add_f32 v{R+8*k}, v{R+8*k}, v{R+8*k+4}", f"v_add_f32 v{R+8*k+1}, v{R+8*k+1}, v{R+8*k+5}"]
    o += [f"v_add_f32 {S}, v{R}, v{R+8}", f"v_add_f32 {Q}, v{R+1}, v{R+9}"]
    o += [f"v_mov_b32 v{R}, {S}", f"v_mov_b32 v{R+1}, {Q}", None,
          f"v_permlane32_swap_b32 {S}, v{R}", f"v_permlane32_swap_b32 {Q}, v{R+1}",
          f"v_add_f32 {S}, {S}, v{R}", f"v_add_f32 {Q}, {Q}, v{R+1}",
          f"v_mul_f32 {vMU}, {hx(f2u(-1.0/576))}, {S}", f"v_mul_f32 {Q}, {hx(f2u(1.0/576))}, {Q}",
          f"v_fma_f32 {Q}, -{vMU}, {vMU}, {Q}", f"v_max_f32 {Q}, 0, {Q}",
          f"v_add_f32 {t}, {hx(f2u(EPS))}, {Q}", f"v_rsq_f32 {vR1}, {t}", None,
          f"v_mul_f32 {Q}, {Q}, {vR1}", f"v_mul_f32 {Q}, {Q}, {vR1}",
          f"v_add_f32 {Q}, {hx(f2u(EPS))}, {Q}", f"v_rsq_f32 {Q}, {Q}", None,
          f"v_mul_f32 {vR12}, {vR1}, {Q}"]
    return o


def residual_ops(ph):
    o = []
    if ph == 4:
        return o
    src = XR if ph == 3 else HK
    for k in range(9):
        o += [f"v_lshlrev_b32 v{CS+2*k}, 16, v{src+k}", f"v_and_b32 v{CS+2*k+1}, 0xffff0000, v{src+k}"]
    if ph == 5:
        o += [f"v_mul_f32 v{TMP+6}, {vMU}, {vR1}"]
        o += [f"v_fma_f32 v{CS+k}, v{CS+k}, {vR1}, v{TMP+6}" for k in range(18)]
    return o


def gemm(p, ph, nxt, opts, st, again):
    def rd(m):
        d = BF + 4 * (m % NBF)
        if m < 9:
            p(f"ds_read_b128 {vr(d,4)}, {vBQ} offset:{m*1024}")
        elif m < 45:
            p(f"ds_read_b128 {vr(d,4)}, {vBB} offset:{(m-9)*1024}")

    PD = NBF - 1
    BAR = opts.get("bar", 5)
    for m in range(PD):
        rd(m)
    p(f"v_mov_b32 {vBAD}, 0")
    if ph == 4:
        p(f"s_lshl_b32 {sT0}, {sW}, 10")
        p(f"s_add_u32 {sT0}, {sT0}, {L_ST}")
        p(f"v_add_u32 v{TMP}, {sT0}, {vLN}")
        p(f"ds_read_b128 {vr(PH,4)}, v{TMP}")
    F = Filler(p)
    n = opts.get(f"ng{ph}", opts.get("ng", 22))
    F.add(0, 43, [nxt.pop(0) for _ in range(min(n, len(nxt)))])
    F.add(0, 30, residual_ops(ph))
    if ph == 4:
        sc = stats_consume(L_ST)
        k = sc.index(None)
        F.add(10, 15, sc[:k])
        F.add(22, 43, [o for o in sc[k:] if o])
    issued = PD
    for m in range(45):
        d = BF + 4 * (m % NBF)
        if m % 2 == 0 and m + 1 < issued:
            p.wait_regs(vr(BF + 4 * ((m + 1) % NBF), 4))
        acc = vr(ACCH if m < 9 else ACC, 16)
        p(f"v_mfma_f32_32x32x16_bf16 {acc}, {wreg(ph, m)}, {vr(d,4)}, {'0' if m in (0, 9) else acc}")
        for mm in ([m] if m < BAR else (range(BAR, 9) if m == BAR else [])):
            dd = BF + 4 * (mm % NBF)
            if mm == 8 or (ph == 3 and mm >= 5):
                p(f"v_max3_u32 {vBAD}, v{dd}, v{dd+1}, {vBAD}")
                p(f"v_max3_u32 {vBAD}, v{dd+2}, v{dd+3}, {vBAD}")
            else:
                p(f"v_max_u32 {vBAD}, v{dd}, {vBAD}")
        if m == BAR:
            if ph == 4:
                p(f"v_max3_u32 {vBAD}, v{PH}, v{PH+2}, {vBAD}")
            redo_if_poison(p, vBAD, again, sRC)
            p("s_barrier")
            st(p, f"b{ph}")
        while issued <= min(m + PD, 44) and (issued < 9 or m >= BAR):
            rd(issued)
            issued += 1
        if m == 14:
            half_exchange(p, ACCH, None)
        if m == 19:
            p.wait_lg("hx")
            p("s_barrier")
            half_collect_reads(p)
        if m == 24:
            half_sum(p, f"v{ACCH}", f"v{ACCH+1}")
        F.gap(m)
    assert F.done()
    if ph == 5:
        p.wait_vm("st0")
    p("s_barrier")


GK = 2.0 * 0.7978845608028654 * 1.4426950408889634


def gelu_ops(x, t, ca, cb):
    return [f"v_mul_f32 {t}, {x}, {x}", f"v_fma_f32 {t}, {t}, {cb}, {ca}", f"v_mul_f32 {t}, {t}, {x}",
            f"v_exp_f32 {t}, {t}", f"v_add_f32 {t}, 1.0, {t}", f"v_rcp_f32 {t}, {t}", f"v_mul_f32 {x}, {x}, {t}"]


def interleave(lists):
    out = []
    for k in range(max(len(l) for l in lists)):
        for l in lists:
            if k < len(l):
                out.append(l[k])
    return out


def x_residual_loads(p):
    srd(p, R_B, S_X, 2048 * 1152)
    p(f"v_and_b32 v{TMP}, 31, v1")
    p(f"v_mul_u32_u24 v{TMP}, 1152, v{TMP}")
    p(f"v_lshrrev_b32 v{TMP+1}, 5, v1")
    p(f"v_lshl_add_u32 v{TMP}, v{TMP+1}, 4, v{TMP}")
    p(f"s_mul_i32 {sT0}, {sT}, 36864")
    p(f"s_mul_i32 {sT1}, {sG}, 288")
    p(f"s_add_u32 {sT0}, {sT0}, {sT1}")
    p(f"s_lshl_b32 {sT1}, {sW}, 6")
    p(f"s_add_u32 {sT1}, {sT1}, {sT0}")
    p(f"buffer_load_dwordx4 {vr(XR,4)}, v{TMP}, {RB}, {sT1} offen")
    p(f"buffer_load_dwordx4 {vr(XR+4,4)}, v{TMP}, {RB}, {sT1} offen offset:32")
    p(f"s_lshl_b32 {sT1}, {sW}, 2")
    p(f"s_add_u32 {sT1}, {sT1}, {sT0}")
    p(f"buffer_load_dword v{XR+8}, v{TMP}, {RB}, {sT1} offen offset:256")


def epilogue(p, ph, nxt, opts):
    vals = [f"v{ACC+k}" for k in range(16)] + [f"v{ACCH}", f"v{ACCH+1}"]
    dst = HK if ph == 3 else XR
    buf = {3: HB, 4: H1, 5: X1}[ph]
    p(f"s_mul_i32 {sT0}, {sT}, 36")
    p(f"s_mul_i32 {sT1}, {sG}, 9")
    p(f"s_add_u32 {sT0}, {sT0}, {sT1}")
    p(f"s_lshl_b32 {sT0}, {sT0}, 10")
    p(f"s_add_u32 {sT0}, {sT0}, {hx(buf)}")
    p(f"s_lshl_b32 {sT1}, {sW}, 11")
    p(f"s_lshl_b32 {sC}, {sW}, 2")
    p(f"s_add_u32 {sT1}, {sT1}, {sT0}")
    p(f"s_add_u32 {sC}, {sC}, {sT0}")
    p(f"s_add_u32 {sC}, {sC}, 8192")
    groups = [(16, 18), (0, 8), (8, 16)]
    stores = [f"buffer_store_dword v{dst+8}, {vLN}, {WS}, {sC} offen sc1",
              f"buffer_store_dwordx4 {vr(dst,4)}, {vLN}, {WS}, {sT1} offen sc1",
              f"buffer_store_dwordx4 {vr(dst+4,4)}, {vLN}, {WS}, {sT1} offen offset:1024 sc1"]
    if ph == 4:
        cs = [f"v{CS+k}" for k in range(16)] + [f"v{CSH2}", f"v{CSH2+1}"]
        p(f"v_mov_b32 v{TMP}, {hx(f2u(-GK))}")
        p(f"v_mov_b32 v{TMP+1}, {hx(f2u(-GK*0.044715))}")
    for (k0, k1), st_ in zip(groups, stores):
        if ph == 4:
            for q in range(k0, k1, 4):
                ops = [[f"v_fma_f32 {vals[k]}, {cs[k]}, {vMU}, {vals[k]}", f"v_mul_f32 {vals[k]}, {vals[k]}, {vR12}"]
                       + gelu_ops(vals[k], f"v{BF+k}", f"v{TMP}", f"v{TMP+1}") for k in range(q, min(q + 4, k1))]
                for o in interleave(ops):
                    p(o)
                emit_some(p, nxt, opts.get("ne", 2))
        else:
            for k in range(k0, k1):
                p(f"v_add_f32 {vals[k]}, {vals[k]}, v{CS+k}")
        for k in range(k0 // 2, k1 // 2):
            p(f"v_cvt_pk_bf16_f32 v{dst+k}, {vals[2*k]}, {vals[2*k+1]}")
        p(f"v_min_u32 v{dst+k0//2}, {CLEAN}, v{dst+k0//2}")
        p(st_, tag="out")
    if ph in (3, 5):
        S, Q, S2, Q2 = f"v{TMP+2}", f"v{TMP+3}", f"v{TMP+4}", f"v{TMP+5}"
        p(f"v_add_f32 {S}, {vals[0]}, {vals[1]}")
        p(f"v_mul_f32 {Q}, {vals[0]}, {vals[0]}")
        p(f"v_fmac_f32 {Q}, {vals[1]}, {vals[1]}")
        for k in range(2, 18):
            p(f"v_add_f32 {S}, {S}, {vals[k]}")
            p(f"v_fmac_f32 {Q}, {vals[k]}, {vals[k]}")
        p(f"v_mov_b32 {S2}, {S}")
        p(f"v_mov_b32 {Q2}, {Q}")
        p(f"v_lshlrev_b32 v{TMP}, 3, v1")
        p(f"s_lshl_b32 {sT0}, {sT}, 4")
        p(f"v_permlane32_swap_b32 {S}, {S2}")
        p(f"v_permlane32_swap_b32 {Q}, {Q2}")
        p(f"s_lshl_b32 {sT1}, {sG}, 2")
        p(f"s_add_u32 {sT0}, {sT0}, {sT1}")
        p(f"s_add_u32 {sT0}, {sT0}, {sW}")
        p(f"s_lshl_b32 {sT0}, {sT0}, 8")
        p(f"s_add_u32 {sT0}, {sT0}, {hx(ST3 if ph == 3 else ST5)}")
        p(f"v_add_f32 {S}, {S}, {S2}")
        p(f"v_add_f32 {Q}, {Q}, {Q2}")
        p(f"v_min_u32 {S}, {CLEAN}, {S}")
        p("s_mov_b32 exec_hi, 0")
        p(f"buffer_store_dwordx2 {vr(TMP+2,2)}, v{TMP}, {WS}, {sT0} offen sc1", tag="out")
        p("s_mov_b64 exec, -1")


def sg_phase(p, st, ph, opts, left, nxt):
    emit_some(p, left, 99)
    if ph == 3:
        x_residual_loads(p)
        p(f"s_mul_i32 {sT0}, {sW}, 9216")
        p(f"s_add_u32 {sT0}, {sT0}, {L_B}")
        p(f"v_add_u32 {vBQ}, {sT0}, {vLN}")
        p(f"v_add_u32 {vBB}, {L_B}, {vLN}")
    ex = poll_addr(p, ph)
    b_src(p, ph)
    p(f"s_mov_b32 {sRC}, 0")
    if ph == 4:
        colsum_loads(p)
    st(p, f"p{ph-1}")
    for o in ex:
        p(o)
    poll_data(p, lambda: p(f"buffer_load_dword v{TMP}, {vPL}, {WS}, 0 offen sc1"), f"v{TMP}")
    p("s_mov_b64 exec, -1")
    st(p, f"f{ph}")
    again = p.label("again")
    p(f"{again}:")
    b_dma(p, ph)
    emit_some(p, nxt, opts.get(f"nb{ph}", opts.get("nb", 8)))
    p.wait_vm("b")
    gemm(p, ph, nxt, opts, st, again)
    st(p, f"g{ph}")
    epilogue(p, ph, nxt, opts)
    st(p, f"e{ph}")
```

```python
import sys, os
sys.path.insert(0, os.path.dirname(os.path.abspath(__file__)))
from common import *
from pf import weight_prefetch, packed_prefetch, w3_first_lines
import p1

HEADER = open(os.path.join(os.path.dirname(os.path.abspath(__file__)), "header.txt")).read()


def late_p1(p, opts):
    p("v_lshlrev_b32 v126, 2, v1")
    p(f"s_cmp_eq_u32 {sW}, 0")
    p(f"s_cselect_b32 s69, 0, {hx(OOB)}")
    p("s_mov_b32 exec_hi, 0")
    p(f"buffer_load_dword v127, v126, {RC}, s69 offen sc1")
    p("s_mov_b64 exec, -1")
    weight_prefetch(p, opts, opts.get("pf1", ""), V=144, R=R_B)


def check_cleared(p):
    ok = p.label("clr")
    p("v_cmp_gt_u32 vcc, 1, v127")
    p("s_cmp_eq_u32 vcc_lo, 0")
    p(f"s_cbranch_scc1 {ok}")
    s = p.side_begin()
    poll(p, "v126", "v127", 32, srd_=RC)
    p.side_end(s)
    p(f"{ok}:")


def code_prefetch(p, opts):
    if not opts.get("pf", 1):
        return
    pc = p.label("pc")
    p("s_getpc_b64 s[0:1]")
    p(f"{pc}:")
    p(f"s_sub_u32 s0, s0, {pc}-{KNAME}")
    p("s_subb_u32 s1, s1, 0")
    p("v_and_b32 v126, 31, v0")
    p(f"v_lshl_add_u32 v126, v126, 5, {sL}")
    p("v_lshlrev_b32 v126, 7, v126")
    p(f"v_min_u32 v126, L_end-{KNAME}, v126")
    p("global_load_dword v127, v126, s[0:1]")


def gen(stop=99, stamps=False, opts=None):
    opts = opts or {}
    p = Prog()
    import sched
    sched.MODE[0] = opts.get('sched', 'mix')
    SLEEP[0] = opts.get('sleep', 0)
    st = Stamps(stamps, opts.get('only'))
    END = "L_end"
    p(f"{KNAME}:")
    p("s_cmp_ge_u32 s2, 256")
    p(f"s_cbranch_scc1 {END}")
    p("s_load_dwordx16 s[4:19], s[0:1], 0")
    p("s_load_dwordx4 s[20:23], s[0:1], 64")
    p("s_load_dwordx2 s[24:25], s[0:1], 80")
    st(p, "start")
    p("v_and_b32 v1, 63, v0")
    p("v_lshrrev_b32 v2, 6, v0")
    p(f"s_and_b32 {sX}, s2, 7")
    p(f"v_readfirstlane_b32 {sW}, v2")
    p(f"s_lshr_b32 {sL}, s2, 3")
    p(f"s_mov_b32 {sONE}, {hx(ONES)}")
    p1.p1_ids(p)
    p1.p1_dma_addr(p)
    import p2, sg
    p2.p2_ids(p)
    sg.sg_ids(p)
    st(p, "preK")
    p("s_waitcnt lgkmcnt(0)")
    st(p, "karg")
    srd(p, R_B, S_X, 2048 * 1152)
    srd(p, R_A, S_WQKV, 576 * 3456)
    srd(p, R_WS, S_WS, WS_REC)
    srd(p, R_C, S_DBG, 256)
    import p2, sg, p6, prep
    if opts.get("probe"):
        p("s_getreg_b32 s70, hwreg(20, 0, 4)")
        p("s_sub_u32 s70, s70, s2")
        p("s_and_b32 s70, s70, 7")
        p("s_add_u32 s70, s70, 1")
        p("v_mov_b32 v144, s70")
        p("s_lshl_b32 s72, s2, 7")
        p("v_mov_b32 v145, s72")
        p(f"s_mov_b32 s71, {hx(STAMP)}")
        p(f"s_cmp_eq_u32 {sW}, 0")
        p(f"s_cselect_b32 s72, s71, {hx(OOB)}")
        p("s_mov_b64 exec, 1")
        p(f"buffer_store_dword v144, v145, {WS}, s72 offen sc1")
        p("s_mov_b64 exec, -1")
    ACT = "L_act"
    IDLE, COMMON, IDLE2, NOPREP, P1V, P1DONE, P2 = ("L_idle", "L_common", "L_idle2", "L_noprep", "L_p1v", "L_p1done",
                                                    "L_p2")
    p(f"s_cmp_ge_u32 {sL}, 28")
    p(f"s_cbranch_scc1 {IDLE}")
    outer = p.side_begin()
    n1st, n2nd = opts.get("first", 2), opts.get("second", 0)
    for c in range(n1st):
        p1.emit_dma(p, c)
        if c == 0:
            st(p, "iss0")
            code_prefetch(p, opts)
    st(p, "iss1")
    p(f"s_branch {ACT}")
    p(f"{IDLE}:")
    side = p.side_begin()
    code_prefetch(p, opts)
    p(f"s_sub_u32 {prep.sQ}, {sL}, 28")
    p(f"s_lshl_b32 {prep.sQ}, {prep.sQ}, 3")
    p(f"s_add_u32 {prep.sQ}, {prep.sQ}, {sX}")
    p(f"s_cmp_ge_u32 {prep.sQ}, {prep.NPREP}")
    p(f"s_cbranch_scc1 {COMMON}")
    prep.prep_issue(p)
    st(p, "prepiss")
    p.loose_end(side)
    p(f"{COMMON}:")
    s3 = p.side_begin()
    p2.p2_setup(p)
    p.side_end(s3)
    p(f"s_branch {IDLE2}")
    p(f"{ACT}:")
    st(p, "setup")
    for c in range(n1st, n1st + n2nd):
        p1.emit_dma(p, c)
    if opts.get("poi0") == -1:
        for o in sg.poison_ops(92, sg.vLN):
            p(o)
    p(f"s_cmp_ge_u32 {p1.sJ}, 9")
    p(f"s_cbranch_scc1 {P1V}")
    s2 = p.side_begin()
    p1.p1_read_addr(p, False)
    n0 = len(st.names)
    p1.p1_main(p, False, st, n1st + n2nd, opts, lambda p: late_p1(p, opts))
    st(p, "p1main")
    p1.p1_epilogue(p, False)
    st(p, "p1epi")
    p.loose_end(s2)
    p(f"s_branch {P1DONE}")
    p(f"{P1V}:")
    p1.p1_read_addr(p, True)
    del st.names[n0:]
    p1.p1_main(p, True, st, n1st + n2nd, opts, lambda p: late_p1(p, opts))
    st(p, "p1main")
    p1.p1_epilogue(p, True)
    st(p, "p1epi")
    p(f"{P1DONE}:")
    p2.p2_setup(p)
    p("s_waitcnt vmcnt(0)")
    p("s_barrier")
    st(p, "p1stored")
    p(f"s_cmp_lg_u32 {sW}, 0")
    p(f"s_cbranch_scc1 {P2}")
    check_cleared(p)
    p(f"s_mul_i32 s53, {p1.sI}, {FS}")
    p(f"s_lshl_b32 s54, {p1.sJ}, 3")
    p(f"s_add_u32 s53, s53, s54")
    p(f"s_add_u32 s53, s53, {hx(F1)}")
    set_flag(p, "v126", "v127", "s53")
    p(f"s_branch {P2}")
    p.side_end(outer)
    p(f"{IDLE2}:")
    side = p.side_begin()
    p(f"s_cmp_ge_u32 {prep.sQ}, {prep.NPREP}")
    p(f"s_cbranch_scc1 {NOPREP}")
    p("s_waitcnt vmcnt(0)")
    p("s_barrier")
    st(p, "prepld")
    prep.prep_finish(p, st)
    p(f"{NOPREP}:")
    p(f"s_lshl_b32 s54, {prep.sQ}, 12")
    p(f"s_add_u32 s54, s54, {hx(F7)}")
    p("v_lshlrev_b32 v96, 4, v0")
    for k in range(4):
        p(f"v_mov_b32 v{100+k}, 0")
    p(f"buffer_store_dwordx4 v[100:103], v96, {WS}, s54 offen sc1")
    p("v_lshrrev_b32 v97, 5, v0")
    p(f"v_mul_u32_u24 v97, {FS}, v97")
    p("v_and_b32 v98, 31, v0")
    p("v_lshl_add_u32 v97, v98, 2, v97")
    p(f"s_mul_i32 s54, {prep.sQ}, {8*FS}")
    p(f"s_add_u32 s54, s54, {hx(FB)}")
    p(f"buffer_store_dword v100, v97, {WS}, s54 offen sc1")
    for o in sg.poison_ops(104, sg.vLN):
        p(o)
    p("s_waitcnt vmcnt(0)")
    p("s_barrier")
    p(f"s_lshl_b32 s53, {prep.sQ}, 2")
    p("v_mov_b32 v97, 1")
    p(f"s_cmp_eq_u32 {sW}, 0")
    p(f"s_cselect_b32 s53, s53, {hx(OOB)}")
    p("s_mov_b64 exec, 1")
    p(f"buffer_store_dword v97, v100, {RC}, s53 offen sc1")
    p("s_mov_b64 exec, -1")
    st(p, "ann1")
    p(f"s_cmp_lt_u32 {prep.sQ}, {prep.NPREP}")
    p("s_cbranch_scc1 L_nocs")
    prep.w1_colsums(p)
    p("s_waitcnt vmcnt(0)")
    p(f"s_lshl_b32 s53, {prep.sQ}, 2")
    p("v_mov_b32 v96, 0")
    p("v_mov_b32 v97, 1")
    p(f"s_cmp_eq_u32 {sW}, 0")
    p(f"s_cselect_b32 s53, s53, {hx(OOB)}")
    p("s_mov_b64 exec, 1")
    p(f"buffer_store_dword v97, v96, {RC}, s53 offen offset:{128 - 4*prep.NPREP} sc1")
    p("s_mov_b64 exec, -1")
    st(p, "csd")
    p("L_nocs:")
    if opts.get("warm3", 1):
        n1, n2 = opts.get("warm_a", 8), opts.get("warm_b", 72)
        FREE = p.label("free")
        p(f"s_cmp_ge_u32 {prep.sQ}, {prep.NPREP}")
        p(f"s_cbranch_scc1 {FREE}")
        p(f"s_mul_i32 s56, {prep.sQ}, {n1}")
        prep.w3_warm(p, "s56", n1)
        p(f"s_branch L_warmed")
        p(f"{FREE}:")
        p(f"s_sub_u32 s56, {prep.sQ}, {prep.NPREP}")
        p(f"s_mul_i32 s56, s56, {n2}")
        p(f"s_add_u32 s56, s56, {prep.NPREP*n1}")
        prep.w3_warm(p, "s56", n2)
        p("L_warmed:")
    if opts.get("w3f"):
        for o in w3_first_lines(144, R_B):
            p(o)
    late_p1(p, opts)
    p("s_waitcnt vmcnt(0)")
    st(p, "warmed")
    p(f"s_cmp_lg_u32 {sW}, 0")
    p(f"s_cbranch_scc1 {P2}")
    check_cleared(p)
    p.side_end(side)
    p(f"{P2}:")
    pf = lambda which: (lambda p: weight_prefetch(p, opts, which, V=16))
    p6.GX[0] = opts.get("gx", 8)
    w3, w4, w5, w6 = sg.w_loads(3), sg.w_loads(4), sg.w_loads(5), p6.prefill_ops()
    for lst, key, dflt in ((w4, "pfb3", ""), (w5, "pfb4", ""), (w6, "pfb5", "")):
        r = p6.Rec()
        weight_prefetch(r, opts, opts.get(key, dflt), V=24)
        if r.ops:
            lst.insert(0, "\n".join(r.ops))
    p2.p2(p, st, opts, w3)
    sg.sg_phase(p, st, 3, opts, w3, w4)
    sg.sg_phase(p, st, 4, opts, w4, w5)
    sg.sg_phase(p, st, 5, opts, w5, w6)
    p6.p6(p, st, opts, w6)
    if opts.get("probe"):
        p("v_lshlrev_b32 v10, 7, v0")
        p(f"buffer_load_dword v11, v10, {WS}, s71 offen sc1")
        p("v_cmp_ne_u32 vcc, s70, v11")
        p("s_nop 1")
        p("s_cbranch_vccz L_nodelay")
        p("s_mov_b32 s72, 0")
        p("L_delay:")
        p("s_sleep 16")
        p("s_add_u32 s72, s72, 1")
        p("s_cmp_lt_u32 s72, 100")
        p("s_cbranch_scc1 L_delay")
        p("L_nodelay:")
    st(p, "end")
    if opts.get("enc"):
        k = len(st.names) - 1
        p("s_waitcnt lgkmcnt(0)")
        if k:
            p(f"s_cmp_eq_u32 s{70+2*k}, 0")
            p(f"s_cselect_b32 s70, s70, s{70+2*k}")
        p("s_add_u32 s70, s70, 10000")
        p("s_mov_b32 s74, 0")
        p("L_enc:")
        p("s_memrealtime s[72:73]")
        p("s_add_u32 s74, s74, 1")
        p("s_cmp_gt_u32 s74, 100000")
        p("s_cbranch_scc1 L_end")
        p("s_waitcnt lgkmcnt(0)")
        p("s_sub_u32 s72, s72, s70")
        p("s_cmp_lt_i32 s72, 0")
        p("s_cbranch_scc1 L_enc")
    else:
        st.flush(p)
    p(f"{END}:")
    p("s_endpgm")
    body = p.text()
    head = HEADER + f"; @launch grid=(256,1,1) block=(256,1,1) lds={LDS_BYTES}\n"
    head += f'.amdgcn_target "amdgcn-amd-amdhsa--gfx950"\n.text\n.globl {KNAME}\n.p2align 8\n.type {KNAME},@function\n'
    tail = f""".section .rodata,"a"
.p2align 6
.amdhsa_kernel {KNAME}
  .amdhsa_next_free_vgpr 512
  .amdhsa_next_free_sgpr 102
  .amdhsa_accum_offset 256
  .amdhsa_group_segment_fixed_size 0
  .amdhsa_kernarg_size 88
  .amdhsa_user_sgpr_count 2
  .amdhsa_user_sgpr_kernarg_segment_ptr 1
  .amdhsa_system_sgpr_workgroup_id_x 1
  .amdhsa_float_denorm_mode_32 3
.end_amdhsa_kernel
"""
    return head + body + tail, st.names, p


if __name__ == "__main__":
    import argparse, json
    ap = argparse.ArgumentParser()
    ap.add_argument("-o", default="k.s")
    ap.add_argument("--stop", type=int, default=99)
    ap.add_argument("--stamps", type=int, default=0)
    ap.add_argument("--opts", default="{}")
    ap.add_argument("--note", action="store_true")
    a = ap.parse_args()
    txt, names, p = gen(a.stop, a.stamps, json.loads(a.opts))
    if names:
        txt = txt.replace("; @launch", f"; stampmode: {a.stamps}\n; stamps: " + ",".join(names) + "\n; @launch", 1)
    if a.stamps or a.note:
        o = {k: v for k, v in json.loads(a.opts).items() if k != "only"}
        txt = txt.replace("; @launch", f"; opts: {json.dumps(o)}\n; @launch", 1)
    open(a.o, "w").write(txt)
    print(f"wrote {a.o}: {len(txt)} bytes, {len(p.out)} lines, {p.nnop} nops, {p.nwait_auto} auto waits; stamps {names}")
```

```python
from common import *
from pf import scalar_prefetch

sB, sU, sH, sG0, sO2, sT0, sT1, sKO, sVO = "s57", "s58", "s59", "s60", "s61", "s53", "s54", "s55", "s56"
sA, sB2 = "s62", "s63"
KA, VA = 0, 80
vLN, vV0, vV1, vPL = "v2", "v3", "v4", "v5"
QF = 16
CD, CO = 32, 48
SB = 64
PB = 96
OA = 112
vM0, vM1 = "v10", "v11"
HI = "0xffffffff00000000"
NEG_INF = 0xFF800000


def exec_lo(p):
    p("s_mov_b32 exec_hi, 0")


def exec_hi(p):
    p("s_mov_b64 exec, -1")
    p("s_mov_b32 exec_lo, 0")


def exec_all(p):
    p("s_mov_b64 exec, -1")


def p2_ids(p):
    p(f"s_and_b32 {sB}, {sL}, 3")
    p(f"s_lshl_b32 {sT0}, {sX}, 2")
    p(f"s_add_u32 {sB}, {sB}, {sT0}")
    p(f"s_lshr_b32 {sU}, {sL}, 2")
    p(f"s_lshl_b32 {sH}, {sU}, 2")
    p(f"s_add_u32 {sH}, {sH}, {sW}")
    p(f"s_mul_i32 {sG0}, {sH}, 18")
    p(f"s_lshr_b32 {sG0}, {sG0}, 3")
    p(f"s_and_b32 {sO2}, {sH}, 3")
    p(f"v_lshlrev_b32 {vLN}, 4, v1")


def p2_setup(p):
    p("v_and_b32 v6, 0x13, v1")
    p("v_bfe_u32 v7, v1, 2, 1")
    p("v_lshl_add_u32 v6, v7, 3, v6")
    p("v_bfe_u32 v7, v1, 3, 1")
    p("v_lshl_add_u32 v6, v7, 2, v6")
    p("v_lshrrev_b32 v7, 5, v1")
    p("v_lshlrev_b32 v8, 4, v7")
    p(f"v_lshl_add_u32 {vV0}, v6, 5, v8")
    p(f"v_add_u32 {vV1}, 18432, {vV0}")
    p("v_and_b32 v6, 31, v1")
    p("v_lshlrev_b32 v7, 2, v7")
    p("v_sub_u32 v6, v6, v7")
    p(f"v_mov_b32 v8, {hx(NEG_INF)}")
    p("v_mov_b32 v9, 0")
    for r in range(16):
        c = 8 * (r // 4) + r % 4
        p(f"v_cmp_le_i32 vcc, {c}, v6")
        p(f"v_cndmask_b32 v{CD+r}, v8, v9, vcc")
        p(f"v_cndmask_b32 v{CO+r}, v9, v8, vcc")
    p("v_and_b32 v6, 27, v1")
    p("v_cmp_eq_u32 vcc, 18, v6")
    p(f"v_mov_b32 v7, {sONE}")
    p("v_cndmask_b32 v6, 0, v7, vcc")
    p("s_mov_b32 exec_lo, 0xfffc0000")
    p("s_mov_b32 exec_hi, 0xfffc0000")
    for r in range(80):
        p(f"v_accvgpr_write_b32 a{VA+r}, v6")
    exec_hi(p)
    p(f"s_lshl_b32 {sT0}, {sB}, 1")
    for k in range(10):
        p(f"s_cmp_ge_u32 {sT0}, {max(8-k,0)}")
        p(f"s_cselect_b32 {sT1}, 0x3f800000, 0x3f80ff80")
        p(f"v_accvgpr_write_b32 a{KA+8*k+4}, {sT1}")
        p(f"v_accvgpr_write_b32 a{KA+8*k+5}, {sONE}")
        p(f"v_accvgpr_write_b32 a{KA+8*k+6}, 0")
        p(f"v_accvgpr_write_b32 a{KA+8*k+7}, 0")
    for a in range(2):
        p(f"v_mov_b32 v{QF+8*a+4}, 0x3f80")
        for r in range(5, 8):
            p(f"v_mov_b32 v{QF+8*a+r}, 0")
    exec_all(p)
    p("v_mul_u32_u24 v6, 43, v1")
    p("v_lshrrev_b32 v6, 8, v6")
    p("v_mul_u32_u24 v7, 6, v6")
    p("v_sub_u32 v7, v1, v7")
    p(f"s_lshr_b32 {sT0}, {sB}, 1")
    p(f"v_sub_u32 v6, {sT0}, v6")
    p("v_max_i32 v6, 0, v6")
    p("v_lshrrev_b32 v8, 1, v7")
    p("v_mul_u32_u24 v8, 576, v8")
    p("v_and_b32 v7, 1, v7")
    p("v_mul_u32_u24 v7, 71, v7")
    p(f"s_mul_i32 {sT0}, {sU}, 72")
    p(f"v_add3_u32 v7, v7, v8, {sT0}")
    p("v_lshrrev_b32 v7, 7, v7")
    p("v_lshlrev_b32 v7, 3, v7")
    p(f"v_mul_u32_u24 v6, {FS}, v6")
    p(f"s_mov_b32 {sT0}, {hx(F1)}")
    p(f"v_add3_u32 {vPL}, v6, v7, {sT0}")


sQ0, sQ1 = "s48", "s49"


def load_bases(p):
    p(f"s_mul_i32 {sQ0}, {sB}, {2*144}")
    p(f"s_add_u32 {sQ0}, {sQ0}, {sG0}")
    p(f"s_lshl_b32 {sQ0}, {sQ0}, 9")
    p(f"s_add_u32 {sQ0}, {sQ0}, {hx(QK)}")
    p(f"s_add_u32 {sQ1}, {sQ0}, {144*512}")
    p(f"s_add_u32 {sKO}, {sQ0}, {hx(72*512 - 8*144*512)}")
    p(f"s_mul_i32 {sVO}, {sB}, {2*36864}")
    p(f"s_mul_i32 {sA}, {sH}, {18*32}")
    p(f"s_add_u32 {sVO}, {sVO}, {sA}")
    p(f"s_add_u32 {sVO}, {sVO}, {hx(VT - 8*36864)}")
    p(f"s_lshl_b32 {sB2}, {sB}, 1")


def qk_loads(p):
    def koff(k):
        p(f"s_add_u32 {sA}, {sKO}, {k*144*512}")
        if k < 8:
            p(f"s_cmp_ge_u32 {sB2}, {8-k}")
            p(f"s_cselect_b32 {sA}, {sA}, {hx(OOB)}")

    p(f"buffer_load_dwordx4 {vr(QF,4)}, {vLN}, {WS}, {sQ0} offen sc1")
    exec_lo(p)
    p(f"buffer_load_dwordx4 {vr(QF+4,4)}, {vLN}, {WS}, {sQ0} offen offset:1024 sc1")
    exec_all(p)
    for k in range(10):
        koff(k)
        p(f"buffer_load_dwordx4 {ar(KA+8*k,4)}, {vLN}, {WS}, {sA} offen sc1")
        exec_lo(p)
        p(f"buffer_load_dwordx4 {ar(KA+8*k+4,4)}, {vLN}, {WS}, {sA} offen offset:1024 sc1")
        exec_all(p)
        if k == 8:
            p(f"buffer_load_dwordx4 {vr(QF+8,4)}, {vLN}, {WS}, {sQ1} offen sc1")
            exec_lo(p)
            p(f"buffer_load_dwordx4 {vr(QF+12,4)}, {vLN}, {WS}, {sQ1} offen offset:1024 sc1")
            exec_all(p)


def v_loads():
    o = []
    for k in range(10):
        x = [f"s_add_u32 {sA}, {sVO}, {k*36864}"]
        if k < 8:
            x += [f"s_cmp_ge_u32 {sB2}, {8-k}", f"s_cselect_b32 {sA}, {sA}, {hx(OOB)}"]
        x += ["s_mov_b32 exec_lo, 0x3ffff", "s_mov_b32 exec_hi, 0x3ffff",
              f"buffer_load_dwordx4 {ar(VA+8*k,4)}, {vV0}, {WS}, {sA} offen sc1",
              f"buffer_load_dwordx4 {ar(VA+8*k+4,4)}, {vV1}, {WS}, {sA} offen sc1", "s_mov_b64 exec, -1"]
        o.append("\n".join(x))
    return o


def q_mask(p, a):
    q = QF + 8 * a
    exec_lo(p)
    for d in range(3):
        p(f"s_cmp_gt_u32 {sO2}, {d}")
        p(f"s_cselect_b32 {sT0}, 0, -1")
        p(f"v_and_b32 v{q+d}, {sT0}, v{q+d}")
    for d in range(1, 4):
        p(f"s_cmp_ge_u32 {sO2}, {d}")
        p(f"s_cselect_b32 {sT0}, -1, 0")
        p(f"v_and_b32 v{q+4+d}, {sT0}, v{q+4+d}")
    exec_all(p)


def s_mfmas(a, bi):
    k = a + bi
    s = vr(SB + 16 * (bi & 1), 16)
    c = vr(CO, 16) if bi == 0 else (vr(CD, 16) if bi == 8 else "0")
    q = QF + 8 * a
    return [f"v_mfma_f32_32x32x16_bf16 {s}, {ar(KA+8*k,4)}, {vr(q,4)}, {c}",
            f"v_mfma_f32_32x32x16_bf16 {s}, {ar(KA+8*k+4,4)}, {vr(q+4,4)}, {s}"]


def pass1(p, a, fill):
    for o in s_mfmas(a, 0):
        p(o)
    for bi in range(9):
        s = SB + 16 * (bi & 1)
        if bi < 8:
            for o in s_mfmas(a, bi + 1):
                p(o)
        if fill and (bi % 2 == 0):
            p(fill.pop(0))
        for k in range(8):
            m = vM0 if k % 2 == 0 else vM1
            if bi == 0 and k < 2:
                p(f"v_max_f32 {m}, v{s+2*k}, v{s+2*k+1}")
            else:
                p(f"v_max3_f32 {m}, v{s+2*k}, v{s+2*k+1}, {m}")
    p(f"v_max_f32 {vM0}, {vM0}, {vM1}")
    xhalf(p, "v_max_f32", vM0, vM1)
    q = QF + 8 * a + 4
    p(f"v_sub_f32 {vM0}, 0, {vM0}")
    p(f"v_cvt_pk_bf16_f32 v12, {vM0}, {vM0}")
    p(f"v_and_b32 v12, 0xffff0000, v12")
    p(f"v_sub_f32 v13, {vM0}, v12")
    p(f"v_cvt_pk_bf16_f32 v14, v13, v13")
    p(f"v_and_b32 v14, 0xffff0000, v14")
    p(f"v_sub_f32 v14, v13, v14")
    exec_hi(p)
    p(f"v_or_b32 v{q}, 0x3f80, v12")
    p(f"v_cvt_pk_bf16_f32 v{q+1}, v13, v14")
    exec_all(p)


def pv_mfmas(a, bi):
    k = a + bi
    o = vr(OA + 16 * a, 16)
    pb = PB + 8 * (bi & 1)
    return [f"v_mfma_f32_32x32x16_bf16 {o}, {ar(VA+8*k,4)}, {vr(pb,4)}, {'0' if bi == 0 else o}",
            f"v_mfma_f32_32x32x16_bf16 {o}, {ar(VA+8*k+4,4)}, {vr(pb+4,4)}, {o}"]


FJ = [(0, 1, 2)]
SN = [1]


def pass2(p, a, fill=None, sfill=None):
    fill = fill if fill is not None else []
    for o in s_mfmas(a, 0):
        p(o)
    for bi in range(9):
        s = SB + 16 * (bi & 1)
        pb = PB + 8 * (bi & 1)
        mf = (s_mfmas(a, bi + 1) if bi < 8 else [None, None]) + (pv_mfmas(a, bi - 1) if bi > 0 else [None, None])
        ex = lambda r: p(f"v_exp_f32 v{s+r}, v{s+r}")
        cv = lambda k: p(f"v_cvt_pk_bf16_f32 v{pb+k}, v{s+2*k}, v{s+2*k+1}")
        plan = [([0, 1, 2, 3], []), ([4, 5, 6, 7, 8], [0]), ([9, 10, 11, 12], [1, 2, 3]), ([13, 14, 15], [4, 5, 6, 7])]
        for j in range(4):
            if mf[j]:
                p(mf[j])
            if fill and j in FJ[0]:
                p(fill.pop(0))
            for _ in range(SN[0] if j != 3 else 0):
                if sfill:
                    p(sfill.pop(0))
            es, cs = plan[j]
            if j == 3:
                for r in es:
                    ex(r)
                for k in cs:
                    cv(k)
            else:
                for k in cs:
                    cv(k)
                for r in es:
                    ex(r)
    for o in pv_mfmas(a, 8):
        p(o)


def o_store(p, a):
    o = OA + 16 * a
    p(f"v_rcp_f32 v12, v{o+10}")
    p(f"s_lshl_b32 {sT0}, {sB}, 1")
    p(f"s_add_u32 {sT0}, {sT0}, {a}")
    p(f"s_mul_i32 {sT0}, {sT0}, 36")
    p(f"s_add_u32 {sT1}, {sT0}, {sH}")
    p(f"s_lshl_b32 {sT1}, {sT1}, 10")
    p(f"s_add_u32 {sT1}, {sT1}, {hx(OB)}")
    for r in range(10):
        p(f"v_mul_f32 v{o+r}, v{o+r}, v12")
    for k in range(5):
        p(f"v_cvt_pk_bf16_f32 v{o+k}, v{o+2*k}, v{o+2*k+1}")
    for k in range(5):
        p(f"v_min_u32 v{o+k}, {CLEAN}, v{o+k}")
    p(f"buffer_store_dwordx4 {vr(o,4)}, {vLN}, {WS}, {sT1} offen sc1")
    p(f"s_add_u32 {sT0}, {sT0}, 32")
    p(f"s_lshl_b32 {sT0}, {sT0}, 10")
    p(f"s_lshr_b32 {sT1}, {sH}, 2")
    p(f"s_lshl_b32 {sT1}, {sT1}, 9")
    p(f"s_add_u32 {sT0}, {sT0}, {sT1}")
    p(f"s_lshl_b32 {sT1}, {sO2}, 2")
    p(f"s_add_u32 {sT0}, {sT0}, {sT1}")
    p(f"s_add_u32 {sT0}, {sT0}, {hx(OB)}")
    exec_lo(p)
    p(f"buffer_store_dword v{o+4}, {vLN}, {WS}, {sT0} offen sc1", tag="out")
    exec_all(p)


def publish(p):
    L = p.label("f2")
    p(f"s_cmp_lg_u32 {sW}, 0")
    p(f"s_cbranch_scc1 {L}")
    s = p.side_begin()
    p(f"s_mul_i32 {sT0}, {sB}, {FS}")
    p(f"s_lshl_b32 {sT1}, {sU}, 4")
    p(f"s_add_u32 {sT0}, {sT0}, {sT1}")
    p(f"s_add_u32 {sT0}, {sT0}, {F2}")
    set_flag(p, "v62", "v63", sT0)
    p.side_end(s)
    p(f"{L}:")


def p2(p, st, opts, fill):
    load_bases(p)
    L = p.label("p2go")
    p(f"s_cmp_lg_u32 {sW}, 0")
    p(f"s_cbranch_scc1 {L}")
    s = p.side_begin()
    poll(p, vPL, "v6", 18)
    p.side_end(s)
    p(f"{L}:")
    p("s_barrier")
    st(p, "f1seen")
    qk_loads(p)
    p("v_and_b32 v7, 31, v1")
    p("v_lshlrev_b32 v7, 2, v7")
    p("v_add_u32 v7, 128, v7")
    p(f"buffer_load_dword v15, v7, {RC}, 0 offen sc1")
    st(p, "p2ld")
    vl = v_loads()
    q_mask(p, 0)
    pass1(p, 0, vl)
    q_mask(p, 1)
    pass1(p, 1, vl)
    assert not vl
    st(p, "pass1")
    p("v_lshrrev_b32 v6, 4, v1")
    p(f"v_lshl_add_u32 v6, {sW}, 2, v6")
    p(f"v_mul_u32_u24 v6, {FS}, v6")
    p("v_and_b32 v8, 15, v1")
    p("v_min_u32 v8, 13, v8")
    p("v_lshl_add_u32 v6, v8, 3, v6")
    p(f"v_add_u32 v8, {hx(F1)}, v6")
    p(f"buffer_load_dword v9, v8, {WS}, 0 offen sc1")
    ok = p.label("packed")
    p("v_cmp_gt_u32 vcc, 1, v15")
    p("s_cmp_eq_u32 vcc_lo, 0")
    p(f"s_cbranch_scc1 {ok}")
    s = p.side_begin()
    poll(p, "v7", "v15", 32, srd_=RC)
    p.side_end(s)
    p(f"{ok}:")
    n = opts.get("n2", 45)
    FJ[0] = (0, 1, 2) if n > 36 else ((0, 2) if n > 18 else (1,))
    mine = fill[:n]
    del fill[:n]
    sf = scalar_prefetch(opts.get("spf", ""))
    SN[0] = (len(sf) + 53) // 54
    pass2(p, 0, mine, sf)
    o_store(p, 0)
    pass2(p, 1, mine, sf)
    assert not sf
    assert not mine
    o_store(p, 1)
    st(p, "p2e")
    ok = p.label("allf1")
    p("v_cmp_gt_u32 vcc, 1, v9")
    p("s_nop 1")
    p(f"s_cbranch_vccz {ok}")
    s = p.side_begin()
    poll(p, "v8", "v9", 64)
    p.side_end(s)
    p(f"{ok}:")
    p("s_barrier")
```

```python
from common import *
from pf import weight_prefetch
from sched import Filler
from sg import gelu_ops, interleave, GK, emit_some

sI, sMm, sC, sFO, sFH, sT0, sT1, sLW, sDA, sDB, sPB, sFL, sT2, sCNT = (
    "s48", "s49", "s50", "s51", "s26", "s27", "s3", "s10", "s56", "s57", "s58", "s59", "s60", "s61")
vLN, vF6, vF68, vH0 = "v2", "v3", "v6", "v5"
AB = 8
DO = 16
vCA, vCB = "v25", "v26"
GT = 27
vHS = 31
ID0, ID1, IDX = 32, 36, 40
vFL, vFL8, vFLb = "v44", "v45", "v62"
ST = 46
ACC = [80, 96, 64]
ACC8 = 240
CV = [184, 192]
XB = 0
HB_ = 112
AFR, NAF = 144, 7
PL = 0
PL8 = 172
SLOT = 36864
PD = NAF - 1
NT = ['', '']
SCR = [7]
HALF = [1]
GX = [8]
ND = [1]
LOCAL = [0]
OST = ['']
sSC = 's67'
sF7 = 's68'
vP2 = 'v7'
sXO, sXB = 's52', 's55'
vBAD = 'v63'
sSB0, sSB1, sGA, sGM, sPA = 's12', 's13', 's14', 's11', 's15'
vONE = 'v31'


def ids(p):
    lg = GX[0].bit_length() - 1
    p(f"s_and_b32 {sMm}, {sL}, {16 // GX[0] - 1}")
    p(f"s_and_b32 {sT0}, {sX}, {GX[0] - 1}")
    p(f"s_lshl_b32 {sT0}, {sT0}, {4 - lg}")
    p(f"s_add_u32 {sMm}, {sMm}, {sT0}")
    p(f"s_lshr_b32 {sI}, {sL}, {4 - lg}")
    p(f"s_lshr_b32 {sT0}, {sX}, {lg}")
    p(f"s_lshl_b32 {sT0}, {sT0}, {lg + 1}")
    p(f"s_add_u32 {sI}, {sI}, {sT0}")
    p(f"s_lshr_b32 {sC}, {sMm}, 1")
    p(f"s_mul_i32 {sFO}, {sMm}, 288")
    p(f"s_bitcmp1_b32 {sMm}, 0")
    p(f"s_cselect_b32 {sT0}, 0, 256")
    p(f"s_cselect_b32 {sT1}, 32, 0")
    p(f"s_add_u32 {sFH}, {sFO}, {sT0}")
    p(f"s_add_u32 {sFO}, {sFO}, {sT1}")
    p(f"s_mul_i32 {sLW}, {sW}, 9216")
    srd(p, R_A, S_W3, 576 * 9216)
    srd(p, R_B, S_W4, 4608 * 1152)


def dma_pattern(p, kind):
    t, u = (f"v{GT}", f"v{GT+1}") if kind != "w4" else ("v76", "v77")
    if kind == "half":
        p(f"v_lshrrev_b32 {t}, 2, v1")
        p(f"v_mul_u32_u24 {t}, 9216, {t}")
        p(f"v_and_b32 {u}, 3, v1")
        p(f"v_lshl_add_u32 v{DO}, {u}, 4, {t}")
        step = 16 * 9216
    else:
        stride = 9216 if kind == "w3" else 1152
        p(f"v_lshrrev_b32 {t}, 3, v1")
        p(f"v_mul_u32_u24 {t}, {stride}, {t}")
        p(f"v_bfe_u32 {u}, v1, 4, 1")
        p(f"v_lshlrev_b32 {u}, 2, {u}")
        p(f"v_xor_b32 {u}, {u}, v1")
        p(f"v_and_b32 {u}, 7, {u}")
        p(f"v_lshl_add_u32 v{DO}, {u}, 4, {t}")
        step = 8 * stride
    k0 = lambda k: k - 4 if (kind == "w4" and k >= 4) else k
    return [f"v_add_u32 v{DO+k}, {k0(k)*step - (k%4)*1024}, v{DO}" for k in range(1, 9)]


def stage_dma(tau):
    o = []
    slot = (tau % 4) * SLOT
    if tau == 0:
        o += [f"s_mul_i32 {sDA}, {sW}, {144*9216}", f"s_lshl_b32 {sT0}, {sFH}, 1", f"s_add_u32 {sDA}, {sDA}, {sT0}"]
        so = lambda k: sDA
        r = RA
    elif tau < 9:
        cc, kh = divmod(tau - 1, 2)
        o += [f"s_mul_i32 {sDA}, {sW}, {72*9216}", f"s_lshl_b32 {sT0}, {sFO}, 1", f"s_add_u32 {sDA}, {sDA}, {sT0}"]
        if kh or cc:
            o += [f"s_add_u32 {sDA}, {sDA}, {kh*288*9216 + cc*128}"]
        so = lambda k: sDA
        r = RA
    else:
        sg = tau - 9
        if sg == 0:
            o += [f"s_mov_b32 {sT0}, {8*128}"]
        else:
            o += [f"s_add_u32 {sT0}, {sC}, {sg}", f"s_and_b32 {sT0}, {sT0}, 7", f"s_lshl_b32 {sT0}, {sT0}, 7"]
        o += [f"s_add_u32 {sDA}, s62, {sT0}", f"s_add_u32 {sDB}, s63, {sT0}"]
        so = lambda k: sDA if k < 4 else sDB
        r = RB
    o = ["\n".join(o)]
    for k in range(9):
        if k % 4 == 0:
            o.append(f"s_add_u32 m0, {sLW}, {slot + k*1024}")
        o.append(f"buffer_load_dwordx4 v{DO+k}, {r}, {so(k)} offen offset:{(k%4)*1024} lds")
    return o


def w4_bases():
    return ["\n".join([f"s_sub_u32 s63, {sFO}, 32", f"s_cmp_eq_u32 {sW}, 0", f"s_cselect_b32 s62, {sFH}, s63",
                       f"s_mul_i32 {sT0}, {sW}, 72", f"s_add_u32 s62, s62, {sT0}", f"s_add_u32 s63, {sFO}, {sT0}",
                       f"s_mul_i32 s62, s62, 1152", f"s_mul_i32 s63, s63, 1152"])]


def emit_list(p, ops, tag):
    last = max(k for k, o in enumerate(ops) if o.startswith("buffer"))
    for k, o in enumerate(ops):
        p(o, tag=tag if k == last else None)


class Rec:
    def __init__(self):
        self.ops = []

    def __call__(self, text, tag=None):
        self.ops.append(text)


def tagged(ops, tag):
    last = max(k for k, o in enumerate(ops) if o.startswith("buffer"))
    return [(o, tag) if k == last else o for k, o in enumerate(ops)]


def prefill_ops():
    r = Rec()
    ids(r)
    o = ["\n".join(r.ops)]
    r = Rec()
    rest = dma_pattern(r, "half")
    o.append("\n".join(r.ops + rest))
    o += tagged(stage_dma(0), "st0")
    r = Rec()
    rest = dma_pattern(r, "w3")
    o.append("\n".join(r.ops + rest))
    for tau in (1, 2):
        o += tagged(stage_dma(tau), f"st{tau}")
    return o


def setup(p):
    t, u, d = f"v{GT}", f"v{GT+1}", f"v{GT+2}"
    p(f"v_bfe_u32 {t}, v1, 4, 1")
    p(f"v_lshlrev_b32 {t}, 5, {t}")
    p(f"v_and_b32 {u}, 1, v1")
    p(f"v_lshl_add_u32 {t}, {u}, 4, {t}")
    p(f"v_bfe_u32 {u}, v1, 1, 1")
    p(f"v_lshl_add_u32 {t}, {u}, 3, {t}")
    p(f"v_bfe_u32 {u}, v1, 2, 2")
    p(f"v_lshrrev_b32 {d}, 5, v1")
    p(f"v_lshl_add_u32 {u}, {d}, 3, {u}")
    p(f"v_lshl_add_u32 {vH0}, {u}, 6, {t}")
    p(f"v_lshl_add_u32 {t}, {u}, 7, {t}")
    p(f"v_bfe_u32 {u}, v1, 3, 1")
    p(f"v_lshl_add_u32 v{AB}, {u}, 6, {t}")
    p(f"v_xor_b32 v{AB+1}, 64, v{AB}")
    for s in range(1, 4):
        p(f"v_add_u32 v{AB+2*s}, {s*SLOT}, v{AB}")
        p(f"v_add_u32 v{AB+2*s+1}, {s*SLOT}, v{AB+1}")
    p(f"v_min_u32 {u}, {16 + 2 * ND[0]}, v1")
    p(f"s_lshl_b32 {sFL}, {sI}, 6")
    p(f"s_add_u32 {sFL}, {sFL}, {sW}")
    p(f"s_lshl_b32 {sFL}, {sFL}, 7")
    p(f"s_add_u32 {sFL}, {sFL}, {F7}")
    p(f"s_lshl_b32 {sF7}, {sMm}, 2")
    p(f"s_add_u32 {sF7}, {sF7}, {sFL}")
    p(f"s_lshl_b32 {sT2}, {sMm}, 9")
    p(f"s_add_u32 {sT0}, {sFL}, {sT2}")
    p(f"v_lshl_add_u32 {vF6}, {u}, 2, {sT0}")
    p(f"v_lshlrev_b32 {vP2}, 9, v1")
    p(f"v_lshrrev_b32 {u}, 1, v1")
    p(f"v_sub_u32 {t}, {sC}, {u}")
    p(f"v_add_u32 {t}, 7, {t}")
    p(f"v_and_b32 {t}, 7, {t}")
    p(f"v_lshlrev_b32 {t}, 10, {t}")
    p(f"v_lshl_add_u32 {t}, {u}, 3, {t}")
    p(f"v_and_b32 {u}, 1, v1")
    p(f"v_lshl_add_u32 {t}, {u}, 9, {t}")
    p(f"s_and_b32 {sT1}, {sMm}, 1")
    p(f"s_lshl_b32 {sT1}, {sT1}, 2")
    p(f"s_add_u32 {sT1}, {sT1}, 68")
    p(f"v_add_u32 {vF68}, {sT1}, {t}")
    p(f"s_xor_b32 {sT2}, {sT2}, 512")
    p(f"s_add_u32 {sT2}, {sT2}, 64")
    p(f"v_writelane_b32 {vF68}, {sT2}, {2 * ND[0]}")
    p(f"s_lshl_b32 {sT0}, {sW}, 1")
    p(f"s_xor_b32 {sT0}, {sT0}, {sI}")
    p(f"s_and_b32 {sT0}, {sT0}, {SCR[0]}")
    p(f"s_lshl_b32 {sSC}, {sT0}, 12")
    p(f"s_mul_i32 {sPB}, {sI}, 72")
    p(f"s_add_u32 {sPB}, {sPB}, {sW}")
    p(f"s_lshl_b32 {sPB}, {sPB}, 15")
    p(f"s_add_u32 {sPB}, {sPB}, {hx(PART)}")
    p(f"s_lshl_b32 {sT0}, {sMm}, 11")
    p(f"s_xor_b32 {sT0}, {sT0}, {sSC}")
    p(f"s_add_u32 {sT0}, {sT0}, {sPB}")
    p(f"s_and_b32 {sT1}, {sMm}, 1")
    p(f"s_lshl_b32 {sT1}, {sT1}, 17")
    p(f"s_add_u32 {sSB1}, {sT0}, {sT1}")
    p(f"s_xor_b32 {sT1}, {sT1}, {1 << 17}")
    p(f"s_add_u32 {sSB0}, {sT0}, {sT1}")
    p(f"s_lshl_b32 {sT0}, {sMm}, 17")
    p(f"s_add_u32 {sPB}, {sPB}, {sT0}")
    p(f"v_mov_b32 {vONE}, 1")


def select_ops():
    t, u, d = f"v{ST+10}", f"v{ST+11}", f"v{ST+12}"
    o = [f"v_and_b32 {t}, 0x13, v1", f"v_bfe_u32 {u}, v1, 2, 1", f"v_lshl_add_u32 {t}, {u}, 3, {t}",
         f"v_bfe_u32 {u}, v1, 3, 1", f"v_lshl_add_u32 {t}, {u}, 2, {t}", f"v_lshrrev_b32 {d}, 5, v1",
         f"v_lshlrev_b32 {d}, 3, {d}", f"v_sub_u32 {t}, {t}, {d}",
         f"v_and_b32 {u}, 31, v1"]
    for src, bases in ((t, ((ID0, 0), (ID1, 8))), (u, ((IDX, 0),))):
        o += [f"v_and_b32 {d}, 1, {src}", f"v_lshlrev_b32 {d}, 4, {d}", f"v_mov_b32 v{ST+13}, 0x3f80",
              f"v_lshlrev_b32 {d}, {d}, v{ST+13}", f"v_ashrrev_i32 {src}, 1, {src}"]
        for base, sub in bases:
            for k in range(4):
                o += [f"v_cmp_eq_u32 s[8:9], {sub+k}, {src}\ns_nop 1\nv_cndmask_b32 v{base+k}, 0, {d}, s[8:9]"]
    return o


def x_base(p):
    p(f"s_lshl_b32 {sT0}, {sI}, 2")
    p(f"s_add_u32 {sT0}, {sT0}, {sW}")
    p(f"s_mul_i32 {sXB}, {sT0}, 36864")
    p(f"s_add_u32 {sXB}, {sXB}, {hx(X1)}")


def stat_poll(p):
    t = f"v{GT}"
    p(f"s_lshl_b32 {sT0}, {sI}, 2")
    p(f"s_add_u32 {sT0}, {sT0}, {sW}")
    p(f"s_lshl_b32 {sT1}, {sT0}, 12")
    p(f"s_add_u32 {sT1}, {sT1}, {hx(ST5)}")
    p(f"v_lshlrev_b32 {t}, 8, v1")
    p("s_mov_b64 exec, 0xffff")
    poll_data(p, lambda: p(f"buffer_load_dword v{GT+1}, {t}, {WS}, {sT1} offen sc1"), f"v{GT+1}")
    p("s_mov_b64 exec, -1")


def stat_loads(p):
    t = f"v{GT}"
    p(f"s_lshl_b32 {sT0}, {sI}, 2")
    p(f"s_add_u32 {sT0}, {sT0}, {sW}")
    p(f"s_lshl_b32 {sT1}, {sT0}, 12")
    p(f"s_add_u32 {sT1}, {sT1}, {hx(ST5)}")
    p(f"v_and_b32 {t}, 31, v1")
    p(f"v_lshlrev_b32 {t}, 3, {t}")
    p(f"v_lshrrev_b32 v{GT+1}, 5, v1")
    p(f"v_lshl_add_u32 {t}, v{GT+1}, 11, {t}")
    for k in range(8):
        p(f"buffer_load_dwordx2 {vr(ST+2*k,2)}, {t}, {WS}, {sT1} offen offset:{k*256} sc1")


def x_loads():
    o = []
    for s in range(36):
        x = f"buffer_load_dwordx4 {ar(XB+4*s,4)}, {vLN}, {WS}, {sXO} offen offset:{(s%4)*1024} sc1"
        if s % 4 == 0:
            x = f"s_add_u32 {sXO}, {sXB}, {s*1024}\n" + x
        o.append(x)
    return o


def check_ops(s):
    d, t = XB + 4 * s, ST + 16
    if s % 9 == 8:
        return ([f"v_accvgpr_read_b32 v{GT+k}, a{d+k}" for k in range(4)]
                + [f"v_max3_u32 {vBAD}, v{GT}, v{GT+1}, {vBAD}", f"v_max3_u32 {vBAD}, v{GT+2}, v{GT+3}, {vBAD}"])
    return [f"v_accvgpr_read_b32 v{GT}, a{d}", f"v_max_u32 {vBAD}, v{GT}, {vBAD}"]


vMEAN, vCC = f"v{ST}", "v4"


def stats(p, again):
    R = ST
    p(f"v_max3_u32 {vBAD}, v{R}, v{R+2}, {vBAD}")
    p(f"v_max_u32 {vBAD}, v{R+4}, {vBAD}")
    p(f"v_max3_u32 {vBAD}, v{R+6}, v{R+8}, {vBAD}")
    p(f"v_max3_u32 {vBAD}, v{R+10}, v{R+12}, {vBAD}")
    p(f"v_max_u32 {vBAD}, v{R+14}, {vBAD}")
    if again:
        ok = p.label("statok")
        p(f"v_cmp_eq_u32 vcc, -1, {vBAD}")
        p("s_nop 1")
        p(f"s_cbranch_vccz {ok}")
        sd = p.side_begin()
        p(f"s_add_u32 {sCNT}, {sCNT}, 1")
        p(f"s_cmp_gt_u32 {sCNT}, {SPIN_MAX}")
        p(f"s_cbranch_scc1 {ok}")
        p("s_waitcnt lgkmcnt(0)")
        stat_poll(p)
        p(f"s_branch {again}")
        p.side_end(sd)
        p(f"{ok}:")
    for step in (8, 4, 2):
        for k in range(0, step, 2):
            p(f"v_add_f32 v{R+k+1}, v{R+k+1}, v{R+k+step+1}")
    Q = f"v{R+1}"
    xhalf(p, "v_add_f32", Q, f"v{R+3}")
    p(f"v_mov_b32 v{R+2}, {hx(f2u(EPS))}")
    p(f"v_fmac_f32 v{R+2}, {hx(f2u(1.0/576))}, {Q}")
    p(f"v_rsq_f32 {Q}, v{R+2}")
    p(f"v_mul_f32 {vCC}, v{R+2}, {Q}")
    p(f"v_mul_f32 {vCA}, {hx(f2u(-GK))}, {Q}")
    p(f"v_mul_f32 {Q}, {Q}, {Q}")
    p(f"v_mul_f32 {vCB}, {hx(f2u(0.044715))}, {vCA}")
    p(f"v_mul_f32 {vCB}, {vCB}, {Q}")


def gelu_list(acc, pos):
    o = []
    for e in range(0, 16, 2):
        x0, x1 = f"v{acc+e}", f"v{acc+e+1}"
        t0, t1 = f"v{GT+(e & 2)}", f"v{GT+1+(e & 2)}"
        o += interleave([gelu_ops(x0, t0, vCA, vCB, vCC), gelu_ops(x1, t1, vCA, vCB, vCC)])
        o += [f"v_cvt_pk_bf16_f32 v{HB_+8*pos+e//2}, {x0}, {x1}"]
    return o


def part_store_list(acc, sg, par1, cv):
    o = [f"v_cvt_pk_bf16_f32 v{cv+k}, v{acc+2*k}, v{acc+2*k+1}" for k in range(8)]
    if sg >= 8 - ND[0]:
        o.insert(4, f"v_min_u32 v{cv}, {CLEAN}, v{cv}")
        o.append(f"v_min_u32 v{cv+4}, {CLEAN}, v{cv+4}")
        o = o[:5], o[5:]
    else:
        o = o[:4], o[4:]
    A = "s64"
    base = sSB1 if par1 else sSB0
    if sg == 0:
        q = [f"s_add_u32 {A}, {base}, {8 << 18}"]
    else:
        q = [f"s_add_u32 {A}, {sC}, {sg}", f"s_and_b32 {A}, {A}, 7", f"s_lshl_b32 {A}, {A}, 18",
             f"s_add_u32 {A}, {A}, {base}"]
    o = o[0] + q + [(f"buffer_store_dwordx4 {vr(cv,4)}, {vLN}, {WS}, {A} offen sc1{NT[1]}", None)] + o[1]
    o += [(f"buffer_store_dwordx4 {vr(cv+4,4)}, {vLN}, {WS}, {A} offen offset:1024 sc1{NT[1]}", f"ps{sg}_{par1}")]
    return o


MUB, MU8 = 224, 64
LV = 200


def direct_ops(g):
    A = "s1"
    o = [f"s_add_u32 {A}, {sC}, {8-g}\ns_and_b32 {A}, {A}, 7\ns_lshl_b32 {A}, {A}, 12\ns_xor_b32 {A}, {A}, {sSC}\n"
         f"s_add_u32 {A}, {A}, {sPB}"]
    return o + [f"buffer_load_dwordx4 {vr(LV+8+16*(7-g)+4*k,4)}, {vLN}, {WS}, {A} offen offset:{k*1024} sc1"
                for k in range(4)]


def late_poison():
    V, A = 72, "s0"
    o = [f"v_mov_b32 v{V+k}, -1" for k in range(4)]
    for sg, base in [(g, b) for g in range(8 - ND[0], 8) for b in (sSB0, sSB1)] + [(8, sSB0)]:
        o += [f"s_add_u32 {A}, {sC}, {sg}\ns_and_b32 {A}, {A}, 7\ns_lshl_b32 {A}, {A}, 18\ns_add_u32 {A}, {A}, {base}"]
        o += [f"buffer_store_dwordx4 {vr(V,4)}, {vLN}, {WS}, {A} offen offset:{k*1024} sc1" for k in range(2)]
    return o


def flag_publish(p, val):
    p(f"s_mov_b64 exec, {hx((2 << (2 * ND[0])) - 1)}")
    p(f"buffer_store_dword {vONE}, {vF68}, {WS}, {sFL} offen sc1")
    p("s_mov_b64 exec, -1")


def pair_publish_ops(p, sg, tag):
    o = [f"s_add_u32 {sPA}, {sC}, {sg}", f"s_and_b32 {sPA}, {sPA}, 7", f"s_lshl_b32 {sPA}, {sPA}, 10",
         f"s_add_u32 {sPA}, {sPA}, {sF7}"]

    def fin():
        if tag:
            p.wait_vm(tag)
        if sg == 8:
            p(f"s_and_b32 {sT0}, {sMm}, 1")
            p(f"s_lshr_b32 exec_lo, 2, {sT0}")
            p("s_mov_b32 exec_hi, 0")
        else:
            p("s_mov_b64 exec, 3")
        p(f"buffer_store_dword {vONE}, {vP2}, {WS}, {sPA} offen sc1")
        p("s_mov_b64 exec, -1")
    fin.cost = 24
    return o + [fin]


def flag_load(p, dst, addr):
    p(f"buffer_load_dword {dst}, {addr}, {WS}, 0 offen sc1")


def flag_check(p, reg, addr, val, mask):
    lp, ok = p.label("fc"), p.label("fcok")
    p.wait_regs(reg)
    p(f"{lp}:")
    p(f"v_cmp_gt_u32 vcc, {val}, {reg}")
    p(f"s_and_b32 {sT1}, vcc_lo, {mask}")
    p(f"s_cbranch_scc0 {ok}")
    s = p.side_begin()
    p(f"s_add_u32 {sCNT}, {sCNT}, 1")
    p(f"s_cmp_gt_u32 {sCNT}, {SPIN_MAX}")
    p(f"s_cbranch_scc1 {ok}")
    flag_load(p, reg, addr)
    p("s_waitcnt vmcnt(0)")
    p(f"s_branch {lp}")
    p.side_end(s)
    p(f"{ok}:")


def group_ops(p, g, slot, fl, check=True, load=True):
    o = [f"s_add_u32 {sGA}, {sC}, {8-g}", f"s_and_b32 {sGA}, {sGA}, 7", f"s_lshl_b32 {sGM}, {sGA}, 1",
         f"s_lshl_b32 {sGM}, 3, {sGM}", f"s_lshl_b32 {sGA}, {sGA}, 12", f"s_xor_b32 {sGA}, {sGA}, {sSC}",
         f"s_add_u32 {sGA}, {sGA}, {sPB}" if not LOCAL[0] else f"s_mov_b32 {sGA}, {sXB}"]
    if check:
        chk = lambda: flag_check(p, fl, vF6, 1, sGM)
        chk.cost = 24
        o.append(chk)
    if load:
        for k in range(0, 4, HALF[0]):
            o.append(f"buffer_load_dwordx4 {ar(PL+8*slot+4*k,4)}, {vLN}, {WS}, {sGA} offen offset:{k*1024} sc1{NT[0]}")
    return o


def residual_loads():
    sT0, sT1 = 's0', 's1'
    o = [f"s_lshl_b32 {sT0}, {sI}, 2", f"s_add_u32 {sT0}, {sT0}, {sW}", f"s_mul_i32 {sT0}, {sT0}, 36",
         f"s_lshl_b32 {sT1}, {sMm}, 1", f"s_add_u32 {sT0}, {sT0}, {sT1}", f"s_lshl_b32 {sT0}, {sT0}, 10",
         f"s_add_u32 {sT1}, {sT0}, {hx(HB)}", f"s_add_u32 {sT0}, {sT0}, {hx(X1)}"]
    for j, s in enumerate((sT1, sT0)):
        for k in range(2):
            o.append(f"buffer_load_dwordx4 {ar(PL+8*(15+j)+4*k,4)}, {vLN}, {WS}, {s} offen offset:{k*1024} sc1")
    return o


vC8T, vC8P, vC8A = f"v{ST+2}", f"v{ST+3}", f"v{ST+4}"
sC8, sC8X = "s65", "s66"


def c8_setup():
    sT0, sT1 = 's0', 's1'
    t, u, a = vC8T, vC8P, vC8A
    o = [f"s_and_b32 {sT0}, {sW}, 1", f"s_lshl_b32 {sT0}, {sT0}, 5", f"s_lshr_b32 {sT1}, {sW}, 1",
         f"s_lshl_b32 {sT1}, {sT1}, 4", f"s_add_u32 {sT0}, {sT0}, {sT1}",
         f"v_and_b32 {t}, 15, v1", f"v_add_u32 {t}, {sT0}, {t}", f"v_lshlrev_b32 {t}, 4, {t}",
         f"v_lshrrev_b32 {u}, 5, v1",
         f"v_mov_b32 {a}, {hx(X1-HB)}", f"v_mul_lo_u32 {a}, {u}, {a}", f"v_add_u32 {a}, {a}, {t}",
         f"v_lshl_add_u32 {t}, {u}, 11, {t}",
         f"v_bfe_u32 {u}, v1, 4, 1", f"v_lshl_add_u32 {a}, {u}, 27, {a}",
         f"s_lshl_b32 {sT0}, {sI}, 2", f"s_lshr_b32 {sT1}, {sMm}, 2", f"s_add_u32 {sT0}, {sT0}, {sT1}",
         f"s_mul_i32 {sT0}, {sT0}, 36", f"s_and_b32 {sT1}, {sMm}, 3", f"s_add_u32 {sT0}, {sT0}, {sT1}",
         f"s_add_u32 {sT0}, {sT0}, 32", f"s_lshl_b32 {sT0}, {sT0}, 10", f"s_add_u32 {sT0}, {sT0}, {hx(HB)}",
         f"buffer_load_dwordx4 {ar(PL8+16,4)}, {a}, {WS}, {sT0} offen sc1",
         f"v_sub_u32 {u}, {sC}, {u}",
         f"s_mul_i32 {sT0}, {sI}, 18", f"s_bfe_u32 {sT1}, {sMm}, 0x10001", f"s_add_u32 {sT0}, {sT0}, {sT1}",
         f"s_add_u32 {sT0}, {sT0}, 16", f"s_lshl_b32 {sT0}, {sT0}, 2", f"s_lshr_b32 {sT1}, {sMm}, 2",
         f"s_add_u32 {sT0}, {sT0}, {sT1}", f"s_lshl_b32 {sT0}, {sT0}, 15", f"s_and_b32 {sT1}, {sMm}, 1",
         f"s_lshl_b32 {sT1}, {sT1}, 10", f"s_add_u32 {sT0}, {sT0}, {sT1}", f"s_add_u32 {sC8}, {sT0}, {hx(PART)}",
         f"s_lshr_b32 {sT1}, {sMm}, 2", f"s_lshl_b32 {sT1}, {sT1}, 1", f"s_xor_b32 {sT1}, {sT1}, {sI}",
         f"s_and_b32 {sC8X}, {sT1}, {SCR[0]}"]
    assert OOB == 1 << 27
    return o


def c8_load(k):
    a = vC8A
    return [f"v_add_u32 {a}, {16 - 2*k - 1}, {vC8P}", f"v_and_b32 {a}, 7, {a}", f"v_xor_b32 {a}, {sC8X}, {a}",
            f"v_lshl_add_u32 {a}, {a}, 12, {vC8T}",
            f"buffer_load_dwordx4 {ar(PL8+4*k,4)}, {a}, {WS}, {sC8} offen sc1"]


def build_sequence():
    seq = []
    for s in range(36):
        seq.append(dict(acc=ACC[0], first=s == 0, b=ar(XB + 4 * s, 4), base=vH0, off=(s * 1024, s * 1024 + 256), seg=0))
    for cc in range(4):
        for par in range(2):
            n = 1 + 2 * cc + par
            for s in range(36):
                slot = (1 + 2 * cc + s // 18) % 4
                o = (s % 18) * 2048
                seq.append(dict(acc=ACC[n % 2], first=s == 0, b=ar(XB + 4 * s, 4), base=f"v{AB+2*slot+par}",
                                off=(o, o + 512), seg=1 + cc))
    for sg in range(9):
        slot = (9 + sg) % 4
        if sg == 0:
            order = [(s, c) for s in range(18) for c in range(2)]
            accs = (ACC[1], ACC[2])
        else:
            order = [(s, c) for c in range(2) for s in range(18)]
            accs = (ACC[0], ACC[1])
        for s, c in order:
            seq.append(dict(acc=accs[c], first=s == 0, b=vr(HB_ + 4 * s, 4), base=f"v{AB+2*slot+c}",
                            off=(s * 2048, s * 2048 + 512), seg=5 + sg))
    return seq


def main_loop(p, st, opts):
    seq = build_sequence()
    N = len(seq)
    start = {}
    for j, e in enumerate(seq):
        start.setdefault(e["seg"], j)
    seg_stages = {0: [0], 1: [1, 2], 2: [3, 4], 3: [5, 6], 4: [7, 8]}
    for sg in range(9):
        seg_stages[5 + sg] = [9 + sg]
    dma_after = {1: [4], 2: [5, 6], 3: [7, 8], 4: [9, 10], 5: [11, 12]}
    for k in range(6, 11):
        dma_after[k] = [7 + k]
    swapped = [False]

    def rd(j):
        e = seq[j]
        if e["seg"] >= 5 and not swapped[0]:
            swapped[0] = True
            p(f"s_and_b32 {sT1}, {sMm}, 1")
            p(f"s_xor_b32 {sT1}, {sT1}, 1")
            p(f"s_lshl_b32 {sT1}, {sT1}, 6")
            for r in range(AB, AB + 8):
                p(f"v_xor_b32 v{r}, {sT1}, v{r}")
        d = AFR + 4 * (j % NAF)
        for q in range(2):
            p(f"ds_read_b64_tr_b16 {ar(d+2*q,2)}, {e['base']} offset:{e['off'][q]}")

    F = Filler(p)
    add = F.add
    for n in range(9):
        e = 36 * (n + 1)
        add(e + 2, e + (34 if n < 8 else 29), gelu_list(ACC[n % 2], n))
    for k, taus in dma_after.items():
        ops = []
        for tau in taus:
            if tau == 9:
                r = Rec()
                rest = dma_pattern(r, "w4")
                ops += r.ops + rest + w4_bases()
            ops += tagged(stage_dma(tau), f"st{tau}")
        add(start[k] - 3, start[k] + (opts.get("dma3", 50) if k < 5 else opts.get("dma4", 31)), ops)
    E0 = start[5]
    if opts.get("pf60"):
        pf0 = lambda: weight_prefetch(p, opts, opts["pf60"], V=64)
        add(26, 27, [pf0])
    opts.setdefault("pf6", "4")
    if opts.get("pf6"):
        pf = lambda: weight_prefetch(p, opts, opts["pf6"], V=64)
        pf.cost = 60
        add(start[2] + 55, start[2] + 60, [pf])
    add(E0 + 38, E0 + 45, part_store_list(ACC[1], 0, 0, CV[0]))
    add(E0 + 46, E0 + 52, part_store_list(ACC[2], 0, 1, CV[1]))
    for sg in range(1, 9):
        e = start[5 + sg]
        add(e + 20, e + 28, part_store_list(ACC[0], sg, 0, CV[0]))
        if sg < 8:
            add(e + 38, e + 46, part_store_list(ACC[1], sg, 1, CV[1]))
    add(start[7], start[7] + 30, residual_loads())
    nslot = 0
    LAG = opts.get("lag", ND[0] - 1)
    pubpos, ldpos, chkpos = opts.get("pubpos", 30), opts.get("ldpos", 12), opts.get("chkpos", 28)
    for sg in range(1, 9):
        e = start[5 + sg]
        PL_ = opts.get("publag", 0)
        ps = sg - 1 - PL_
        tag = None if opts.get("x_nopubwait") else f"ps{ps}_1"
        pp = pubpos if sg < 8 else opts.get("pub8", 24)
        if ps < 0 or ps >= 8 - ND[0]:
            pass
        elif ps == 0:
            w0 = lambda tag=tag: p.wait_vm(tag) if tag else None
            w0.cost = 4
            add(e + 30, e + 31, [w0])
            add(e + 40, e + 44, [lambda: flag_publish(p, 1)])
        else:
            o = pair_publish_ops(p, ps, tag)
            add(e + pp - 8, e + pp - 1, o[:-1])
            add(e + pp, e + pp + 1, o[-1:])
        g = sg - 2 - LAG
        if g >= 8 - ND[0]:
            continue
        if g >= 1 and not opts.get("x_nochk"):
            fl = (vFL, vFLb)[g & 1]
            add(e + ldpos, e + ldpos + 1, [lambda fl=fl: flag_load(p, fl, vF6)])
            o = group_ops(p, g, nslot, fl, not opts.get("x_nospin"), not opts.get("x_noload"))
            if g == 1:
                o[3] += f"\ns_or_b32 {sGM}, {sGM}, {hx(((2 << (2 * ND[0])) - 1) << 16)}"
            add(e + chkpos - 12, e + chkpos - 1, o[:7])
            for k in range(4):
                need = max([1] + [q for q in (2 * k + 1, 2 * k + 2) if q < 8 - ND[0]])
                if need == g:
                    o += c8_load(k)
            add(e + chkpos, min(e + chkpos + 9, N - 1), o[7:])
        if g >= 1:
            nslot += 2
    add(start[6] + 10, start[7] - 6, c8_setup())
    add(start[8], start[8] + 30, tail_setup())
    add(start[opts.get("lps", 1)] + 4, start[opts.get("lps", 1)] + 68, late_poison())
    for q, g in enumerate(range(8 - ND[0], 7)):
        e = start[13] + opts.get("spec0", 0) + q * opts.get("specd", 14)
        add(e, e + 8, direct_ops(g))
    add(start[11] + 4, start[13], select_ops())
    add(start[13], start[13] + 14, [f"v_mov_b32 v{MUB+k}, {vMEAN}" for k in range(16)]
        + [f"v_mul_f32 v{MU8+k}, 0.5, v{MU8+4}" for k in range(4)])
    add(opts.get("st3a", 24), opts.get("st3b", 31), tagged(stage_dma(3), "st3"))

    again = p.label("again6")
    p(f"{again}:")
    stat_loads(p)
    xl = x_loads()
    emit_some(p, xl, opts.get("xahead", 12))
    st(p, "xiss")
    setup(p)
    for j in range(PD):
        rd(j)
    for o in ["v_mov_b32 " + vBAD + ", 0"] + check_ops(0):
        p(o)
    issued = PD
    bounds = sorted(start.values())[1:]
    for j, e in enumerate(seq):
        d = AFR + 4 * (j % NAF)
        acc = vr(e["acc"], 16)
        if opts.get("wait2", 1) and j % 2 == 0 and j + 1 < issued:
            p.wait_regs(ar(AFR + 4 * ((j + 1) % NAF), 4))
        cin = acc if not e["first"] else (vr(MUB, 16) if j == N - 18 else "0")
        p(f"v_mfma_f32_32x32x16_bf16 {acc}, {ar(d,4)}, {e['b']}, {cin}")
        nb = next((b for b in bounds if b > j), None)
        if nb is not None and j == nb - 4:
            p.wait_lg()
            for tau in seg_stages[seq[nb]["seg"]]:
                p.wait_vm(f"st{tau}")
            p("s_barrier")
            if st:
                st(p, f"seg{seq[nb]['seg']}")
        lim = min(j + PD, N - 1)
        if nb is not None and j < nb - 4:
            lim = min(lim, nb - 1)
        emit_some(p, xl, 1)
        if j < 31:
            for o in check_ops(j + 1):
                p(o)
        if j == 31:
            for s_ in range(32, 36):
                for o in check_ops(s_):
                    p(o)
            redo_if_poison(p, vBAD, again, sCNT)
        if j == 4:
            stats(p, None)
        while issued <= lim:
            rd(issued)
            issued += 1
        F.gap(j)
    assert F.done()
    return nslot


vO8, vOM = f"v{ST+6}", f"v{ST+7}"
sO8, sOM, sG7, sPP = "s4", "s5", "s6", "s7"


def tail_setup():
    a, b, t = 's0', 's1', f"v{ST+8}"
    return [f"s_mov_b32 s{R_C}, s{S_OUT}\ns_mov_b32 s{R_C+1}, s{S_OUT+1}",
            f"s_mov_b32 s{R_C+2}, {2048*1152}\ns_mov_b32 s{R_C+3}, 0x20000",
            f"v_and_b32 {t}, 0x1f0, {vC8T}", f"v_lshrrev_b32 {t}, 1, {t}",
            f"s_lshl_b32 {a}, {sI}, 2", f"s_lshr_b32 {b}, {sMm}, 2", f"s_add_u32 {a}, {a}, {b}",
            f"s_lshl_b32 {a}, {a}, 12", f"s_add_u32 {a}, {a}, {hx(ST5)}",
            f"buffer_load_dword v{MU8+4}, {t}, {WS}, {a} offen sc1",
            f"v_and_b32 {vO8}, 15, v1", f"v_mul_u32_u24 {vO8}, 1152, {vO8}", f"v_lshrrev_b32 {t}, 5, v1",
            f"v_lshl_add_u32 {vO8}, {t}, 3, {vO8}",
            f"v_and_b32 {vOM}, 31, v1", f"v_mul_u32_u24 {vOM}, 1152, {vOM}", f"v_lshl_add_u32 {vOM}, {t}, 4, {vOM}",
            f"s_lshl_b32 {a}, {sI}, 2", f"s_lshr_b32 {b}, {sMm}, 2", f"s_add_u32 {a}, {a}, {b}",
            f"s_lshl_b32 {a}, {a}, 1", f"s_lshr_b32 {b}, {sW}, 1", f"s_add_u32 {a}, {a}, {b}",
            f"s_mul_i32 {a}, {a}, {16*1152}", f"s_and_b32 {b}, {sMm}, 3", f"s_lshl_b32 {b}, {b}, 5",
            f"s_add_u32 {a}, {a}, {b}", f"s_and_b32 {b}, {sW}, 1", f"s_lshl_b32 {b}, {b}, 4",
            f"s_add_u32 {sO8}, {a}, {b}",
            f"s_lshl_b32 {a}, {sI}, 2", f"s_add_u32 {a}, {a}, {sW}", f"s_mul_i32 {a}, {a}, 36864",
            f"s_lshl_b32 {b}, {sMm}, 6", f"s_add_u32 {sOM}, {a}, {b}",
            f"s_xor_b32 {a}, {sMm}, 1", f"s_lshl_b32 {a}, {a}, 11",
            f"s_xor_b32 {a}, {a}, {sSC}", f"s_add_u32 {sPP}, {a}, {sPB}"]


def tail(p, st, nslot, opts):
    nd = ND[0]
    assert nslot == 2 * (7 - nd)
    acc = vr(ACC[1], 16)

    def addr(r):
        p(f"v_mfma_f32_32x32x16_bf16 {acc}, {vr(ID0,4)}, {r(0)}, {acc}")
        p(f"v_mfma_f32_32x32x16_bf16 {acc}, {vr(ID1,4)}, {r(4)}, {acc}")

    addp = lambda slot: addr(lambda k: ar(PL + 8 * slot + k, 4))
    addv = lambda t: addr(lambda k: vr(LV + 8 * t + k, 4))
    a8 = vr(ACC8, 16)

    def add8(k):
        p(f"v_mfma_f32_32x32x16_bf16 {a8}, {vr(IDX,4)}, {ar(PL8+4*k,4)}, {vr(MU8, 16) if k == 4 else a8}")

    def fetch(g):
        for o in direct_ops(g):
            p(o)

    def partner():
        for k in range(2):
            p(f"buffer_load_dwordx4 {vr(LV+4*k,4)}, {vLN}, {WS}, {sPP} offen offset:{k*1024} sc1")

    def bad():
        regs = [f"v{LV+4*k}" for k in range(2 + 4 * nd)][::-1]
        p(f"v_max_u32 {vBAD}, {regs[0]}, {regs[1]}")
        for k in range(2, len(regs), 2):
            p(f"v_max3_u32 {vBAD}, {regs[k]}, {regs[k+1]}, {vBAD}")

    todo = [15, 16] + list(range(nslot))
    n0 = opts.get("t0", 4)
    fetch(7)
    for s in todo[:n0]:
        addp(s)
    partner()
    for s in todo[n0:]:
        addp(s)
    for k in (4, 3, 0, 1, 2):
        add8(k)
    ok = p.label("tailok")
    bad()
    p(f"v_cmp_eq_u32 vcc, -1, {vBAD}")
    p("s_nop 1")
    p(f"s_cbranch_vccz {ok}")
    sd = p.side_begin()
    poll_data(p, lambda: ([fetch(g) for g in range(8 - nd, 8)], partner()), vBAD, multi=bad)
    p.side_end(sd)
    p(f"{ok}:")
    for t in range(2 * nd, 0, -1):
        addv(t)
    t = ST + 10
    for k in range(4):
        p(f"v_mov_b32 v{t+k}, v{ACC8+k}")
    for k in range(4):
        p(f"v_permlane16_swap_b32 v{ACC8+k}, v{t+k}")
    for k in range(4):
        p(f"v_add_f32 v{ACC8+k}, v{ACC8+k}, v{t+k}")
    addv(0)
    p(f"v_cvt_pk_bf16_f32 v{ACC8}, v{ACC8}, v{ACC8+1}")
    p(f"v_cvt_pk_bf16_f32 v{ACC8+1}, v{ACC8+2}, v{ACC8+3}")
    p("s_mov_b32 exec_lo, 0xffff")
    p("s_mov_b32 exec_hi, 0xffff")
    p(f"buffer_store_dwordx2 {vr(ACC8,2)}, {vO8}, {RC}, {sO8} offen offset:1024{OST[0]}")
    p("s_mov_b64 exec, -1")
    a = ACC[1]
    for h in range(2):
        for k in range(4 * h, 4 * h + 4):
            p(f"v_cvt_pk_bf16_f32 v{CV[0]+k}, v{a+2*k}, v{a+2*k+1}")
        p(f"buffer_store_dwordx4 {vr(CV[0]+4*h,4)}, {vOM}, {RC}, {sOM} offen offset:{32*h}{OST[0]}")


def p6(p, st, opts, left):
    HALF[0] = opts.get("x_half", 1)
    OST[0] = opts.get("ost", "")
    LOCAL[0] = opts.get("x_local", 0)
    ND[0] = opts.get("nd", 1)
    SCR[0] = opts.get("scr", 7)
    NT[0] = " nt" if opts.get("ntld") else ""
    NT[1] = " nt" if opts.get("ntst") else ""
    emit_some(p, left, 99)
    p(f"s_mov_b32 {sCNT}, 0")
    st(p, "p5")
    x_base(p)
    if not opts.get("opt6", 0):
        stat_poll(p)
    st(p, "f5seen")
    nslot = main_loop(p, st, opts)
    st(p, "mlp")
    tail(p, st, nslot, opts)
```

```python
from common import *
from sched import Filler

sQ, sMAT, sG, sKH, sT0, sT1, sB = "s48", "s49", "s50", "s51", "s53", "s54", "s52"
T = 232
FR = 152


NPREP = 27


def prep_issue(p):
    p(f"s_mul_i32 {sMAT}, {sQ}, 57")
    p(f"s_lshr_b32 {sMAT}, {sMAT}, 9")
    p(f"s_mul_i32 {sKH}, {sMAT}, 9")
    p(f"s_sub_u32 {sKH}, {sQ}, {sKH}")
    p(f"s_cmp_eq_u32 {sMAT}, 1")
    p(f"s_cselect_b32 s{R_A}, s{S_W1}, s{S_W2}")
    p(f"s_cselect_b32 s{R_A+1}, s{S_W1+1}, s{S_W2+1}")
    p(f"s_cmp_eq_u32 {sMAT}, 0")
    p(f"s_cselect_b32 s{R_A}, s{S_WO}, s{R_A}")
    p(f"s_cselect_b32 s{R_A+1}, s{S_WO+1}, s{R_A+1}")
    p(f"s_mov_b32 s{R_A+2}, {576*1152}")
    p(f"s_mov_b32 s{R_A+3}, 0x20000")
    p(f"s_cselect_b32 {sT0}, 18, 16")
    p(f"s_lshl_b32 {sT1}, {sKH}, 2")
    p(f"s_add_u32 {sT1}, {sT1}, {sW}")
    p(f"s_mul_i32 {sB}, {sT1}, {sT0}")
    p(f"s_mul_i32 {sT0}, {sW}, 144")
    p(f"s_add_u32 {sT0}, {sT0}, 16")
    p(f"s_cmp_eq_u32 {sQ}, 8")
    p(f"s_cselect_b32 {sB}, {sT0}, {sB}")
    p(f"s_cselect_b32 s55, {16*1152}, 0")
    p(f"s_mul_i32 {sB}, {sB}, 1152")
    p(f"s_mul_i32 s56, {sW}, 18432")
    p(f"v_lshlrev_b32 v{T+2}, 4, v1")
    for k in range(18):
        p(f"v_add_u32 v{T}, {64*k}, v1")
        p(f"v_mul_u32_u24 v{T}, 3641, v{T}")
        p(f"v_lshrrev_b32 v{T}, 19, v{T}")
        p(f"s_add_u32 m0, s56, {k*1024}")
        p(f"v_mul_u32_u24 v{T}, s55, v{T}")
        p(f"v_add3_u32 v{T}, v{T}, v{T+2}, {sB}")
        p(f"buffer_load_dwordx4 v{T}, {RA}, 0 offen lds")
        p(f"s_add_u32 {sB}, {sB}, 1024")


def prep_finish(p, st):
    a, h, ln = f"v{T}", f"v{T+1}", "v2"
    p(f"v_lshrrev_b32 {a}, 5, v1")
    p(f"v_bfe_u32 v{T+2}, v1, 2, 2")
    p(f"v_lshl_add_u32 {a}, {a}, 3, v{T+2}")
    p(f"v_mul_u32_u24 {a}, 1152, {a}")
    p(f"v_and_b32 v{T+2}, 1, v1")
    p(f"v_lshl_add_u32 {a}, v{T+2}, 4, {a}")
    p(f"v_bfe_u32 v{T+2}, v1, 1, 1")
    p(f"v_lshl_add_u32 {a}, v{T+2}, 3, {a}")
    p(f"s_mul_i32 {sT0}, {sW}, 288")
    p(f"v_add_u32 {h}, {sT0}, {a}")
    p(f"v_bfe_u32 v{T+2}, v1, 4, 1")
    p(f"v_lshl_add_u32 {a}, v{T+2}, 5, {h}")
    for ks in range(4):
        for t in range(5):
            for q in range(2):
                p(f"ds_read_b64_tr_b16 {vr(FR+20*ks+4*t+2*q,2)}, {a if t < 4 else h} offset:{ks*18432+q*4608+t*64}")
    p(f"s_lshl_b32 {sB}, {sMAT}, 2")
    p(f"s_add_u32 {sB}, {sB}, {sW}")
    p(f"s_mul_i32 {sB}, {sB}, {4*45*1024}")
    p(f"s_add_u32 {sB}, {sB}, {hx(WP)}")


def full_stores():
    o = [f"s_lshl_b32 s55, {sKH}, 12\ns_add_u32 s55, s55, {sB}\ns_add_u32 s55, s55, {9*1024}"]
    for t in range(4):
        for ks in range(4):
            o.append(f"buffer_store_dwordx4 {vr(FR+20*ks+4*t,4)}, v2, {WS}, s55 offen offset:{ks*1024} sc1")
        o.append(f"s_add_u32 s55, s55, {45*1024}")
    return o


def row_means(p, fill):
    F = Filler(p)
    F.add(0, 70, fill)
    D, ONE, AF = 64, 144, 160
    p(f"v_and_b32 v{T+2}, 0x13, v1")
    p(f"v_bfe_u32 v{T+3}, v1, 2, 1")
    p(f"v_lshl_add_u32 v{T+2}, v{T+3}, 3, v{T+2}")
    p(f"v_bfe_u32 v{T+3}, v1, 3, 1")
    p(f"v_lshl_add_u32 v{T+2}, v{T+3}, 2, v{T+2}")
    p(f"v_bfe_u32 v{T+4}, v{T+2}, 1, 3")
    p(f"v_lshrrev_b32 v{T+3}, 5, v1")
    p(f"v_add_u32 v{T+4}, v{T+4}, v{T+3}")
    p(f"v_mul_u32_u24 v{T+5}, 1152, v{T+2}")
    p(f"v_lshl_add_u32 v{T+2}, v{T+4}, 4, v{T+5}")
    for k in range(4):
        p(f"v_add_u32 v{T+3}, {64+2*k}, v{T+4}")
        p(f"v_subrev_u32 v{T+6}, 72, v{T+3}")
        p(f"v_min_u32 v{T+3}, v{T+3}, v{T+6}")
        p(f"v_lshl_add_u32 v{124+k}, v{T+3}, 4, v{T+5}")
    for k in range(4):
        p(f"v_mov_b32 v{ONE+k}, {sONE}")
    seq = [(u, s) for u in range(2) for s in range(36)]

    def rd(n):
        u, s = seq[n]
        base, off = (f"v{T+2}", s * 32) if s < 32 else (f"v{124+s-32}", 0)
        p(f"ds_read_b128 {ar(AF+4*(n%12),4)}, {base} offset:{u*32*1152+off}")
    for n in range(10):
        rd(n)
    for n, (u, s) in enumerate(seq):
        d = vr(D + 16 * u, 16)
        p(f"v_mfma_f32_32x32x16_bf16 {d}, {ar(AF+4*(n%12),4)}, {vr(ONE,4)}, {'0' if s == 0 else d}")
        if n + 10 < 72:
            rd(n + 10)
        F.gap(n)
    for k in range(32):
        p(f"v_mul_f32 v{D+k}, {hx(f2u(1.0/576))}, v{D+k}")
    for k in range(16):
        hi, lo, t = 108 + k, 128 + k, T + 3
        p(f"v_cvt_pk_bf16_f32 v{hi}, v{D+2*k}, v{D+2*k+1}")
        p(f"v_lshlrev_b32 v{t}, 16, v{hi}")
        p(f"v_sub_f32 v{D+2*k}, v{D+2*k}, v{t}")
        p(f"v_and_b32 v{t}, 0xffff0000, v{hi}")
        p(f"v_sub_f32 v{D+2*k+1}, v{D+2*k+1}, v{t}")
        p(f"v_cvt_pk_bf16_f32 v{lo}, v{D+2*k}, v{D+2*k+1}")
    for mask, src in ((0x110000, 108), (0x220000, 128)):
        p(f"s_mov_b32 exec_lo, {hx(mask)}")
        p(f"s_mov_b32 exec_hi, {hx(mask)}")
        for k in range(16):
            p(f"v_mov_b32 v{FR+20*(k//4)+16+k%4}, v{src+k}")
    p("s_mov_b64 exec, -1")


def half_stores(p):
    ln = "v2"
    p("s_mov_b32 exec_lo, 0x33ffff")
    p("s_mov_b32 exec_hi, 0x33ffff")
    for ks in range(4):
        p(f"s_lshl_b32 {sT0}, {sKH}, 2")
        p(f"s_add_u32 {sT0}, {sT0}, {ks}")
        p(f"s_mul_i32 {sT1}, {sT0}, 57")
        p(f"s_lshr_b32 {sT1}, {sT1}, 9")
        p(f"s_mul_i32 {sT1}, {sT1}, 36")
        p(f"s_add_u32 {sT0}, {sT0}, {sT1}")
        p(f"s_lshl_b32 {sT0}, {sT0}, 10")
        p(f"s_add_u32 {sT0}, {sT0}, {sB}")
        p(f"buffer_store_dwordx4 {vr(FR+20*ks+16,4)}, {ln}, {WS}, {sT0} offen sc1")
    p("s_mov_b64 exec, -1")


def w3_warm(p, first, count):
    T = 96
    srd(p, R_A, S_W3, 576 * 9216)
    a, t = f"v{T}", f"v{T+1}"
    p(f"v_bfe_u32 {a}, v0, 2, 3")
    p(f"v_mul_u32_u24 {a}, 9, {a}")
    p(f"v_and_b32 {t}, 3, v0")
    p(f"v_lshlrev_b32 {t}, 2, {t}")
    p(f"s_mov_b32 {sT0}, 0x1540")
    p(f"v_lshrrev_b32 {t}, {t}, {sT0}")
    p(f"v_and_b32 {t}, 15, {t}")
    p(f"v_add_u32 {a}, {a}, {t}")
    p(f"v_lshlrev_b32 {a}, 7, {a}")
    p(f"v_lshrrev_b32 {t}, 5, v0")
    p(f"v_mul_u32_u24 {t}, 9216, {t}")
    p(f"v_add_u32 {a}, {a}, {t}")
    p(f"v_and_b32 {t}, 3, v0")
    p(f"v_cmp_eq_u32 vcc, 3, {t}")
    p(f"s_mul_i32 {sT0}, {first}, 9216")
    for k in range(count // 8):
        d = f"v{T+2+k % 20}"
        if k == 0:
            p(f"v_bfe_u32 v{T+23}, v0, 5, 1")
            p(f"v_mul_u32_u24 v{T+23}, {5*128}, v{T+23}")
            p(f"v_lshrrev_b32 v{T+24}, 5, v0")
        p(f"v_add_u32 v{T+25}, {first}, v{T+24}")
        p(f"v_add_u32 v{T+25}, {8*k+1}, v{T+25}")
        p(f"v_lshrrev_b32 v{T+25}, 1, v{T+25}")
        p(f"v_mul_u32_u24 v{T+25}, 9216, v{T+25}")
        p(f"v_sub_u32 v{T+25}, v{T+23}, v{T+25}")
        p(f"v_cndmask_b32 v{T+25}, 0, v{T+25}, vcc")
        p(f"v_add3_u32 v{T+25}, v{T+25}, {a}, {sT0}")
        p(f"buffer_load_dword {d}, v{T+25}, {RA}, 0 offen")
        p(f"s_add_u32 {sT0}, {sT0}, {8*9216}")


def w1_colsums(p):
    D, A = 96, 240
    srd(p, R_A, S_W1, 576 * 1152)
    p(f"v_lshrrev_b32 v{A}, 4, v0")
    p(f"v_mul_u32_u24 v{A}, 1152, v{A}")
    p(f"v_and_b32 v{A+1}, 15, v0")
    p(f"v_lshl_add_u32 v{A}, v{A+1}, 4, v{A}")
    p(f"s_sub_u32 {sKH}, {sQ}, {NPREP}")
    p(f"s_lshl_b32 {sB}, {sKH}, 8")
    for k in range(36):
        p(f"buffer_load_dwordx4 {vr(D+4*k,4)}, v{A}, {RA}, {sB} offen")
        p(f"s_add_u32 {sB}, {sB}, {16*1152}")
    p(f"s_mov_b32 {sT0}, 0x3f80")
    p(f"s_mov_b32 {sT1}, 0x3f800000")
    for k in range(8):
        p(f"v_mov_b32 v{A+k}, 0")
    for k in range(36):
        for d in range(4):
            p(f"v_dot2c_f32_bf16 v{A+2*d}, {sT0}, v{D+4*k+d}")
            p(f"v_dot2c_f32_bf16 v{A+2*d+1}, {sT1}, v{D+4*k+d}")
    for op in ("v_permlane16_swap_b32", "v_permlane32_swap_b32"):
        for k in range(8):
            p(f"v_mov_b32 v{D+k}, v{A+k}")
        for k in range(8):
            p(f"{op} v{A+k}, v{D+k}")
        for k in range(8):
            p(f"v_add_f32 v{A+k}, v{A+k}, v{D+k}")
    p(f"v_and_b32 v{D}, 15, v1")
    p(f"v_lshlrev_b32 v{D}, 5, v{D}")
    p(f"s_lshl_b32 {sT0}, {sW}, 9")
    p(f"v_add_u32 v{D}, {sT0}, v{D}")
    p(f"ds_write_b128 v{D}, {vr(A,4)}")
    p(f"ds_write_b128 v{D}, {vr(A+4,4)} offset:16")
    p.wait_lg()
    p("s_barrier")
    p(f"v_and_b32 v{D}, 31, v1")
    p(f"v_lshlrev_b32 v{D}, 4, v{D}")
    for k in range(4):
        p(f"ds_read_b128 {vr(D+4+4*k,4)}, v{D} offset:{k*512}")
    for k in range(1, 4):
        for j in range(4):
            p(f"v_add_f32 v{D+4+j}, v{D+4+j}, v{D+4+4*k+j}")
    p(f"s_lshl_b32 {sT0}, {sKH}, 9")
    p(f"s_add_u32 {sT0}, {sT0}, {hx(CSP)}")
    p(f"s_cmp_eq_u32 {sW}, 0")
    p(f"s_cselect_b32 {sT0}, {sT0}, {hx(OOB)}")
    p("s_mov_b32 exec_hi, 0")
    p(f"buffer_store_dwordx4 {vr(D+4,4)}, v{D}, {WS}, {sT0} offen sc1")
    p("s_mov_b64 exec, -1")
```

```python
from common import *
from sched import Filler

sT, sG, sT0, sT1, sWP, sWS, sC = "s65", "s66", "s53", "s54", "s67", "s52", "s55"
sD0 = "s68"
vLN, vBQ, vPL, vSRC, vBB, vBAD = "v2", "v3", "v4", "v5", "v6", "v7"
sRC = "s64"
TMP = 8
ACC, ACCH, CS, CSH = 32, 48, 64, 80
BF, NBF = 96, 6
XR = 120
HK = 130
vMU, vR1, vR12 = "v139", "v140", "v141"
CSH2 = 142
PH = 144

L_B = 110592
L_ST = L_B + 36864
L_HP = L_ST + 4096


def wreg(ph, f):
    if ph == 4:
        return ar(4 * f, 4)
    return ar(180 + 4 * f, 4) if f < 19 else vr(152 + 4 * (f - 19), 4)


def sg_ids(p):
    p(f"s_lshr_b32 {sT}, {sL}, 2")
    p(f"s_lshl_b32 {sT0}, {sX}, 3")
    p(f"s_add_u32 {sT}, {sT}, {sT0}")
    p(f"s_and_b32 {sG}, {sL}, 3")
    p(f"s_lshl_b32 {sWP}, {sG}, 2")
    p(f"s_add_u32 {sWP}, {sWP}, {sW}")
    p(f"s_mul_i32 {sWP}, {sWP}, {45*1024}")
    p(f"s_add_u32 {sWP}, {sWP}, {hx(WP)}")


def w_loads(ph):
    o = []
    for f in range(45):
        x = f"buffer_load_dwordx4 {wreg(ph, f)}, {vLN}, {WS}, {sD0} offen offset:{(f%4)*1024} sc1"
        if f < 9:
            m = "0x33ffff" if ph == 5 else "0xffff"
            x = f"s_mov_b32 exec_lo, {m}\ns_mov_b32 exec_hi, {m}\n" + x + "\ns_mov_b64 exec, -1"
        if f % 4 == 0:
            x = f"s_add_u32 {sD0}, {sWP}, {(ph-3)*16*45*1024 + f*1024}\n" + x
        o.append(x)
    return o


def emit_some(p, l, n):
    for _ in range(min(n, len(l))):
        x = l.pop(0)
        p(*x) if isinstance(x, tuple) else p(x)


def half_exchange(p, src, n):
    p(f"s_mul_i32 {sT0}, {sW}, 2560")
    p(f"s_add_u32 {sT0}, {sT0}, {L_HP}")
    p(f"v_lshlrev_b32 v{TMP}, 3, v1")
    p(f"v_add_u32 v{TMP+1}, {sT0}, v{TMP}")
    for j in range(n):
        p(f"ds_write_b64 v{TMP+1}, {vr(src+2*j,2)} offset:{j*512}", tag="hx")


def half_collect_reads(p, ph):
    p(f"s_lshl_b32 {sT0}, {sW}, 9")
    p(f"s_add_u32 {sT0}, {sT0}, {L_HP}")
    p(f"v_lshlrev_b32 v{TMP}, 3, v1")
    if ph == 5:
        p(f"v_add_u32 v{TMP+1}, {L_HP}, v{TMP}")
    p(f"v_add_u32 v{TMP}, {sT0}, v{TMP}")
    for k in range(4):
        p(f"ds_read_b64 {vr(PH+2*k,2)}, v{TMP} offset:{k*2560}")
    if ph == 5:
        for k in range(4):
            p(f"ds_read_b64 {vr(PM+2*k,2)}, v{TMP+1} offset:{k*2560+2048}")


PM = 84
vMU5 = f"v{PM}"


def mean_ops():
    o = [f"v_add_f32 v{PM+k}, v{PM+k}, v{PM+k+4}" for k in range(4)]
    o += [f"v_add_f32 v{PM+k}, v{PM+k}, v{PM+k+2}" for k in range(2)]
    o += [f"v_add_f32 {vMU5}, v{PM}, v{PM+1}"]
    return o + [f"v_sub_f32 v{CS+k}, v{CS+k}, {vMU5}" for k in range(18)]


def half_sum(p, d0, d1):
    p(f"v_add_f32 v{PH}, v{PH}, v{PH+2}")
    p(f"v_add_f32 v{PH+1}, v{PH+1}, v{PH+3}")
    p(f"v_add_f32 v{PH+4}, v{PH+4}, v{PH+6}")
    p(f"v_add_f32 v{PH+5}, v{PH+5}, v{PH+7}")
    p(f"v_add_f32 {d0}, v{PH}, v{PH+4}")
    p(f"v_add_f32 {d1}, v{PH+1}, v{PH+5}")


def colsum_loads(p):
    a = f"v{TMP+6}"
    p(f"v_lshrrev_b32 {a}, 5, v1")
    p(f"v_lshlrev_b32 {a}, 5, {a}")
    p(f"s_mul_i32 {sT0}, {sG}, 576")
    p(f"s_add_u32 {sT0}, {sT0}, {hx(CSP)}")
    p(f"s_lshl_b32 {sT1}, {sW}, 7")
    p(f"s_add_u32 {sT1}, {sT1}, {sT0}")
    for k in range(4):
        p(f"buffer_load_dwordx4 {vr(CS+4*k,4)}, {a}, {WS}, {sT1} offen offset:{64*(k//2)+16*(k%2)} sc1")
    p(f"s_lshl_b32 {sT1}, {sW}, 3")
    p(f"s_add_u32 {sT1}, {sT1}, {sT0}")
    p(f"buffer_load_dwordx2 {vr(CSH2,2)}, {a}, {WS}, {sT1} offen offset:512 sc1")


def poll_addr(p, ph):
    a, b = f"v{TMP}", f"v{TMP+1}"
    if ph == 3:
        p(f"s_mul_i32 {sT0}, {sW}, 9")
        p(f"v_add_u32 {a}, {sT0}, v1")
        p(f"v_lshlrev_b32 {a}, 10, {a}")
        p(f"v_subrev_u32 {b}, 16, v1")
        p(f"v_lshrrev_b32 {vPL}, 2, {b}")
        p(f"v_lshlrev_b32 {vPL}, 9, {vPL}")
        p(f"v_and_b32 {b}, 3, {b}")
        p(f"v_lshl_add_u32 {vPL}, {b}, 2, {vPL}")
        p(f"v_add_u32 {vPL}, 32768, {vPL}")
        p("v_cmp_gt_u32 vcc, 16, v1")
        p(f"s_mul_i32 {sT0}, {sT}, 36864")
        p(f"v_cndmask_b32 {vPL}, {vPL}, {a}, vcc")
        p(f"s_add_u32 {sT0}, {sT0}, {hx(OB)}")
        p(f"v_add_u32 {vPL}, {sT0}, {vPL}")
        return [f"s_cmp_eq_u32 {sW}, 3", "s_cselect_b32 exec_hi, 0xffff, 0", f"s_cselect_b32 {sT0}, 0xffff0000, 0",
                f"s_or_b32 exec_lo, {sT0}, 0x1ff"]
    if ph == 4:
        p(f"s_lshl_b32 {sT0}, {sT}, 2")
        p(f"s_add_u32 {sT0}, {sT0}, {sW}")
        p(f"s_lshl_b32 {sT0}, {sT0}, 10")
        p(f"s_add_u32 {sT0}, {sT0}, {hx(ST3)}")
        p(f"v_lshl_add_u32 {vPL}, v1, 8, {sT0}")
        return ["s_mov_b64 exec, 15"]
    p(f"s_sub_u32 {sT0}, {sT}, 1")
    p(f"s_max_i32 {sT0}, {sT0}, 0")
    p(f"s_add_u32 {sT1}, {sT}, 1")
    p(f"s_min_u32 {sT1}, {sT1}, 63")
    p(f"s_bitcmp1_b32 {sW}, 0")
    p(f"s_cselect_b32 {sT0}, {sT1}, {sT0}")
    p(f"s_sub_u32 {sT0}, {sT0}, {sT}")
    p(f"s_mul_i32 {sT0}, {sT0}, 36864")
    p(f"v_bfe_i32 {a}, v1, 2, 1")
    p(f"v_and_b32 {a}, {sT0}, {a}")
    p(f"v_and_b32 {b}, 3, v1")
    p(f"v_lshl_add_u32 {a}, {b}, 11, {a}")
    p(f"s_mul_i32 {sT0}, {sT}, 36")
    p(f"s_mul_i32 {sT1}, {sW}, 9")
    p(f"s_add_u32 {sT0}, {sT0}, {sT1}")
    p(f"s_add_u32 {sT0}, {sT0}, 1")
    p(f"s_lshl_b32 {sT0}, {sT0}, 10")
    p(f"s_add_u32 {sT0}, {sT0}, {hx(H1)}")
    p(f"v_add_u32 {vPL}, {sT0}, {a}")
    return ["s_mov_b64 exec, 0xff"]


def poison_ops(V, ln):
    import p2
    A, B = "s0", "s1"
    d = vr(V, 4)
    o = ["\n".join(f"v_mov_b32 v{V+k}, -1" for k in range(4))]
    o.append(f"s_mul_i32 {A}, {p2.sB}, 72\ns_add_u32 {A}, {A}, {p2.sH}\ns_lshl_b32 {A}, {A}, 10\n"
             f"s_add_u32 {A}, {A}, {hx(OB)}")
    o.append(f"buffer_store_dwordx4 {d}, {ln}, {WS}, {A} offen sc1")
    o.append(f"s_add_u32 {A}, {A}, 36864\nbuffer_store_dwordx4 {d}, {ln}, {WS}, {A} offen sc1")
    o.append(f"s_mul_i32 {B}, {sT}, 36\ns_mul_i32 {A}, {sG}, 9\ns_add_u32 {B}, {B}, {A}\ns_lshl_b32 {B}, {B}, 10\n"
             f"s_lshl_b32 {A}, {sW}, 11\ns_add_u32 {A}, {A}, {B}\ns_add_u32 {A}, {A}, {hx(HB)}")
    assert H1 - HB == X1 - H1
    for k in range(3):
        o.append(f"buffer_store_dwordx4 {d}, {ln}, {WS}, {A} offen sc1")
        o.append(f"buffer_store_dwordx4 {d}, {ln}, {WS}, {A} offen offset:1024 sc1"
                 + (f"\ns_add_u32 {A}, {A}, {hx(H1-HB)}" if k < 2 else ""))
    o.append(f"s_mul_i32 {A}, {sW}, {hx(H1-HB)}\ns_add_u32 {A}, {A}, {B}\ns_add_u32 {A}, {A}, {hx(HB+8192)}\n"
             f"s_lshl_b32 {B}, {sT}, 2\ns_add_u32 {B}, {B}, {sG}\ns_lshl_b32 {B}, {B}, 10\n"
             f"s_add_u32 {B}, {B}, {hx(ST3)}\ns_cmp_eq_u32 {sW}, 3\ns_cselect_b32 {A}, {B}, {A}")
    o.append(f"buffer_store_dwordx4 {d}, {ln}, {WS}, {A} offen sc1")
    o.append(f"s_lshl_b32 {A}, {sW}, 9\ns_add_u32 {B}, {B}, {A}\ns_add_u32 {B}, {B}, {hx(ST5-ST3-1024)}\n"
             f"s_lshl_b32 {A}, {p2.sB}, 1\ns_add_u32 {A}, {A}, {sW}\ns_mul_i32 {A}, {A}, 72\n"
             f"s_add_u32 {A}, {A}, {p2.sU}\ns_lshl_b32 {A}, {A}, 9\ns_add_u32 {A}, {A}, {hx(OB+32768)}\n"
             f"s_cmp_ge_u32 {sW}, 2\ns_cselect_b32 {A}, {B}, {A}")
    o.append(f"s_mov_b32 exec_hi, 0\nbuffer_store_dwordx4 {d}, {ln}, {WS}, {A} offen sc1\ns_mov_b64 exec, -1")
    return o


def b_src(p, ph):
    if ph != 5:
        p(f"s_mul_i32 {sWS}, {sT}, 36864")
        p(f"s_mul_i32 {sT0}, {sW}, 9216")
        p(f"s_add_u32 {sWS}, {sWS}, {sT0}")
        p(f"s_add_u32 {sWS}, {sWS}, {hx(OB if ph == 3 else HB)}")
        p(f"v_mov_b32 {vSRC}, {vLN}")
        return
    p(f"s_lshr_b32 {sT0}, {sW}, 1")
    p(f"s_add_u32 {sT0}, {sT0}, 1")
    p(f"s_sub_u32 {sT1}, 0, {sT0}")
    p(f"s_bitcmp1_b32 {sW}, 0")
    p(f"s_cselect_b32 {sT0}, {sT0}, {sT1}")
    p(f"s_lshl_b32 {sT1}, {sT}, 5")
    p(f"s_add_u32 {sT0}, {sT0}, {sT1}")
    p(f"v_and_b32 v{TMP}, 31, v1")
    p(f"v_add_u32 v{TMP}, {sT0}, v{TMP}")
    p(f"v_lshrrev_b32 v{TMP+1}, 5, v{TMP}")
    p(f"v_mul_u32_u24 v{TMP+1}, 36864, v{TMP+1}")
    p(f"v_and_b32 v{TMP+2}, 31, v{TMP}")
    p(f"v_lshl_add_u32 v{TMP+1}, v{TMP+2}, 4, v{TMP+1}")
    p(f"v_lshrrev_b32 v{TMP+2}, 5, v1")
    p(f"v_lshl_add_u32 v{TMP+1}, v{TMP+2}, 9, v{TMP+1}")
    p(f"v_mov_b32 v{TMP+2}, {hx(OOB)}")
    p(f"v_cmp_gt_u32 vcc, 2048, v{TMP}")
    p(f"v_cndmask_b32 {vSRC}, v{TMP+2}, v{TMP+1}, vcc")
    p(f"s_mul_i32 {sWS}, {sW}, 9216")
    p(f"s_add_u32 {sWS}, {sWS}, {hx(H1)}")


def b_dma(p, ph):
    p(f"s_mul_i32 {sT0}, {sW}, 9216")
    for j in range(9):
        if j % 4 == 0:
            p(f"s_add_u32 m0, {sT0}, {L_B + j*1024}")
            p(f"s_add_u32 {sT1}, {sWS}, {j*1024}")
        p(f"buffer_load_dwordx4 {vSRC}, {WS}, {sT1} offen offset:{(j%4)*1024} sc1 lds", tag="b")
    if ph == 4:
        p(f"s_lshl_b32 {sT0}, {sW}, 10")
        p(f"s_add_u32 m0, {sT0}, {L_ST}")
        p(f"s_lshl_b32 {sT1}, {sT}, 12")
        p(f"s_add_u32 {sT0}, {sT0}, {sT1}")
        p(f"s_add_u32 {sT0}, {sT0}, {hx(ST3)}")
        p(f"buffer_load_dwordx4 {vLN}, {WS}, {sT0} offen sc1 lds", tag="b")


def stats_consume(lds):
    a = f"v{TMP+2}"
    S, Q, t = f"v{TMP+4}", f"v{TMP+5}", f"v{TMP+3}"
    R = CSH
    o = [f"v_and_b32 {a}, 31, v1", f"v_lshlrev_b32 {a}, 3, {a}", f"v_lshrrev_b32 {t}, 5, v1",
         f"v_lshl_add_u32 {a}, {t}, 11, {a}", f"v_add_u32 {a}, {lds}, {a}"]
    o += [f"ds_read_b64 {vr(R+2*k,2)}, {a} offset:{k*256}" for k in range(8)]
    o += [None] * 3
    for k in range(4):
        o += [f"v_add_f32 v{R+4*k}, v{R+4*k}, v{R+4*k+2}", f"v_add_f32 v{R+4*k+1}, v{R+4*k+1}, v{R+4*k+3}"]
    for k in range(2):
        o += [f"v_add_f32 v{R+8*k}, v{R+8*k}, v{R+8*k+4}", f"v_add_f32 v{R+8*k+1}, v{R+8*k+1}, v{R+8*k+5}"]
    o += [f"v_add_f32 {S}, v{R}, v{R+8}", f"v_add_f32 {Q}, v{R+1}, v{R+9}"]
    o += [f"v_mov_b32 v{R}, {S}", f"v_mov_b32 v{R+1}, {Q}", None,
          f"v_permlane32_swap_b32 {S}, v{R}", f"v_permlane32_swap_b32 {Q}, v{R+1}",
          f"v_add_f32 {S}, {S}, v{R}", f"v_add_f32 {Q}, {Q}, v{R+1}",
          f"v_mul_f32 {vMU}, {hx(f2u(-1.0/576))}, {S}", f"v_mul_f32 {Q}, {hx(f2u(1.0/576))}, {Q}",
          f"v_fma_f32 {Q}, -{vMU}, {vMU}, {Q}", f"v_max_f32 {Q}, 0, {Q}",
          f"v_add_f32 {t}, {hx(f2u(EPS))}, {Q}", f"v_rsq_f32 {vR1}, {t}", None,
          f"v_mul_f32 {Q}, {Q}, {vR1}", f"v_mul_f32 {Q}, {Q}, {vR1}",
          f"v_add_f32 {Q}, {hx(f2u(EPS))}, {Q}", f"v_rsq_f32 {Q}, {Q}", None,
          f"v_mul_f32 {vR12}, {vR1}, {Q}"]
    return o


def residual_ops(ph):
    o = []
    if ph == 4:
        return o
    src = XR if ph == 3 else HK
    for k in range(9):
        o += [f"v_lshlrev_b32 v{CS+2*k}, 16, v{src+k}", f"v_and_b32 v{CS+2*k+1}, 0xffff0000, v{src+k}"]
    if ph == 5:
        o += [f"v_mul_f32 v{TMP+6}, {vMU}, {vR1}"]
        o += [f"v_fma_f32 v{CS+k}, v{CS+k}, {vR1}, v{TMP+6}" for k in range(18)]
    return o


def gemm(p, ph, nxt, opts, st, again):
    def rd(m):
        d = BF + 4 * (m % NBF)
        if m < 9:
            p(f"ds_read_b128 {vr(d,4)}, {vBQ} offset:{m*1024}")
        elif m < 45:
            p(f"ds_read_b128 {vr(d,4)}, {vBB} offset:{(m-9)*1024}")

    PD = NBF - 1
    BAR = opts.get("bar", 5)
    for m in range(PD):
        rd(m)
    p(f"v_mov_b32 {vBAD}, 0")
    if ph == 4:
        p(f"s_lshl_b32 {sT0}, {sW}, 10")
        p(f"s_add_u32 {sT0}, {sT0}, {L_ST}")
        p(f"v_add_u32 v{TMP}, {sT0}, {vLN}")
        p(f"ds_read_b128 {vr(PH,4)}, v{TMP}")
    F = Filler(p)
    n = opts.get(f"ng{ph}", opts.get("ng", 22))
    F.add(BAR + 1, 43, [nxt.pop(0) for _ in range(min(n, len(nxt)))])
    F.add(0, 24, residual_ops(ph))
    if ph == 5:
        F.add(25, 43, mean_ops())
    if ph == 4:
        sc = stats_consume(L_ST)
        k = sc.index(None)
        F.add(10, 15, sc[:k])
        F.add(22, 43, [o for o in sc[k:] if o])
    issued = PD
    for m in range(45):
        d = BF + 4 * (m % NBF)
        if m % 2 == 0 and m + 1 < issued:
            p.wait_regs(vr(BF + 4 * ((m + 1) % NBF), 4))
        acc = vr(ACCH if m < 9 else ACC, 16)
        p(f"v_mfma_f32_32x32x16_bf16 {acc}, {wreg(ph, m)}, {vr(d,4)}, {'0' if m in (0, 9) else acc}")
        for mm in ([m] if m < BAR else (range(BAR, 9) if m == BAR else [])):
            dd = BF + 4 * (mm % NBF)
            if mm == 8 or (ph == 3 and mm >= 5):
                p(f"v_max3_u32 {vBAD}, v{dd}, v{dd+1}, {vBAD}")
                p(f"v_max3_u32 {vBAD}, v{dd+2}, v{dd+3}, {vBAD}")
            else:
                p(f"v_max_u32 {vBAD}, v{dd}, {vBAD}")
        if m == BAR:
            if ph == 4:
                p(f"v_max3_u32 {vBAD}, v{PH}, v{PH+2}, {vBAD}")
            redo_if_poison(p, vBAD, again, sRC)
            p("s_barrier")
            st(p, f"b{ph}")
        while issued <= min(m + PD, 44) and (issued < 9 or m >= BAR):
            rd(issued)
            issued += 1
        if m == 14:
            half_exchange(p, ACCH, 5 if ph == 5 else 4)
        if m == 19:
            p.wait_lg("hx")
            p("s_barrier")
            half_collect_reads(p, ph)
        if m == 24:
            half_sum(p, f"v{ACCH}", f"v{ACCH+1}")
        F.gap(m)
    assert F.done()
    if ph == 5:
        p.wait_vm("st0")
    p("s_barrier")


GK = 2.0 * 0.7978845608028654 * 1.4426950408889634


def gelu_ops(x, t, ca, cb, cc=None):
    return [f"v_mul_f32 {t}, {x}, {x}", f"v_fma_f32 {t}, {t}, {cb}, {ca}", f"v_mul_f32 {t}, {t}, {x}",
            f"v_exp_f32 {t}, {t}", f"v_fma_f32 {t}, {t}, {cc}, {cc}" if cc else f"v_add_f32 {t}, 1.0, {t}",
            f"v_rcp_f32 {t}, {t}", f"v_mul_f32 {x}, {x}, {t}"]


def interleave(lists):
    out = []
    for k in range(max(len(l) for l in lists)):
        for l in lists:
            if k < len(l):
                out.append(l[k])
    return out


def x_residual_loads(p):
    srd(p, R_B, S_X, 2048 * 1152)
    p(f"v_and_b32 v{TMP}, 31, v1")
    p(f"v_mul_u32_u24 v{TMP}, 1152, v{TMP}")
    p(f"v_lshrrev_b32 v{TMP+1}, 5, v1")
    p(f"v_lshl_add_u32 v{TMP}, v{TMP+1}, 4, v{TMP}")
    p(f"s_mul_i32 {sT0}, {sT}, 36864")
    p(f"s_mul_i32 {sT1}, {sG}, 288")
    p(f"s_add_u32 {sT0}, {sT0}, {sT1}")
    p(f"s_lshl_b32 {sT1}, {sW}, 6")
    p(f"s_add_u32 {sT1}, {sT1}, {sT0}")
    p(f"buffer_load_dwordx4 {vr(XR,4)}, v{TMP}, {RB}, {sT1} offen")
    p(f"buffer_load_dwordx4 {vr(XR+4,4)}, v{TMP}, {RB}, {sT1} offen offset:32")
    p(f"s_lshl_b32 {sT1}, {sW}, 2")
    p(f"s_add_u32 {sT1}, {sT1}, {sT0}")
    p(f"buffer_load_dword v{XR+8}, v{TMP}, {RB}, {sT1} offen offset:256")


def epilogue(p, ph, nxt, opts):
    vals = [f"v{ACC+k}" for k in range(16)] + [f"v{ACCH}", f"v{ACCH+1}"]
    dst = HK if ph == 3 else XR
    buf = {3: HB, 4: H1, 5: X1}[ph]
    p(f"s_mul_i32 {sT0}, {sT}, 36")
    p(f"s_mul_i32 {sT1}, {sG}, 9")
    p(f"s_add_u32 {sT0}, {sT0}, {sT1}")
    p(f"s_lshl_b32 {sT0}, {sT0}, 10")
    p(f"s_add_u32 {sT0}, {sT0}, {hx(buf)}")
    p(f"s_lshl_b32 {sT1}, {sW}, 11")
    p(f"s_lshl_b32 {sC}, {sW}, 2")
    p(f"s_add_u32 {sT1}, {sT1}, {sT0}")
    p(f"s_add_u32 {sC}, {sC}, {sT0}")
    p(f"s_add_u32 {sC}, {sC}, 8192")
    groups = [(16, 18), (0, 8), (8, 16)]
    stores = [f"buffer_store_dword v{dst+8}, {vLN}, {WS}, {sC} offen sc1",
              f"buffer_store_dwordx4 {vr(dst,4)}, {vLN}, {WS}, {sT1} offen sc1",
              f"buffer_store_dwordx4 {vr(dst+4,4)}, {vLN}, {WS}, {sT1} offen offset:1024 sc1"]
    if ph == 4:
        cs = [f"v{CS+k}" for k in range(16)] + [f"v{CSH2}", f"v{CSH2+1}"]
        p(f"v_mov_b32 v{TMP}, {hx(f2u(-GK))}")
        p(f"v_mov_b32 v{TMP+1}, {hx(f2u(-GK*0.044715))}")
        p(f"v_mov_b32 v{TMP+2}, {vMU}")
        p(f"v_mov_b32 v{TMP+3}, {vR12}")
        p(f"v_mov_b32 v{TMP+4}, 1.0")
    for (k0, k1), st_ in zip(groups, stores):
        if ph == 4:
            for q in range(k0, k1, 4):
                if opts.get("pkepi", 1):
                    ops = []
                    for k in range(q, min(q + 4, k1), 2):
                        x = vr(int(vals[k][1:]), 2)
                        c = vr(int(cs[k][1:]), 2)
                        t, t0, t1 = vr(BF + k, 2), f"v{BF+k}", f"v{BF+k+1}"
                        ops.append([f"v_pk_fma_f32 {x}, {c}, {vr(TMP+2,2)}, {x} op_sel_hi:[1,0,1]",
                                    f"v_pk_mul_f32 {x}, {x}, {vr(TMP+2,2)} op_sel:[0,1] op_sel_hi:[1,1]",
                                    f"v_pk_mul_f32 {t}, {x}, {x}",
                                    f"v_pk_fma_f32 {t}, {t}, {vr(TMP,2)}, {vr(TMP,2)} op_sel:[0,1,0] op_sel_hi:[1,1,0]",
                                    f"v_pk_mul_f32 {t}, {t}, {x}", f"v_exp_f32 {t0}, {t0}", f"v_exp_f32 {t1}, {t1}",
                                    f"v_pk_add_f32 {t}, {t}, {vr(TMP+4,2)} op_sel_hi:[1,0]",
                                    f"v_rcp_f32 {t0}, {t0}", f"v_rcp_f32 {t1}, {t1}", f"v_pk_mul_f32 {x}, {x}, {t}"])
                    for o in interleave(ops):
                        p(o)
                    emit_some(p, nxt, opts.get("ne", 2))
                    continue
                ops = [[f"v_fma_f32 {vals[k]}, {cs[k]}, {vMU}, {vals[k]}", f"v_mul_f32 {vals[k]}, {vals[k]}, {vR12}"]
                       + gelu_ops(vals[k], f"v{BF+k}", f"v{TMP}", f"v{TMP+1}") for k in range(q, min(q + 4, k1))]
                for o in interleave(ops):
                    p(o)
                emit_some(p, nxt, opts.get("ne", 2))
        else:
            for k in range(k0, k1):
                p(f"v_add_f32 {vals[k]}, {vals[k]}, v{CS+k}")
        for k in range(k0 // 2, k1 // 2):
            p(f"v_cvt_pk_bf16_f32 v{dst+k}, {vals[2*k]}, {vals[2*k+1]}")
        p(f"v_min_u32 v{dst+k0//2}, {CLEAN}, v{dst+k0//2}")
        hand_store(p, st_, tag="out", dup=ph != 5)
    if ph in (3, 5):
        S, Q, S2, Q2 = f"v{TMP+2}", f"v{TMP+3}", f"v{TMP+4}", f"v{TMP+5}"
        p(f"v_mul_f32 {Q}, {vals[0]}, {vals[0]}")
        p(f"v_mul_f32 {Q2}, {vals[1]}, {vals[1]}")
        if ph == 3:
            p(f"v_add_f32 {S}, {vals[0]}, {vals[1]}")
        for k in range(2, 18):
            if ph == 3:
                p(f"v_add_f32 {S}, {S}, {vals[k]}")
            p(f"v_fmac_f32 {(Q, Q2)[k & 1]}, {vals[k]}, {vals[k]}")
        p(f"v_add_f32 {Q}, {Q}, {Q2}")
        if ph == 3:
            p(f"v_mov_b32 {S2}, {S}")
        p(f"v_mov_b32 {Q2}, {Q}")
        p(f"v_lshlrev_b32 v{TMP}, 3, v1")
        p(f"s_lshl_b32 {sT0}, {sT}, 4")
        if ph == 3:
            p(f"v_permlane32_swap_b32 {S}, {S2}")
        p(f"v_permlane32_swap_b32 {Q}, {Q2}")
        p(f"s_lshl_b32 {sT1}, {sG}, 2")
        p(f"s_add_u32 {sT0}, {sT0}, {sT1}")
        p(f"s_add_u32 {sT0}, {sT0}, {sW}")
        p(f"s_lshl_b32 {sT0}, {sT0}, 8")
        p(f"s_add_u32 {sT0}, {sT0}, {hx(ST3 if ph == 3 else ST5)}")
        if ph == 3:
            p(f"v_add_f32 {S}, {S}, {S2}")
        p(f"v_add_f32 {Q}, {Q}, {Q2}")
        p(f"v_min_u32 {S}, {CLEAN}, {S if ph == 3 else vMU5}")
        p("s_mov_b32 exec_hi, 0")
        hand_store(p, f"buffer_store_dwordx2 {vr(TMP+2,2)}, v{TMP}, {WS}, {sT0} offen sc1", tag="out", dup=ph != 5)
        p("s_mov_b64 exec, -1")


def sg_phase(p, st, ph, opts, left, nxt):
    emit_some(p, left, 99)
    if ph == 3:
        x_residual_loads(p)
        p(f"s_mul_i32 {sT0}, {sW}, 9216")
        p(f"s_add_u32 {sT0}, {sT0}, {L_B}")
        p(f"v_add_u32 {vBQ}, {sT0}, {vLN}")
        p(f"v_add_u32 {vBB}, {L_B}, {vLN}")
    ex = poll_addr(p, ph)
    b_src(p, ph)
    p(f"s_mov_b32 {sRC}, 0")
    if ph == 4:
        colsum_loads(p)
    st(p, f"p{ph-1}")
    sent = lambda: p(f"buffer_load_dword v{TMP}, {vPL}, {WS}, 0 offen sc1")
    again, go = p.label("again"), p.label("go")
    if opts.get("opt", 0):
        p(f"v_mov_b32 v{TMP}, 0")
        for o in ex:
            p(o)
        sent()
        p("s_mov_b64 exec, -1")
        b_dma(p, ph)
        emit_some(p, nxt, opts.get(f"nb{ph}", opts.get("nb", 8)))
        p(f"v_cmp_eq_u32 vcc, -1, v{TMP}")
        p("s_nop 1")
        p(f"s_cbranch_vccz {go}")
        sd = p.side_begin()
        for o in ex:
            p(o)
        poll_data(p, sent, f"v{TMP}")
        p("s_mov_b64 exec, -1")
        p(f"{again}:")
        b_dma(p, ph)
        p("s_waitcnt vmcnt(0)")
        p.side_end(sd)
        p(f"{go}:")
        st(p, f"f{ph}")
    else:
        for o in ex:
            p(o)
        poll_data(p, sent, f"v{TMP}")
        p("s_mov_b64 exec, -1")
        st(p, f"f{ph}")
        p(f"{again}:")
        b_dma(p, ph)
        emit_some(p, nxt, opts.get(f"nb{ph}", opts.get("nb", 8)))
    p.wait_vm("b")
    gemm(p, ph, nxt, opts, st, again)
    st(p, f"g{ph}")
    epilogue(p, ph, nxt, opts)
    st(p, f"e{ph}")
```

```python
import sys, os
sys.path.insert(0, os.path.dirname(os.path.abspath(__file__)))
from common import *
from pf import weight_prefetch, packed_prefetch, w3_first_lines
import p1

HEADER = open(os.path.join(os.path.dirname(os.path.abspath(__file__)), "header.txt")).read()


def late_p1(p, opts):
    p("v_lshlrev_b32 v126, 2, v1")
    p(f"s_cmp_eq_u32 {sW}, 0")
    p(f"s_cselect_b32 s69, 0, {hx(OOB)}")
    p("s_mov_b32 exec_hi, 0")
    p(f"buffer_load_dword v127, v126, {RC}, s69 offen sc1")
    p("s_mov_b64 exec, -1")
    weight_prefetch(p, opts, opts.get("pf1", ""), V=144, R=R_B)


def check_cleared(p):
    ok = p.label("clr")
    p("v_cmp_gt_u32 vcc, 1, v127")
    p("s_cmp_eq_u32 vcc_lo, 0")
    p(f"s_cbranch_scc1 {ok}")
    s = p.side_begin()
    poll(p, "v126", "v127", 32, srd_=RC)
    p.side_end(s)
    p(f"{ok}:")


def code_prefetch(p, opts):
    if not opts.get("pf", 1):
        return
    pc = p.label("pc")
    p("s_getpc_b64 s[0:1]")
    p(f"{pc}:")
    p(f"s_sub_u32 s0, s0, {pc}-{KNAME}")
    p("s_subb_u32 s1, s1, 0")
    p("v_and_b32 v126, 31, v0")
    p(f"v_lshl_add_u32 v126, v126, 5, {sL}")
    p("v_lshlrev_b32 v126, 7, v126")
    p(f"v_min_u32 v126, L_end-{KNAME}, v126")
    p("global_load_dword v127, v126, s[0:1]")


def gen(stop=99, stamps=False, opts=None):
    opts = opts or {}
    p = Prog()
    import sched
    sched.MODE[0] = opts.get('sched', 'mix')
    DUP[0] = opts.get('dup', 0)
    SLEEP[0] = opts.get('sleep', 0)
    st = Stamps(stamps, opts.get('only'))
    END = "L_end"
    p(f"{KNAME}:")
    for _ in range(opts.get("shift", 0)):
        p("s_nop 0")
    p("s_cmp_ge_u32 s2, 256")
    p(f"s_cbranch_scc1 {END}")
    p("s_load_dwordx16 s[4:19], s[0:1], 0")
    p("s_load_dwordx4 s[20:23], s[0:1], 64")
    p("s_load_dwordx2 s[24:25], s[0:1], 80")
    st(p, "start")
    p("v_and_b32 v1, 63, v0")
    p("v_lshrrev_b32 v2, 6, v0")
    p(f"s_and_b32 {sX}, s2, 7")
    p(f"v_readfirstlane_b32 {sW}, v2")
    p(f"s_lshr_b32 {sL}, s2, 3")
    p(f"s_mov_b32 {sONE}, {hx(ONES)}")
    p1.p1_ids(p)
    p1.p1_dma_addr(p)
    import p2, sg
    p2.p2_ids(p)
    sg.sg_ids(p)
    st(p, "preK")
    p("s_waitcnt lgkmcnt(0)")
    st(p, "karg")
    srd(p, R_B, S_X, 2048 * 1152)
    srd(p, R_A, S_WQKV, 576 * 3456)
    srd(p, R_WS, S_WS, WS_REC)
    srd(p, R_C, S_DBG, 256)
    import p2, sg, p6, prep
    if opts.get("probe"):
        p("s_getreg_b32 s70, hwreg(20, 0, 4)")
        p("s_sub_u32 s70, s70, s2")
        p("s_and_b32 s70, s70, 7")
        p("s_add_u32 s70, s70, 1")
        p("v_mov_b32 v144, s70")
        p("s_lshl_b32 s72, s2, 7")
        p("v_mov_b32 v145, s72")
        p(f"s_mov_b32 s71, {hx(STAMP)}")
        p(f"s_cmp_eq_u32 {sW}, 0")
        p(f"s_cselect_b32 s72, s71, {hx(OOB)}")
        p("s_mov_b64 exec, 1")
        p(f"buffer_store_dword v144, v145, {WS}, s72 offen sc1")
        p("s_mov_b64 exec, -1")
    ACT = "L_act"
    IDLE, COMMON, IDLE2, NOPREP, P1V, P1DONE, P2 = ("L_idle", "L_common", "L_idle2", "L_noprep", "L_p1v", "L_p1done",
                                                    "L_p2")
    p(f"s_cmp_ge_u32 {sL}, 28")
    p(f"s_cbranch_scc1 {IDLE}")
    outer = p.side_begin()
    n1st, n2nd = opts.get("first", 2), opts.get("second", 0)
    for c in range(n1st):
        p1.emit_dma(p, c)
        if c == 0:
            st(p, "iss0")
            code_prefetch(p, opts)
    st(p, "iss1")
    p(f"s_branch {ACT}")
    p(f"{IDLE}:")
    side = p.side_begin()
    code_prefetch(p, opts)
    p(f"s_sub_u32 {prep.sQ}, {sL}, 28")
    p(f"s_lshl_b32 {prep.sQ}, {prep.sQ}, 3")
    p(f"s_add_u32 {prep.sQ}, {prep.sQ}, {sX}")
    p(f"s_cmp_ge_u32 {prep.sQ}, {prep.NPREP}")
    p(f"s_cbranch_scc1 {COMMON}")
    prep.prep_issue(p)
    st(p, "prepiss")
    p.loose_end(side)
    p(f"{COMMON}:")
    s3 = p.side_begin()
    p2.p2_setup(p)
    p.side_end(s3)
    p(f"s_branch {IDLE2}")
    p(f"{ACT}:")
    st(p, "setup")
    for c in range(n1st, n1st + n2nd):
        p1.emit_dma(p, c)
    if opts.get("poi0") == -1:
        for o in sg.poison_ops(92, sg.vLN):
            p(o)
    p(f"s_cmp_ge_u32 {p1.sJ}, 9")
    p(f"s_cbranch_scc1 {P1V}")
    s2 = p.side_begin()
    p1.p1_read_addr(p, False)
    n0 = len(st.names)
    p1.p1_main(p, False, st, n1st + n2nd, opts, lambda p: late_p1(p, opts))
    st(p, "p1main")
    p1.p1_epilogue(p, False)
    st(p, "p1epi")
    p.loose_end(s2)
    p(f"s_branch {P1DONE}")
    p(f"{P1V}:")
    p1.p1_read_addr(p, True)
    del st.names[n0:]
    p1.p1_main(p, True, st, n1st + n2nd, opts, lambda p: late_p1(p, opts))
    st(p, "p1main")
    p1.p1_epilogue(p, True)
    st(p, "p1epi")
    p(f"{P1DONE}:")
    p2.p2_setup(p)
    p("s_waitcnt vmcnt(0)")
    p("s_barrier")
    st(p, "p1stored")
    p(f"s_cmp_lg_u32 {sW}, 0")
    p(f"s_cbranch_scc1 {P2}")
    check_cleared(p)
    p(f"s_mul_i32 s53, {p1.sI}, {FS}")
    p(f"s_lshl_b32 s54, {p1.sJ}, 3")
    p(f"s_add_u32 s53, s53, s54")
    p(f"s_add_u32 s53, s53, {hx(F1)}")
    set_flag(p, "v126", "v127", "s53")
    p(f"s_branch {P2}")
    p.side_end(outer)
    p(f"{IDLE2}:")
    side = p.side_begin()

    def announce(off):
        p("s_waitcnt vmcnt(0)")
        p("s_barrier")
        p(f"s_lshl_b32 s53, {prep.sQ}, 2")
        p("v_mov_b32 v96, 0")
        p("v_mov_b32 v97, 1")
        p(f"s_cmp_eq_u32 {sW}, 0")
        p(f"s_cselect_b32 s53, s53, {hx(OOB)}")
        p("s_mov_b64 exec, 1")
        p(f"buffer_store_dword v97, v96, {RC}, s53 offen offset:{off} sc1")
        p("s_mov_b64 exec, -1")

    p(f"s_lshl_b32 s54, {prep.sQ}, 12")
    p(f"s_add_u32 s54, s54, {hx(F7)}")
    p("v_lshlrev_b32 v96, 4, v0")
    for k in range(4):
        p(f"v_mov_b32 v{100+k}, 0")
    p(f"buffer_store_dwordx4 v[100:103], v96, {WS}, s54 offen sc1")
    p("v_lshrrev_b32 v97, 5, v0")
    p(f"v_mul_u32_u24 v97, {FS}, v97")
    p("v_and_b32 v98, 31, v0")
    p("v_lshl_add_u32 v97, v98, 2, v97")
    p(f"s_mul_i32 s54, {prep.sQ}, {8*FS}")
    p(f"s_add_u32 s54, s54, {hx(FB)}")
    p(f"buffer_store_dword v100, v97, {WS}, s54 offen sc1")
    for o in sg.poison_ops(104, sg.vLN):
        p(o)
    announce(0)
    st(p, "ann1")
    p(f"s_cmp_ge_u32 {prep.sQ}, {prep.NPREP}")
    p(f"s_cbranch_scc1 {NOPREP}")
    prep.prep_finish(p, st)
    p(f"s_cmp_eq_u32 {prep.sMAT}, 2")
    p("s_cbranch_scc1 L_w2")
    s4 = p.side_begin()
    for o in prep.full_stores():
        p(o)
    p.loose_end(s4)
    p("s_branch L_half")
    p("L_w2:")
    prep.row_means(p, prep.full_stores())
    p("L_half:")
    p("s_waitcnt lgkmcnt(0)")
    prep.half_stores(p)
    p("s_branch L_packed")
    p(f"{NOPREP}:")
    prep.w1_colsums(p)
    p("L_packed:")
    announce(128)
    st(p, "ann2")
    if opts.get("warm3", 1):
        n1, n2 = opts.get("warm_a", 8), opts.get("warm_b", 72)
        FREE = p.label("free")
        p(f"s_cmp_ge_u32 {prep.sQ}, {prep.NPREP}")
        p(f"s_cbranch_scc1 {FREE}")
        p(f"s_mul_i32 s56, {prep.sQ}, {n1}")
        prep.w3_warm(p, "s56", n1)
        p(f"s_branch L_warmed")
        p(f"{FREE}:")
        p(f"s_sub_u32 s56, {prep.sQ}, {prep.NPREP}")
        p(f"s_mul_i32 s56, s56, {n2}")
        p(f"s_add_u32 s56, s56, {prep.NPREP*n1}")
        prep.w3_warm(p, "s56", n2)
        p("L_warmed:")
    if opts.get("w3f"):
        for o in w3_first_lines(144, R_B):
            p(o)
    late_p1(p, opts)
    p("s_waitcnt vmcnt(0)")
    st(p, "warmed")
    p(f"s_cmp_lg_u32 {sW}, 0")
    p(f"s_cbranch_scc1 {P2}")
    check_cleared(p)
    p.side_end(side)
    p(f"{P2}:")
    pf = lambda which: (lambda p: weight_prefetch(p, opts, which, V=16))
    p6.ROT[0] = opts.get("rot", 0)
    p6.GX[0] = opts.get("gx", 8)
    w3, w4, w5, w6 = sg.w_loads(3), sg.w_loads(4), sg.w_loads(5), p6.prefill_ops()
    for lst, key, dflt in ((w4, "pfb3", ""), (w5, "pfb4", ""), (w6, "pfb5", "")):
        r = p6.Rec()
        weight_prefetch(r, opts, opts.get(key, dflt), V=24)
        if r.ops:
            lst.insert(0, "\n".join(r.ops))
    p2.p2(p, st, opts, w3)
    sg.sg_phase(p, st, 3, opts, w3, w4)
    sg.sg_phase(p, st, 4, opts, w4, w5)
    sg.sg_phase(p, st, 5, opts, w5, w6)
    p6.p6(p, st, opts, w6)
    if opts.get("probe"):
        p("v_lshlrev_b32 v10, 7, v0")
        p(f"buffer_load_dword v11, v10, {WS}, s71 offen sc1")
        p("v_cmp_ne_u32 vcc, s70, v11")
        p("s_nop 1")
        p("s_cbranch_vccz L_nodelay")
        p("s_mov_b32 s72, 0")
        p("L_delay:")
        p("s_sleep 16")
        p("s_add_u32 s72, s72, 1")
        p("s_cmp_lt_u32 s72, 100")
        p("s_cbranch_scc1 L_delay")
        p("L_nodelay:")
    st(p, "end")
    if opts.get("enc"):
        k = len(st.names) - 1
        p("s_waitcnt lgkmcnt(0)")
        if k:
            p(f"s_cmp_eq_u32 s{70+2*k}, 0")
            p(f"s_cselect_b32 s70, s70, s{70+2*k}")
        p("s_add_u32 s70, s70, 10000")
        p("s_mov_b32 s74, 0")
        p("L_enc:")
        p("s_memrealtime s[72:73]")
        p("s_add_u32 s74, s74, 1")
        p("s_cmp_gt_u32 s74, 100000")
        p("s_cbranch_scc1 L_end")
        p("s_waitcnt lgkmcnt(0)")
        p("s_sub_u32 s72, s72, s70")
        p("s_cmp_lt_i32 s72, 0")
        p("s_cbranch_scc1 L_enc")
    else:
        st.flush(p)
    p(f"{END}:")
    p("s_endpgm")
    body = p.text()
    head = HEADER + f"; @launch grid=(256,1,1) block=(256,1,1) lds={LDS_BYTES}\n"
    head += f'.amdgcn_target "amdgcn-amd-amdhsa--gfx950"\n.text\n.globl {KNAME}\n.p2align 8\n.type {KNAME},@function\n'
    tail = f""".section .rodata,"a"
.p2align 6
.amdhsa_kernel {KNAME}
  .amdhsa_next_free_vgpr 512
  .amdhsa_next_free_sgpr 102
  .amdhsa_accum_offset 256
  .amdhsa_group_segment_fixed_size 0
  .amdhsa_kernarg_size 88
  .amdhsa_user_sgpr_count 2
  .amdhsa_user_sgpr_kernarg_segment_ptr 1
  .amdhsa_system_sgpr_workgroup_id_x 1
  .amdhsa_float_denorm_mode_32 3
.end_amdhsa_kernel
"""
    return head + body + tail, st.names, p


if __name__ == "__main__":
    import argparse, json
    ap = argparse.ArgumentParser()
    ap.add_argument("-o", default="k.s")
    ap.add_argument("--stop", type=int, default=99)
    ap.add_argument("--stamps", type=int, default=0)
    ap.add_argument("--opts", default="{}")
    ap.add_argument("--note", action="store_true")
    a = ap.parse_args()
    txt, names, p = gen(a.stop, a.stamps, json.loads(a.opts))
    if names:
        txt = txt.replace("; @launch", f"; stampmode: {a.stamps}\n; stamps: " + ",".join(names) + "\n; @launch", 1)
    if a.stamps or a.note:
        o = {k: v for k, v in json.loads(a.opts).items() if k != "only"}
        txt = txt.replace("; @launch", f"; opts: {json.dumps(o)}\n; @launch", 1)
    open(a.o, "w").write(txt)
    print(f"wrote {a.o}: {len(txt)} bytes, {len(p.out)} lines, {p.nnop} nops, {p.nwait_auto} auto waits; stamps {names}")
```

```python
from asmgen import *
import struct


def f2u(x):
    return struct.unpack("<I", struct.pack("<f", x))[0]


def hx(x):
    return f"0x{x & 0xffffffff:x}"


KNAME = "sequential_preLN__sliding_block__mixer_s_mlp__prompt_kernel"

import os
FS = int(os.environ.get("FS", 1152))
FB = 0x1A00000
F1, F2, F5, F3, F4, F6 = [FB + k * FS for k in (0, 16, 48, 64, 128, 192)]
F7 = 0x1C00000
QK = 0x100000
VT = 0x600000
OB = 0x900000
HB = 0xC00000
H1 = 0xF00000
X1 = 0x1200000
ST3 = 0x1500000
ST5 = 0x1580000
STAMP = 0x1600000
WP = 0x1700000
CSP = 0x1980000
PART = 0x2000000
WS_REC = 0x8000000
OOB = 0x8000000

LDS_BYTES = 163840

S_X, S_WQKV, S_WO, S_BX, S_W1, S_W2, S_W3, S_W4, S_OUT, S_DBG, S_WS = 4, 6, 8, 10, 12, 14, 16, 18, 20, 22, 24
R_WS, R_A, R_B, R_C = 28, 32, 36, 40
WS, RA, RB, RC = "s[28:31]", "s[32:35]", "s[36:39]", "s[40:43]"
sX, sL, sW = "s44", "s45", "s46"
sONE = "s47"
SPIN_MAX = 400000
SLEEP = [0]

ONES = 0x3F803F80
EPS = 1e-5


def srd(p, r, ptr, nbytes):
    p(f"s_mov_b32 s{r}, s{ptr}")
    p(f"s_mov_b32 s{r+1}, s{ptr+1}")
    p(f"s_mov_b32 s{r+2}, {hx(nbytes)}")
    p(f"s_mov_b32 s{r+3}, 0x20000")


def xhalf(p, op, a, t):
    p(f"v_mov_b32 {t}, {a}")
    p(f"v_permlane32_swap_b32 {a}, {t}")
    p(f"{op} {a}, {a}, {t}")


class Stamps:
    def __init__(self, on, only=None):
        self.on = on
        self.names = []
        self.only = only

    def __call__(self, p, name):
        if not self.on or (self.only and name != "start" and name not in self.only):
            return
        k = len(self.names)
        assert k < 16
        self.names.append(name)
        if k == 0:
            for q in range(1, 16):
                p(f"s_mov_b32 s{70+2*q}, 0")
        p(f"{'s_memtime' if self.on == 2 else 's_memrealtime'} s[{70+2*k}:{71+2*k}]")

    def flush(self, p):
        if not self.on:
            return
        p("s_waitcnt lgkmcnt(0)")
        p("v_mov_b32 v2, 0")
        for k in range(len(self.names)):
            p(f"v_writelane_b32 v2, s{70+2*k}, {k}")
        p("v_and_b32 v3, 63, v0")
        p("v_lshlrev_b32 v3, 2, v3")
        p(f"s_lshl_b32 s48, s2, 2")
        p(f"s_add_u32 s48, s48, {sW}")
        p(f"s_lshl_b32 s48, s48, 6")
        p(f"s_add_u32 s48, s48, {hx(STAMP)}")
        p("s_mov_b64 exec, 0xffff")
        p(f"buffer_store_dword v2, v3, {WS}, s48 offen")
        p("s_mov_b64 exec, -1")


def set_flag(p, vaddr_tmp, vdata_tmp, s_off, val=1):
    p(f"v_mov_b32 {vaddr_tmp}, 0")
    p(f"v_mov_b32 {vdata_tmp}, {val}")
    p("s_mov_b64 exec, 1")
    p(f"buffer_store_dword {vdata_tmp}, {vaddr_tmp}, {WS}, {s_off} offen sc1")
    p("s_mov_b64 exec, -1")


def poll(p, vaddr, vtmp, nlanes, val=1, srd_=WS, scnt="s69"):
    lp, out = p.label("poll"), p.label("pollout")
    mask = (1 << nlanes) - 1
    if nlanes <= 32:
        p(f"s_mov_b32 exec_lo, {hx(mask)}")
        p("s_mov_b32 exec_hi, 0")
    else:
        p(f"s_mov_b32 exec_hi, {hx(mask >> 32)}")
    p(f"s_mov_b32 {scnt}, 0")
    p(f"{lp}:")
    p(f"buffer_load_dword {vtmp}, {vaddr}, {srd_}, 0 offen sc1")
    p(f"s_add_u32 {scnt}, {scnt}, 1")
    p(f"s_cmp_gt_u32 {scnt}, {SPIN_MAX}")
    p("s_waitcnt vmcnt(0)")
    p(f"s_cbranch_scc1 {out}")
    p(f"v_cmp_gt_u32 vcc, {val}, {vtmp}")
    if SLEEP[0]:
        p(f"s_cbranch_vccz {out}")
        p(f"s_sleep {SLEEP[0]}")
        p(f"s_branch {lp}")
    else:
        p("s_nop 1")
        p(f"s_cbranch_vccnz {lp}")
    p(f"{out}:")
    p("s_mov_b64 exec, -1")


def poll_data(p, load, vtmp, scnt="s69", multi=None):
    lp, out = p.label("pd"), p.label("pdout")
    p(f"s_mov_b32 {scnt}, 0")
    p(f"{lp}:")
    load()
    p(f"s_add_u32 {scnt}, {scnt}, 1")
    p(f"s_cmp_gt_u32 {scnt}, {SPIN_MAX}")
    p("s_waitcnt vmcnt(0)")
    p(f"s_cbranch_scc1 {out}")
    if multi:
        multi()
    p(f"v_cmp_eq_u32 vcc, -1, {vtmp}")
    p("s_nop 1")
    p(f"s_cbranch_vccnz {lp}")
    p(f"{out}:")


def redo_if_poison(p, vbad, label, scnt):
    ok = p.label("good")
    p(f"v_cmp_eq_u32 vcc, -1, {vbad}")
    p("s_nop 1")
    p(f"s_cbranch_vccz {ok}")
    s = p.side_begin()
    p(f"s_add_u32 {scnt}, {scnt}, 1")
    p(f"s_cmp_gt_u32 {scnt}, {SPIN_MAX}")
    p(f"s_cbranch_scc1 {ok}")
    p("s_waitcnt vmcnt(0) lgkmcnt(0)")
    p("s_nop 15")
    p(f"s_branch {label}")
    p.side_end(s)
    p(f"{ok}:")


CLEAN = "0xfffffffe"


DUP = [0]


def hand_store(p, text, tag=None, dup=True):
    if DUP[0] == 2 and dup:
        p(text.replace(" sc1", ""))
    p(text, tag=tag)
    if DUP[0] == 1 and dup:
        p(text.replace(" sc1", ""))
```

```python
from common import *
from pf import scalar_prefetch

sB, sU, sH, sG0, sO2, sT0, sT1, sKO, sVO = "s57", "s58", "s59", "s60", "s61", "s53", "s54", "s55", "s56"
sA, sB2 = "s62", "s63"
KA, VA = 0, 80
vLN, vV0, vV1, vPL = "v2", "v3", "v4", "v5"
QF = 16
CD, CO = 32, 48
SB = 64
PB = 96
OA = 112
vM0, vM1 = "v10", "v11"
HI = "0xffffffff00000000"
NEG_INF = 0xFF800000


def exec_lo(p):
    p("s_mov_b32 exec_hi, 0")


def exec_hi(p):
    p("s_mov_b64 exec, -1")
    p("s_mov_b32 exec_lo, 0")


def exec_all(p):
    p("s_mov_b64 exec, -1")


def p2_ids(p):
    p(f"s_and_b32 {sB}, {sL}, 3")
    p(f"s_lshl_b32 {sT0}, {sX}, 2")
    p(f"s_add_u32 {sB}, {sB}, {sT0}")
    p(f"s_lshr_b32 {sU}, {sL}, 2")
    p(f"s_lshl_b32 {sH}, {sU}, 2")
    p(f"s_add_u32 {sH}, {sH}, {sW}")
    p(f"s_mul_i32 {sG0}, {sH}, 18")
    p(f"s_lshr_b32 {sG0}, {sG0}, 3")
    p(f"s_and_b32 {sO2}, {sH}, 3")
    p(f"v_lshlrev_b32 {vLN}, 4, v1")


def p2_setup(p):
    p("v_and_b32 v6, 0x13, v1")
    p("v_bfe_u32 v7, v1, 2, 1")
    p("v_lshl_add_u32 v6, v7, 3, v6")
    p("v_bfe_u32 v7, v1, 3, 1")
    p("v_lshl_add_u32 v6, v7, 2, v6")
    p("v_lshrrev_b32 v7, 5, v1")
    p("v_lshlrev_b32 v8, 4, v7")
    p(f"v_lshl_add_u32 {vV0}, v6, 5, v8")
    p(f"v_add_u32 {vV1}, 18432, {vV0}")
    p("v_and_b32 v6, 31, v1")
    p("v_lshlrev_b32 v7, 2, v7")
    p("v_sub_u32 v6, v6, v7")
    p(f"v_mov_b32 v8, {hx(NEG_INF)}")
    p("v_mov_b32 v9, 0")
    for r in range(16):
        c = 8 * (r // 4) + r % 4
        p(f"v_cmp_le_i32 vcc, {c}, v6")
        p(f"v_cndmask_b32 v{CD+r}, v8, v9, vcc")
        p(f"v_cndmask_b32 v{CO+r}, v9, v8, vcc")
    p("v_and_b32 v6, 27, v1")
    p("v_cmp_eq_u32 vcc, 18, v6")
    p(f"v_mov_b32 v7, {sONE}")
    p("v_cndmask_b32 v6, 0, v7, vcc")
    p("s_mov_b32 exec_lo, 0xfffc0000")
    p("s_mov_b32 exec_hi, 0xfffc0000")
    for r in range(80):
        p(f"v_accvgpr_write_b32 a{VA+r}, v6")
    exec_hi(p)
    p(f"s_lshl_b32 {sT0}, {sB}, 1")
    for k in range(10):
        p(f"s_cmp_ge_u32 {sT0}, {max(8-k,0)}")
        p(f"s_cselect_b32 {sT1}, 0x3f800000, 0x3f80ff80")
        p(f"v_accvgpr_write_b32 a{KA+8*k+4}, {sT1}")
        p(f"v_accvgpr_write_b32 a{KA+8*k+5}, {sONE}")
        p(f"v_accvgpr_write_b32 a{KA+8*k+6}, 0")
        p(f"v_accvgpr_write_b32 a{KA+8*k+7}, 0")
    for a in range(2):
        p(f"v_mov_b32 v{QF+8*a+4}, 0x3f80")
        for r in range(5, 8):
            p(f"v_mov_b32 v{QF+8*a+r}, 0")
    exec_all(p)
    p("v_mul_u32_u24 v6, 43, v1")
    p("v_lshrrev_b32 v6, 8, v6")
    p("v_mul_u32_u24 v7, 6, v6")
    p("v_sub_u32 v7, v1, v7")
    p(f"s_lshr_b32 {sT0}, {sB}, 1")
    p(f"v_sub_u32 v6, {sT0}, v6")
    p("v_max_i32 v6, 0, v6")
    p("v_lshrrev_b32 v8, 1, v7")
    p("v_mul_u32_u24 v8, 576, v8")
    p("v_and_b32 v7, 1, v7")
    p("v_mul_u32_u24 v7, 71, v7")
    p(f"s_mul_i32 {sT0}, {sU}, 72")
    p(f"v_add3_u32 v7, v7, v8, {sT0}")
    p("v_lshrrev_b32 v7, 7, v7")
    p("v_lshlrev_b32 v7, 3, v7")
    p(f"v_mul_u32_u24 v6, {FS}, v6")
    p(f"s_mov_b32 {sT0}, {hx(F1)}")
    p(f"v_add3_u32 {vPL}, v6, v7, {sT0}")


sQ0, sQ1 = "s48", "s49"


def load_bases(p):
    p(f"s_mul_i32 {sQ0}, {sB}, {2*144}")
    p(f"s_add_u32 {sQ0}, {sQ0}, {sG0}")
    p(f"s_lshl_b32 {sQ0}, {sQ0}, 9")
    p(f"s_add_u32 {sQ0}, {sQ0}, {hx(QK)}")
    p(f"s_add_u32 {sQ1}, {sQ0}, {144*512}")
    p(f"s_add_u32 {sKO}, {sQ0}, {hx(72*512 - 8*144*512)}")
    p(f"s_mul_i32 {sVO}, {sB}, {2*36864}")
    p(f"s_mul_i32 {sA}, {sH}, {18*32}")
    p(f"s_add_u32 {sVO}, {sVO}, {sA}")
    p(f"s_add_u32 {sVO}, {sVO}, {hx(VT - 8*36864)}")
    p(f"s_lshl_b32 {sB2}, {sB}, 1")


def qk_loads(p):
    def koff(k):
        p(f"s_add_u32 {sA}, {sKO}, {k*144*512}")
        if k < 8:
            p(f"s_cmp_ge_u32 {sB2}, {8-k}")
            p(f"s_cselect_b32 {sA}, {sA}, {hx(OOB)}")

    p(f"buffer_load_dwordx4 {vr(QF,4)}, {vLN}, {WS}, {sQ0} offen sc1")
    exec_lo(p)
    p(f"buffer_load_dwordx4 {vr(QF+4,4)}, {vLN}, {WS}, {sQ0} offen offset:1024 sc1")
    exec_all(p)
    for k in range(10):
        koff(k)
        p(f"buffer_load_dwordx4 {ar(KA+8*k,4)}, {vLN}, {WS}, {sA} offen sc1")
        exec_lo(p)
        p(f"buffer_load_dwordx4 {ar(KA+8*k+4,4)}, {vLN}, {WS}, {sA} offen offset:1024 sc1")
        exec_all(p)
        if k == 8:
            p(f"buffer_load_dwordx4 {vr(QF+8,4)}, {vLN}, {WS}, {sQ1} offen sc1")
            exec_lo(p)
            p(f"buffer_load_dwordx4 {vr(QF+12,4)}, {vLN}, {WS}, {sQ1} offen offset:1024 sc1")
            exec_all(p)


def v_loads():
    o = []
    for k in range(10):
        x = [f"s_add_u32 {sA}, {sVO}, {k*36864}"]
        if k < 8:
            x += [f"s_cmp_ge_u32 {sB2}, {8-k}", f"s_cselect_b32 {sA}, {sA}, {hx(OOB)}"]
        x += ["s_mov_b32 exec_lo, 0x3ffff", "s_mov_b32 exec_hi, 0x3ffff",
              f"buffer_load_dwordx4 {ar(VA+8*k,4)}, {vV0}, {WS}, {sA} offen sc1",
              f"buffer_load_dwordx4 {ar(VA+8*k+4,4)}, {vV1}, {WS}, {sA} offen sc1", "s_mov_b64 exec, -1"]
        o.append("\n".join(x))
    return o


def q_mask(p, a):
    q = QF + 8 * a
    exec_lo(p)
    for d in range(3):
        p(f"s_cmp_gt_u32 {sO2}, {d}")
        p(f"s_cselect_b32 {sT0}, 0, -1")
        p(f"v_and_b32 v{q+d}, {sT0}, v{q+d}")
    for d in range(1, 4):
        p(f"s_cmp_ge_u32 {sO2}, {d}")
        p(f"s_cselect_b32 {sT0}, -1, 0")
        p(f"v_and_b32 v{q+4+d}, {sT0}, v{q+4+d}")
    exec_all(p)


def s_mfmas(a, bi, buf=None):
    k = a + bi
    s = vr(SB + 16 * (bi & 1) if buf is None else buf, 16)
    c = vr(CO, 16) if bi == 0 else (vr(CD, 16) if bi == 8 else "0")
    q = QF + 8 * a
    return [f"v_mfma_f32_32x32x16_bf16 {s}, {ar(KA+8*k,4)}, {vr(q,4)}, {c}",
            f"v_mfma_f32_32x32x16_bf16 {s}, {ar(KA+8*k+4,4)}, {vr(q+4,4)}, {s}"]


def pass1(p, a, fill):
    for o in s_mfmas(a, 0):
        p(o)
    for bi in range(9):
        s = SB + 16 * (bi & 1)
        if bi < 8:
            for o in s_mfmas(a, bi + 1):
                p(o)
        if fill and (bi % 2 == 0 or ALL[0]):
            p(fill.pop(0))
        for k in range(8):
            m = vM0 if k % 2 == 0 else vM1
            if bi == 0 and k < 2:
                p(f"v_max_f32 {m}, v{s+2*k}, v{s+2*k+1}")
            else:
                p(f"v_max3_f32 {m}, v{s+2*k}, v{s+2*k+1}, {m}")
    finish_max(p, a)


def max_ops(s, first):
    o = []
    for k in range(8):
        m = vM0 if k % 2 == 0 else vM1
        o.append(f"v_max_f32 {m}, v{s+2*k}, v{s+2*k+1}" if first and k < 2
                 else f"v_max3_f32 {m}, v{s+2*k}, v{s+2*k+1}, {m}")
    return o


def finish_max(p, a):
    p(f"v_max_f32 {vM0}, {vM0}, {vM1}")
    xhalf(p, "v_max_f32", vM0, vM1)
    q = QF + 8 * a + 4
    p(f"v_sub_f32 {vM0}, 0, {vM0}")
    p(f"v_cvt_pk_bf16_f32 v12, {vM0}, {vM0}")
    p(f"v_and_b32 v12, 0xffff0000, v12")
    p(f"v_sub_f32 v13, {vM0}, v12")
    p(f"v_cvt_pk_bf16_f32 v14, v13, v13")
    p(f"v_and_b32 v14, 0xffff0000, v14")
    p(f"v_sub_f32 v14, v13, v14")
    exec_hi(p)
    p(f"v_or_b32 v{q}, 0x3f80, v12")
    p(f"v_cvt_pk_bf16_f32 v{q+1}, v13, v14")
    exec_all(p)


def pv_mfmas(a, bi):
    k = a + bi
    o = vr(OA + 16 * a, 16)
    pb = PB + 8 * (bi & 1)
    return [f"v_mfma_f32_32x32x16_bf16 {o}, {ar(VA+8*k,4)}, {vr(pb,4)}, {'0' if bi == 0 else o}",
            f"v_mfma_f32_32x32x16_bf16 {o}, {ar(VA+8*k+4,4)}, {vr(pb+4,4)}, {o}"]


FJ = [(0, 1, 2)]
SN = [1]
ALL = [0]


def pass2(p, a, fill=None, sfill=None, with1=False):
    fill = fill if fill is not None else []
    for o in s_mfmas(a, 0):
        p(o)
    for bi in range(9):
        s = SB + 16 * (bi & 1)
        pb = PB + 8 * (bi & 1)
        mf = (s_mfmas(a, bi + 1) if bi < 8 else [None, None]) + (pv_mfmas(a, bi - 1) if bi > 0 else [None, None])
        ex = lambda r: p(f"v_exp_f32 v{s+r}, v{s+r}")
        cv = lambda k: p(f"v_cvt_pk_bf16_f32 v{pb+k}, v{s+2*k}, v{s+2*k+1}")
        plan = [([0, 1, 2, 3], []), ([4, 5, 6, 7, 8], [0]), ([9, 10, 11, 12], [1, 2, 3]), ([13, 14, 15], [4, 5, 6, 7])]
        o1 = OA + 16
        for j in range(4):
            if mf[j]:
                p(mf[j])
            if with1 and j == 0 and bi > 0:
                for o in max_ops(o1, bi == 1):
                    p(o)
            if with1 and j in (1, 2):
                p(s_mfmas(1, bi, o1)[j - 1])
            if fill and j in FJ[0]:
                p(fill.pop(0))
            for _ in range(SN[0] if j != 3 else 0):
                if sfill:
                    p(sfill.pop(0))
            es, cs = plan[j]
            if j == 3:
                for r in es:
                    ex(r)
                for k in cs:
                    cv(k)
            else:
                for k in cs:
                    cv(k)
                for r in es:
                    ex(r)
    for o in pv_mfmas(a, 8):
        p(o)
    if with1:
        for o in max_ops(OA + 16, False):
            p(o)
        finish_max(p, 1)


def o_store(p, a):
    o = OA + 16 * a
    p(f"v_rcp_f32 v12, v{o+10}")
    p(f"s_lshl_b32 {sT0}, {sB}, 1")
    p(f"s_add_u32 {sT0}, {sT0}, {a}")
    p(f"s_mul_i32 {sT0}, {sT0}, 36")
    p(f"s_add_u32 {sT1}, {sT0}, {sH}")
    p(f"s_lshl_b32 {sT1}, {sT1}, 10")
    p(f"s_add_u32 {sT1}, {sT1}, {hx(OB)}")
    for r in range(10):
        p(f"v_mul_f32 v{o+r}, v{o+r}, v12")
    for k in range(5):
        p(f"v_cvt_pk_bf16_f32 v{o+k}, v{o+2*k}, v{o+2*k+1}")
    for k in range(5):
        p(f"v_min_u32 v{o+k}, {CLEAN}, v{o+k}")
    hand_store(p, f"buffer_store_dwordx4 {vr(o,4)}, {vLN}, {WS}, {sT1} offen sc1")
    p(f"s_add_u32 {sT0}, {sT0}, 32")
    p(f"s_lshl_b32 {sT0}, {sT0}, 10")
    p(f"s_lshr_b32 {sT1}, {sH}, 2")
    p(f"s_lshl_b32 {sT1}, {sT1}, 9")
    p(f"s_add_u32 {sT0}, {sT0}, {sT1}")
    p(f"s_lshl_b32 {sT1}, {sO2}, 2")
    p(f"s_add_u32 {sT0}, {sT0}, {sT1}")
    p(f"s_add_u32 {sT0}, {sT0}, {hx(OB)}")
    exec_lo(p)
    hand_store(p, f"buffer_store_dword v{o+4}, {vLN}, {WS}, {sT0} offen sc1", tag="out")
    exec_all(p)


def publish(p):
    L = p.label("f2")
    p(f"s_cmp_lg_u32 {sW}, 0")
    p(f"s_cbranch_scc1 {L}")
    s = p.side_begin()
    p(f"s_mul_i32 {sT0}, {sB}, {FS}")
    p(f"s_lshl_b32 {sT1}, {sU}, 4")
    p(f"s_add_u32 {sT0}, {sT0}, {sT1}")
    p(f"s_add_u32 {sT0}, {sT0}, {F2}")
    set_flag(p, "v62", "v63", sT0)
    p.side_end(s)
    p(f"{L}:")


def p2(p, st, opts, fill):
    load_bases(p)
    L = p.label("p2go")
    p(f"s_cmp_lg_u32 {sW}, 0")
    p(f"s_cbranch_scc1 {L}")
    s = p.side_begin()
    poll(p, vPL, "v6", 18)
    p.side_end(s)
    p(f"{L}:")
    p("s_barrier")
    st(p, "f1seen")
    qk_loads(p)
    p("v_and_b32 v7, 31, v1")
    p("v_lshlrev_b32 v7, 2, v7")
    p("v_add_u32 v7, 128, v7")
    p(f"buffer_load_dword v15, v7, {RC}, 0 offen sc1")
    st(p, "p2ld")
    vl = v_loads()
    il = opts.get("il", 1)
    ALL[0] = il
    q_mask(p, 0)
    pass1(p, 0, vl)
    q_mask(p, 1)
    if il:
        p(vl.pop(0))
    else:
        pass1(p, 1, vl)
    assert not vl
    st(p, "pass1")
    p("v_lshrrev_b32 v6, 4, v1")
    p(f"v_lshl_add_u32 v6, {sW}, 2, v6")
    p(f"v_mul_u32_u24 v6, {FS}, v6")
    p("v_and_b32 v8, 15, v1")
    p("v_min_u32 v8, 13, v8")
    p("v_lshl_add_u32 v6, v8, 3, v6")
    p(f"v_add_u32 v8, {hx(F1)}, v6")
    p(f"buffer_load_dword v9, v8, {WS}, 0 offen sc1")
    ok = p.label("packed")
    p("v_cmp_gt_u32 vcc, 1, v15")
    p("s_cmp_eq_u32 vcc_lo, 0")
    p(f"s_cbranch_scc1 {ok}")
    s = p.side_begin()
    poll(p, "v7", "v15", 32, srd_=RC)
    p.side_end(s)
    p(f"{ok}:")
    n = opts.get("n2", 45)
    FJ[0] = (0, 1, 2) if n > 36 else ((0, 2) if n > 18 else (1,))
    mine = fill[:n]
    del fill[:n]
    sf = scalar_prefetch(opts.get("spf", ""))
    SN[0] = (len(sf) + 53) // 54
    pass2(p, 0, mine, sf, il)
    o_store(p, 0)
    pass2(p, 1, mine, sf)
    assert not sf
    assert not mine
    o_store(p, 1)
    st(p, "p2e")
    ok = p.label("allf1")
    p("v_cmp_gt_u32 vcc, 1, v9")
    p("s_nop 1")
    p(f"s_cbranch_vccz {ok}")
    s = p.side_begin()
    poll(p, "v8", "v9", 64)
    p.side_end(s)
    p(f"{ok}:")
    p("s_barrier")
```

```python
from common import *
from pf import weight_prefetch
from sched import Filler
from sg import gelu_ops, interleave, GK, emit_some

sI, sMm, sC, sFO, sFH, sT0, sT1, sLW, sDA, sDB, sPB, sFL, sT2, sCNT = (
    "s48", "s49", "s50", "s51", "s26", "s27", "s3", "s10", "s56", "s57", "s58", "s59", "s60", "s61")
vLN, vF6, vF68, vH0 = "v2", "v3", "v6", "v5"
AB = 8
DO = 16
vCA, vCB = "v25", "v26"
GT = 27
vHS = 31
ID0, ID1, IDX = 32, 36, 40
vFL, vFL8, vFLb = "v44", "v45", "v62"
ST = 46
ACC = [80, 96, 64]
ACC8 = 240
CV = [184, 192]
XB = 0
HB_ = 112
AFR, NAF = 144, 7
PL = 0
PL8 = 172
SLOT = 36864
PD = NAF - 1
NT = ['', '']
SCR = [7]
HALF = [1]
GX = [8]
ND = [1]
LOCAL = [0]
OST = ['']
sSC = 's67'
sF7 = 's68'
vP2 = 'v7'
sXO, sXB = 's52', 's55'
vBAD = 'v63'
sSB0, sSB1, sGA, sGM, sPA = 's12', 's13', 's14', 's11', 's15'
vONE = 'v31'


def ids(p):
    lg = GX[0].bit_length() - 1
    p(f"s_and_b32 {sMm}, {sL}, {16 // GX[0] - 1}")
    p(f"s_and_b32 {sT0}, {sX}, {GX[0] - 1}")
    p(f"s_lshl_b32 {sT0}, {sT0}, {4 - lg}")
    p(f"s_add_u32 {sMm}, {sMm}, {sT0}")
    p(f"s_lshr_b32 {sI}, {sL}, {4 - lg}")
    p(f"s_lshr_b32 {sT0}, {sX}, {lg}")
    p(f"s_lshl_b32 {sT0}, {sT0}, {lg + 1}")
    p(f"s_add_u32 {sI}, {sI}, {sT0}")
    p(f"s_lshr_b32 {sC}, {sMm}, 1")
    p(f"s_mul_i32 {sFO}, {sMm}, 288")
    p(f"s_bitcmp1_b32 {sMm}, 0")
    p(f"s_cselect_b32 {sT0}, 0, 256")
    p(f"s_cselect_b32 {sT1}, 32, 0")
    p(f"s_add_u32 {sFH}, {sFO}, {sT0}")
    p(f"s_add_u32 {sFO}, {sFO}, {sT1}")
    p(f"s_mul_i32 {sLW}, {sW}, 9216")
    srd(p, R_A, S_W3, 576 * 9216)
    srd(p, R_B, S_W4, 4608 * 1152)


def dma_pattern(p, kind):
    t, u = (f"v{GT}", f"v{GT+1}") if kind != "w4" else ("v76", "v77")
    if kind == "half":
        p(f"v_lshrrev_b32 {t}, 2, v1")
        p(f"v_mul_u32_u24 {t}, 9216, {t}")
        p(f"v_and_b32 {u}, 3, v1")
        p(f"v_lshl_add_u32 v{DO}, {u}, 4, {t}")
        step = 16 * 9216
    else:
        stride = 9216 if kind == "w3" else 1152
        p(f"v_lshrrev_b32 {t}, 3, v1")
        p(f"v_mul_u32_u24 {t}, {stride}, {t}")
        p(f"v_bfe_u32 {u}, v1, 4, 1")
        p(f"v_lshlrev_b32 {u}, 2, {u}")
        p(f"v_xor_b32 {u}, {u}, v1")
        p(f"v_and_b32 {u}, 7, {u}")
        p(f"v_lshl_add_u32 v{DO}, {u}, 4, {t}")
        step = 8 * stride
    k0 = lambda k: k - 4 if (kind == "w4" and k >= 4) else k
    return [f"v_add_u32 v{DO+k}, {k0(k)*step - (k%4)*1024}, v{DO}" for k in range(1, 9)]


def stage_dma(tau):
    o = []
    slot = (tau % 4) * SLOT
    if tau == 0:
        o += [f"s_mul_i32 {sDA}, {sW}, {144*9216}", f"s_lshl_b32 {sT0}, {sFH}, 1", f"s_add_u32 {sDA}, {sDA}, {sT0}"]
        so = lambda k: sDA
        r = RA
    elif tau < 9:
        cc, kh = divmod(tau - 1, 2)
        o += [f"s_mul_i32 {sDA}, {sW}, {72*9216}", f"s_lshl_b32 {sT0}, {sFO}, 1", f"s_add_u32 {sDA}, {sDA}, {sT0}"]
        if kh or cc:
            o += [f"s_add_u32 {sDA}, {sDA}, {kh*288*9216 + cc*128}"]
        so = lambda k: sDA
        r = RA
    else:
        sg = tau - 9
        if sg == 0:
            o += [f"s_mov_b32 {sT0}, {8*128}"]
        else:
            o += [f"s_add_u32 {sT0}, {sC}, {sg}", f"s_and_b32 {sT0}, {sT0}, 7", f"s_lshl_b32 {sT0}, {sT0}, 7"]
        o += [f"s_add_u32 {sDA}, s62, {sT0}", f"s_add_u32 {sDB}, s63, {sT0}"]
        so = lambda k: sDA if k < 4 else sDB
        r = RB
    o = ["\n".join(o)]
    for k in range(9):
        if k % 4 == 0:
            o.append(f"s_add_u32 m0, {sLW}, {slot + k*1024}")
        o.append(f"buffer_load_dwordx4 v{DO+k}, {r}, {so(k)} offen offset:{(k%4)*1024} lds")
    return o


def w4_bases():
    return ["\n".join([f"s_sub_u32 s63, {sFO}, 32", f"s_cmp_eq_u32 {sW}, 0", f"s_cselect_b32 s62, {sFH}, s63",
                       f"s_mul_i32 {sT0}, {sW}, 72", f"s_add_u32 s62, s62, {sT0}", f"s_add_u32 s63, {sFO}, {sT0}",
                       f"s_mul_i32 s62, s62, 1152", f"s_mul_i32 s63, s63, 1152"])]


def emit_list(p, ops, tag):
    last = max(k for k, o in enumerate(ops) if o.startswith("buffer"))
    for k, o in enumerate(ops):
        p(o, tag=tag if k == last else None)


class Rec:
    def __init__(self):
        self.ops = []

    def __call__(self, text, tag=None):
        self.ops.append(text)


def tagged(ops, tag):
    last = max(k for k, o in enumerate(ops) if o.startswith("buffer"))
    return [(o, tag) if k == last else o for k, o in enumerate(ops)]


def prefill_ops():
    r = Rec()
    ids(r)
    o = ["\n".join(r.ops)]
    r = Rec()
    rest = dma_pattern(r, "half")
    o.append("\n".join(r.ops + rest))
    o += tagged(stage_dma(0), "st0")
    r = Rec()
    rest = dma_pattern(r, "w3")
    o.append("\n".join(r.ops + rest))
    for tau in (1, 2):
        o += tagged(stage_dma(tau), f"st{tau}")
    return o


def setup(p):
    t, u, d = f"v{GT}", f"v{GT+1}", f"v{GT+2}"
    p(f"v_bfe_u32 {t}, v1, 4, 1")
    p(f"v_lshlrev_b32 {t}, 5, {t}")
    p(f"v_and_b32 {u}, 1, v1")
    p(f"v_lshl_add_u32 {t}, {u}, 4, {t}")
    p(f"v_bfe_u32 {u}, v1, 1, 1")
    p(f"v_lshl_add_u32 {t}, {u}, 3, {t}")
    p(f"v_bfe_u32 {u}, v1, 2, 2")
    p(f"v_lshrrev_b32 {d}, 5, v1")
    p(f"v_lshl_add_u32 {u}, {d}, 3, {u}")
    p(f"v_lshl_add_u32 {vH0}, {u}, 6, {t}")
    p(f"v_lshl_add_u32 {t}, {u}, 7, {t}")
    p(f"v_bfe_u32 {u}, v1, 3, 1")
    p(f"v_lshl_add_u32 v{AB}, {u}, 6, {t}")
    p(f"v_xor_b32 v{AB+1}, 64, v{AB}")
    for s in range(1, 4):
        p(f"v_add_u32 v{AB+2*s}, {s*SLOT}, v{AB}")
        p(f"v_add_u32 v{AB+2*s+1}, {s*SLOT}, v{AB+1}")
    p(f"v_min_u32 {u}, {16 + 2 * ND[0]}, v1")
    p(f"s_lshl_b32 {sFL}, {sI}, 6")
    p(f"s_add_u32 {sFL}, {sFL}, {sW}")
    p(f"s_lshl_b32 {sFL}, {sFL}, 7")
    p(f"s_add_u32 {sFL}, {sFL}, {F7}")
    p(f"s_lshl_b32 {sF7}, {sMm}, 2")
    p(f"s_add_u32 {sF7}, {sF7}, {sFL}")
    p(f"s_lshl_b32 {sT2}, {sMm}, 9")
    p(f"s_add_u32 {sT0}, {sFL}, {sT2}")
    p(f"v_lshl_add_u32 {vF6}, {u}, 2, {sT0}")
    p(f"v_lshlrev_b32 {vP2}, 9, v1")
    p(f"v_lshrrev_b32 {u}, 1, v1")
    p(f"v_sub_u32 {t}, {sC}, {u}")
    p(f"v_add_u32 {t}, 7, {t}")
    p(f"v_and_b32 {t}, 7, {t}")
    p(f"v_lshlrev_b32 {t}, 10, {t}")
    p(f"v_lshl_add_u32 {t}, {u}, 3, {t}")
    p(f"v_and_b32 {u}, 1, v1")
    p(f"v_lshl_add_u32 {t}, {u}, 9, {t}")
    p(f"s_and_b32 {sT1}, {sMm}, 1")
    p(f"s_lshl_b32 {sT1}, {sT1}, 2")
    p(f"s_add_u32 {sT1}, {sT1}, 68")
    p(f"v_add_u32 {vF68}, {sT1}, {t}")
    p(f"s_xor_b32 {sT2}, {sT2}, 512")
    p(f"s_add_u32 {sT2}, {sT2}, 64")
    p(f"v_writelane_b32 {vF68}, {sT2}, {2 * ND[0]}")
    p(f"s_lshl_b32 {sT0}, {sW}, 1")
    p(f"s_xor_b32 {sT0}, {sT0}, {sI}")
    p(f"s_and_b32 {sT0}, {sT0}, {SCR[0]}")
    p(f"s_lshl_b32 {sSC}, {sT0}, 12")
    p(f"s_mul_i32 {sPB}, {sI}, 72")
    p(f"s_add_u32 {sPB}, {sPB}, {sW}")
    p(f"s_lshl_b32 {sPB}, {sPB}, 15")
    p(f"s_add_u32 {sPB}, {sPB}, {hx(PART)}")
    p(f"s_lshl_b32 {sT0}, {sMm}, 11")
    p(f"s_xor_b32 {sT0}, {sT0}, {sSC}")
    p(f"s_add_u32 {sT0}, {sT0}, {sPB}")
    p(f"s_and_b32 {sT1}, {sMm}, 1")
    p(f"s_lshl_b32 {sT1}, {sT1}, 17")
    p(f"s_add_u32 {sSB1}, {sT0}, {sT1}")
    p(f"s_xor_b32 {sT1}, {sT1}, {1 << 17}")
    p(f"s_add_u32 {sSB0}, {sT0}, {sT1}")
    p(f"s_lshl_b32 {sT0}, {sMm}, 17")
    p(f"s_add_u32 {sPB}, {sPB}, {sT0}")
    p(f"v_mov_b32 {vONE}, 1")


def select_ops():
    t, u, d = f"v{ST+10}", f"v{ST+11}", f"v{ST+12}"
    o = [f"v_and_b32 {t}, 0x13, v1", f"v_bfe_u32 {u}, v1, 2, 1", f"v_lshl_add_u32 {t}, {u}, 3, {t}",
         f"v_bfe_u32 {u}, v1, 3, 1", f"v_lshl_add_u32 {t}, {u}, 2, {t}", f"v_lshrrev_b32 {d}, 5, v1",
         f"v_lshlrev_b32 {d}, 3, {d}", f"v_sub_u32 {t}, {t}, {d}",
         f"v_and_b32 {u}, 31, v1"]
    for src, bases in ((t, ((ID0, 0), (ID1, 8))), (u, ((IDX, 0),))):
        o += [f"v_and_b32 {d}, 1, {src}", f"v_lshlrev_b32 {d}, 4, {d}", f"v_mov_b32 v{ST+13}, 0x3f80",
              f"v_lshlrev_b32 {d}, {d}, v{ST+13}", f"v_ashrrev_i32 {src}, 1, {src}"]
        for base, sub in bases:
            for k in range(4):
                o += [f"v_cmp_eq_u32 s[8:9], {sub+k}, {src}\ns_nop 1\nv_cndmask_b32 v{base+k}, 0, {d}, s[8:9]"]
    return o


def x_base(p):
    p(f"s_lshl_b32 {sT0}, {sI}, 2")
    p(f"s_add_u32 {sT0}, {sT0}, {sW}")
    p(f"s_mul_i32 {sXB}, {sT0}, 36864")
    p(f"s_add_u32 {sXB}, {sXB}, {hx(X1)}")


def stat_poll(p):
    t = f"v{GT}"
    p(f"s_lshl_b32 {sT0}, {sI}, 2")
    p(f"s_add_u32 {sT0}, {sT0}, {sW}")
    p(f"s_lshl_b32 {sT1}, {sT0}, 12")
    p(f"s_add_u32 {sT1}, {sT1}, {hx(ST5)}")
    p(f"v_lshlrev_b32 {t}, 8, v1")
    p("s_mov_b64 exec, 0xffff")
    poll_data(p, lambda: p(f"buffer_load_dword v{GT+1}, {t}, {WS}, {sT1} offen sc1"), f"v{GT+1}")
    p("s_mov_b64 exec, -1")


def stat_loads(p):
    t = f"v{GT}"
    p(f"s_lshl_b32 {sT0}, {sI}, 2")
    p(f"s_add_u32 {sT0}, {sT0}, {sW}")
    p(f"s_lshl_b32 {sT1}, {sT0}, 12")
    p(f"s_add_u32 {sT1}, {sT1}, {hx(ST5)}")
    p(f"v_and_b32 {t}, 31, v1")
    p(f"v_lshlrev_b32 {t}, 3, {t}")
    p(f"v_lshrrev_b32 v{GT+1}, 5, v1")
    p(f"v_lshl_add_u32 {t}, v{GT+1}, 11, {t}")
    for k in range(8):
        p(f"buffer_load_dwordx2 {vr(ST+2*k,2)}, {t}, {WS}, {sT1} offen offset:{k*256} sc1")


def x_loads():
    o = []
    for s in range(36):
        x = f"buffer_load_dwordx4 {ar(XB+4*s,4)}, {vLN}, {WS}, {sXO} offen offset:{(s%4)*1024} sc1"
        if s % 4 == 0:
            x = f"s_add_u32 {sXO}, {sXB}, {s*1024}\n" + x
        o.append(x)
    return o


def check_ops(s):
    d, t = XB + 4 * s, ST + 16
    if s % 9 == 8:
        return ([f"v_accvgpr_read_b32 v{GT+k}, a{d+k}" for k in range(4)]
                + [f"v_max3_u32 {vBAD}, v{GT}, v{GT+1}, {vBAD}", f"v_max3_u32 {vBAD}, v{GT+2}, v{GT+3}, {vBAD}"])
    return [f"v_accvgpr_read_b32 v{GT}, a{d}", f"v_max_u32 {vBAD}, v{GT}, {vBAD}"]


vMEAN, vCC = f"v{ST}", "v4"


def stats(p, again):
    R = ST
    p(f"v_max3_u32 {vBAD}, v{R}, v{R+2}, {vBAD}")
    p(f"v_max_u32 {vBAD}, v{R+4}, {vBAD}")
    p(f"v_max3_u32 {vBAD}, v{R+6}, v{R+8}, {vBAD}")
    p(f"v_max3_u32 {vBAD}, v{R+10}, v{R+12}, {vBAD}")
    p(f"v_max_u32 {vBAD}, v{R+14}, {vBAD}")
    if again:
        ok = p.label("statok")
        p(f"v_cmp_eq_u32 vcc, -1, {vBAD}")
        p("s_nop 1")
        p(f"s_cbranch_vccz {ok}")
        sd = p.side_begin()
        p(f"s_add_u32 {sCNT}, {sCNT}, 1")
        p(f"s_cmp_gt_u32 {sCNT}, {SPIN_MAX}")
        p(f"s_cbranch_scc1 {ok}")
        p("s_waitcnt lgkmcnt(0)")
        stat_poll(p)
        p(f"s_branch {again}")
        p.side_end(sd)
        p(f"{ok}:")
    for step in (8, 4, 2):
        for k in range(0, step, 2):
            p(f"v_add_f32 v{R+k+1}, v{R+k+1}, v{R+k+step+1}")
    Q = f"v{R+1}"
    xhalf(p, "v_add_f32", Q, f"v{R+3}")
    p(f"v_mov_b32 v{R+2}, {hx(f2u(EPS))}")
    p(f"v_fmac_f32 v{R+2}, {hx(f2u(1.0/576))}, {Q}")
    p(f"v_rsq_f32 {Q}, v{R+2}")
    p(f"v_mul_f32 {vCC}, v{R+2}, {Q}")
    p(f"v_mul_f32 {vCA}, {hx(f2u(-GK))}, {Q}")
    p(f"v_mul_f32 {Q}, {Q}, {Q}")
    p(f"v_mul_f32 {vCB}, {hx(f2u(0.044715))}, {vCA}")
    p(f"v_mul_f32 {vCB}, {vCB}, {Q}")


def gelu_list(acc, pos):
    o = []
    for e in range(0, 16, 2):
        x0, x1 = f"v{acc+e}", f"v{acc+e+1}"
        t0, t1 = f"v{GT+(e & 2)}", f"v{GT+1+(e & 2)}"
        o += interleave([gelu_ops(x0, t0, vCA, vCB, vCC), gelu_ops(x1, t1, vCA, vCB, vCC)])
        o += [f"v_cvt_pk_bf16_f32 v{HB_+8*pos+e//2}, {x0}, {x1}"]
    return o


def part_store_list(acc, sg, par1, cv):
    o = [f"v_cvt_pk_bf16_f32 v{cv+k}, v{acc+2*k}, v{acc+2*k+1}" for k in range(8)]
    if sg >= 8 - ND[0]:
        o.insert(4, f"v_min_u32 v{cv}, {CLEAN}, v{cv}")
        o.append(f"v_min_u32 v{cv+4}, {CLEAN}, v{cv+4}")
        o = o[:5], o[5:]
    else:
        o = o[:4], o[4:]
    A = "s64"
    base = sSB1 if par1 else sSB0
    if sg == 0:
        q = [f"s_add_u32 {A}, {base}, {8 << 18}"]
    else:
        q = [f"s_add_u32 {A}, {sC}, {sg}", f"s_and_b32 {A}, {A}, 7", f"s_lshl_b32 {A}, {A}, 18",
             f"s_add_u32 {A}, {A}, {base}"]
    o = o[0] + q + [(f"buffer_store_dwordx4 {vr(cv,4)}, {vLN}, {WS}, {A} offen sc1{NT[1]}", None)] + o[1]
    o += [(f"buffer_store_dwordx4 {vr(cv+4,4)}, {vLN}, {WS}, {A} offen offset:1024 sc1{NT[1]}", f"ps{sg}_{par1}")]
    return o


MUB, MU8 = 224, 64
LV = 200


def direct_ops(g):
    A = "s1"
    o = [f"s_add_u32 {A}, {sC}, {8-g}\ns_and_b32 {A}, {A}, 7\ns_lshl_b32 {A}, {A}, 12\ns_xor_b32 {A}, {A}, {sSC}\n"
         f"s_add_u32 {A}, {A}, {sPB}"]
    return o + [f"buffer_load_dwordx4 {vr(LV+8+16*(7-g)+4*k,4)}, {vLN}, {WS}, {A} offen offset:{k*1024} sc1"
                for k in range(4)]


def late_poison():
    V, A = 72, "s0"
    o = [f"v_mov_b32 v{V+k}, -1" for k in range(4)]
    for sg, base in [(g, b) for g in range(8 - ND[0], 8) for b in (sSB0, sSB1)] + [(8, sSB0)]:
        o += [f"s_add_u32 {A}, {sC}, {sg}\ns_and_b32 {A}, {A}, 7\ns_lshl_b32 {A}, {A}, 18\ns_add_u32 {A}, {A}, {base}"]
        o += [f"buffer_store_dwordx4 {vr(V,4)}, {vLN}, {WS}, {A} offen offset:{k*1024} sc1" for k in range(2)]
    return o


def flag_publish(p, val):
    p(f"s_mov_b64 exec, {hx((2 << (2 * ND[0])) - 1)}")
    p(f"buffer_store_dword {vONE}, {vF68}, {WS}, {sFL} offen sc1")
    p("s_mov_b64 exec, -1")


def pair_publish_ops(p, sg, tag):
    o = [f"s_add_u32 {sPA}, {sC}, {sg}", f"s_and_b32 {sPA}, {sPA}, 7", f"s_lshl_b32 {sPA}, {sPA}, 10",
         f"s_add_u32 {sPA}, {sPA}, {sF7}"]

    def fin():
        if tag:
            p.wait_vm(tag)
        if sg == 8:
            p(f"s_and_b32 {sT0}, {sMm}, 1")
            p(f"s_lshr_b32 exec_lo, 2, {sT0}")
            p("s_mov_b32 exec_hi, 0")
        else:
            p("s_mov_b64 exec, 3")
        p(f"buffer_store_dword {vONE}, {vP2}, {WS}, {sPA} offen sc1")
        p("s_mov_b64 exec, -1")
    fin.cost = 24
    return o + [fin]


def flag_load(p, dst, addr):
    p(f"buffer_load_dword {dst}, {addr}, {WS}, 0 offen sc1")


def flag_check(p, reg, addr, val, mask):
    lp, ok = p.label("fc"), p.label("fcok")
    p.wait_regs(reg)
    p(f"{lp}:")
    p(f"v_cmp_gt_u32 vcc, {val}, {reg}")
    p(f"s_and_b32 {sT1}, vcc_lo, {mask}")
    p(f"s_cbranch_scc0 {ok}")
    s = p.side_begin()
    p(f"s_add_u32 {sCNT}, {sCNT}, 1")
    p(f"s_cmp_gt_u32 {sCNT}, {SPIN_MAX}")
    p(f"s_cbranch_scc1 {ok}")
    flag_load(p, reg, addr)
    p("s_waitcnt vmcnt(0)")
    p(f"s_branch {lp}")
    p.side_end(s)
    p(f"{ok}:")


def group_ops(p, g, slot, fl, check=True, load=True):
    o = [f"s_add_u32 {sGA}, {sC}, {8-g}", f"s_and_b32 {sGA}, {sGA}, 7", f"s_lshl_b32 {sGM}, {sGA}, 1",
         f"s_lshl_b32 {sGM}, 3, {sGM}", f"s_lshl_b32 {sGA}, {sGA}, 12", f"s_xor_b32 {sGA}, {sGA}, {sSC}",
         f"s_add_u32 {sGA}, {sGA}, {sPB}" if not LOCAL[0] else f"s_mov_b32 {sGA}, {sXB}"]
    if check:
        chk = lambda: flag_check(p, fl, vF6, 1, sGM)
        chk.cost = 24
        o.append(chk)
    if load:
        for k in range(0, 4, HALF[0]):
            o.append(f"buffer_load_dwordx4 {ar(PL+8*slot+4*k,4)}, {vLN}, {WS}, {sGA} offen offset:{k*1024} sc1{NT[0]}")
    return o


def residual_loads():
    sT0, sT1 = 's0', 's1'
    o = [f"s_lshl_b32 {sT0}, {sI}, 2", f"s_add_u32 {sT0}, {sT0}, {sW}", f"s_mul_i32 {sT0}, {sT0}, 36",
         f"s_lshl_b32 {sT1}, {sMm}, 1", f"s_add_u32 {sT0}, {sT0}, {sT1}", f"s_lshl_b32 {sT0}, {sT0}, 10",
         f"s_add_u32 {sT1}, {sT0}, {hx(HB)}", f"s_add_u32 {sT0}, {sT0}, {hx(X1)}"]
    for j, s in enumerate((sT1, sT0)):
        for k in range(2):
            o.append(f"buffer_load_dwordx4 {ar(PL+8*(15+j)+4*k,4)}, {vLN}, {WS}, {s} offen offset:{k*1024} sc1")
    return o


vC8T, vC8P, vC8A = f"v{ST+2}", f"v{ST+3}", f"v{ST+4}"
sC8, sC8X = "s65", "s66"


def c8_setup():
    sT0, sT1 = 's0', 's1'
    t, u, a = vC8T, vC8P, vC8A
    o = [f"s_and_b32 {sT0}, {sW}, 1", f"s_lshl_b32 {sT0}, {sT0}, 5", f"s_lshr_b32 {sT1}, {sW}, 1",
         f"s_lshl_b32 {sT1}, {sT1}, 4", f"s_add_u32 {sT0}, {sT0}, {sT1}",
         f"v_and_b32 {t}, 15, v1", f"v_add_u32 {t}, {sT0}, {t}", f"v_lshlrev_b32 {t}, 4, {t}",
         f"v_lshrrev_b32 {u}, 5, v1",
         f"v_mov_b32 {a}, {hx(X1-HB)}", f"v_mul_lo_u32 {a}, {u}, {a}", f"v_add_u32 {a}, {a}, {t}",
         f"v_lshl_add_u32 {t}, {u}, 11, {t}",
         f"v_bfe_u32 {u}, v1, 4, 1", f"v_lshl_add_u32 {a}, {u}, 27, {a}",
         f"s_lshl_b32 {sT0}, {sI}, 2", f"s_lshr_b32 {sT1}, {sMm}, 2", f"s_add_u32 {sT0}, {sT0}, {sT1}",
         f"s_mul_i32 {sT0}, {sT0}, 36", f"s_and_b32 {sT1}, {sMm}, 3", f"s_add_u32 {sT0}, {sT0}, {sT1}",
         f"s_add_u32 {sT0}, {sT0}, 32", f"s_lshl_b32 {sT0}, {sT0}, 10", f"s_add_u32 {sT0}, {sT0}, {hx(HB)}",
         f"buffer_load_dwordx4 {ar(PL8+16,4)}, {a}, {WS}, {sT0} offen sc1",
         f"v_sub_u32 {u}, {sC}, {u}",
         f"s_mul_i32 {sT0}, {sI}, 18", f"s_bfe_u32 {sT1}, {sMm}, 0x10001", f"s_add_u32 {sT0}, {sT0}, {sT1}",
         f"s_add_u32 {sT0}, {sT0}, 16", f"s_lshl_b32 {sT0}, {sT0}, 2", f"s_lshr_b32 {sT1}, {sMm}, 2",
         f"s_add_u32 {sT0}, {sT0}, {sT1}", f"s_lshl_b32 {sT0}, {sT0}, 15", f"s_and_b32 {sT1}, {sMm}, 1",
         f"s_lshl_b32 {sT1}, {sT1}, 10", f"s_add_u32 {sT0}, {sT0}, {sT1}", f"s_add_u32 {sC8}, {sT0}, {hx(PART)}",
         f"s_lshr_b32 {sT1}, {sMm}, 2", f"s_lshl_b32 {sT1}, {sT1}, 1", f"s_xor_b32 {sT1}, {sT1}, {sI}",
         f"s_and_b32 {sC8X}, {sT1}, {SCR[0]}"]
    assert OOB == 1 << 27
    return o


def c8_load(k):
    a = vC8A
    return [f"v_add_u32 {a}, {16 - 2*k - 1}, {vC8P}", f"v_and_b32 {a}, 7, {a}", f"v_xor_b32 {a}, {sC8X}, {a}",
            f"v_lshl_add_u32 {a}, {a}, 12, {vC8T}",
            f"buffer_load_dwordx4 {ar(PL8+4*k,4)}, {a}, {WS}, {sC8} offen sc1"]


def build_sequence():
    seq = []
    for s in range(36):
        seq.append(dict(acc=ACC[0], first=s == 0, b=ar(XB + 4 * s, 4), base=vH0, off=(s * 1024, s * 1024 + 256), seg=0))
    for cc in range(4):
        for par in range(2):
            n = 1 + 2 * cc + par
            for s in range(36):
                slot = (1 + 2 * cc + s // 18) % 4
                o = (s % 18) * 2048
                seq.append(dict(acc=ACC[n % 2], first=s == 0, b=ar(XB + 4 * s, 4), base=f"v{AB+2*slot+par}",
                                off=(o, o + 512), seg=1 + cc))
    for sg in range(9):
        slot = (9 + sg) % 4
        if sg == 0:
            order = [(s, c) for s in range(18) for c in range(2)]
            accs = (ACC[1], ACC[2])
        else:
            order = [(s, c) for c in range(2) for s in range(18)]
            accs = (ACC[0], ACC[1])
        for s, c in order:
            seq.append(dict(acc=accs[c], first=s == 0, b=vr(HB_ + 4 * s, 4), base=f"v{AB+2*slot+c}",
                            off=(s * 2048, s * 2048 + 512), seg=5 + sg))
    return seq


def main_loop(p, st, opts):
    seq = build_sequence()
    N = len(seq)
    start = {}
    for j, e in enumerate(seq):
        start.setdefault(e["seg"], j)
    seg_stages = {0: [0], 1: [1, 2], 2: [3, 4], 3: [5, 6], 4: [7, 8]}
    for sg in range(9):
        seg_stages[5 + sg] = [9 + sg]
    dma_after = {1: [4], 2: [5, 6], 3: [7, 8], 4: [9, 10], 5: [11, 12]}
    for k in range(6, 11):
        dma_after[k] = [7 + k]
    swapped = [False]

    def rd(j):
        e = seq[j]
        if e["seg"] >= 5 and not swapped[0]:
            swapped[0] = True
            p(f"s_and_b32 {sT1}, {sMm}, 1")
            p(f"s_xor_b32 {sT1}, {sT1}, 1")
            p(f"s_lshl_b32 {sT1}, {sT1}, 6")
            for r in range(AB, AB + 8):
                p(f"v_xor_b32 v{r}, {sT1}, v{r}")
        d = AFR + 4 * (j % NAF)
        for q in range(2):
            p(f"ds_read_b64_tr_b16 {ar(d+2*q,2)}, {e['base']} offset:{e['off'][q]}")

    F = Filler(p)
    add = F.add
    for n in range(9):
        e = 36 * (n + 1)
        add(e + 2, e + (34 if n < 8 else 29), gelu_list(ACC[n % 2], n))
    for k, taus in dma_after.items():
        ops = []
        for tau in taus:
            if tau == 9:
                r = Rec()
                rest = dma_pattern(r, "w4")
                ops += r.ops + rest + w4_bases()
            ops += tagged(stage_dma(tau), f"st{tau}")
        add(start[k] - 3, start[k] + (opts.get("dma3", 50) if k < 5 else opts.get("dma4", 31)), ops)
    E0 = start[5]
    if opts.get("pf60"):
        pf0 = lambda: weight_prefetch(p, opts, opts["pf60"], V=64)
        add(26, 27, [pf0])
    opts.setdefault("pf6", "4")
    if opts.get("pf6"):
        pf = lambda: weight_prefetch(p, opts, opts["pf6"], V=64)
        pf.cost = 60
        add(start[2] + 55, start[2] + 60, [pf])
    add(E0 + 38, E0 + 45, part_store_list(ACC[1], 0, 0, CV[0]))
    add(E0 + 46, E0 + 52, part_store_list(ACC[2], 0, 1, CV[1]))
    for sg in range(1, 9):
        e = start[5 + sg]
        add(e + 20, e + 28, part_store_list(ACC[0], sg, 0, CV[0]))
        if sg < 8:
            add(e + 38, e + 46, part_store_list(ACC[1], sg, 1, CV[1]))
    add(start[7], start[7] + 30, residual_loads())
    nslot = 0
    LAG = opts.get("lag", ND[0] - 1)
    pubpos, ldpos, chkpos = opts.get("pubpos", 30), opts.get("ldpos", 12), opts.get("chkpos", 28)
    for sg in range(1, 9):
        e = start[5 + sg]
        PL_ = opts.get("publag", 0)
        ps = sg - 1 - PL_
        tag = None if opts.get("x_nopubwait") else f"ps{ps}_1"
        pp = pubpos if sg < 8 else opts.get("pub8", 24)
        if ps < 0 or ps >= 8 - ND[0]:
            pass
        elif ps == 0:
            w0 = lambda tag=tag: p.wait_vm(tag) if tag else None
            w0.cost = 4
            add(e + 30, e + 31, [w0])
            add(e + 40, e + 44, [lambda: flag_publish(p, 1)])
        else:
            o = pair_publish_ops(p, ps, tag)
            add(e + pp - 8, e + pp - 1, o[:-1])
            add(e + pp, e + pp + 1, o[-1:])
        g = sg - 2 - LAG
        if g >= 8 - ND[0]:
            continue
        if g >= 1 and not opts.get("x_nochk"):
            fl = (vFL, vFLb)[g & 1]
            add(e + ldpos, e + ldpos + 1, [lambda fl=fl: flag_load(p, fl, vF6)])
            o = group_ops(p, g, nslot, fl, not opts.get("x_nospin"), not opts.get("x_noload"))
            if g == 1:
                o[3] += f"\ns_or_b32 {sGM}, {sGM}, {hx(((2 << (2 * ND[0])) - 1) << 16)}"
            add(e + chkpos - 12, e + chkpos - 1, o[:7])
            for k in range(4):
                need = max([1] + [q for q in (2 * k + 1, 2 * k + 2) if q < 8 - ND[0]])
                if need == g:
                    o += c8_load(k)
            add(e + chkpos, min(e + chkpos + 9, N - 1), o[7:])
        if g >= 1:
            nslot += 2
    if nslot < 2 * (7 - ND[0]):
        add(N - opts.get("lastld", 14), N - opts.get("lastld", 14) + 1, [lambda: flag_load(p, vFL8, vF6)])
    add(start[6] + 10, start[7] - 6, c8_setup())
    add(start[8], start[8] + 30, tail_setup())
    add(start[opts.get("lps", 1)] + 4, start[opts.get("lps", 1)] + 68, late_poison())
    for q, g in enumerate(range(8 - ND[0], 7)):
        e = start[13] + opts.get("spec0", 0) + q * opts.get("specd", 14)
        add(e, e + 8, direct_ops(g))
    add(start[11] + 4, start[13], select_ops())
    add(start[13], start[13] + 14, [f"v_mov_b32 v{MUB+k}, {vMEAN}" for k in range(16)]
        + [f"v_mul_f32 v{MU8+k}, 0.5, v{MU8+4}" for k in range(4)])
    add(opts.get("st3a", 24), opts.get("st3b", 31), tagged(stage_dma(3), "st3"))

    again = p.label("again6")
    p(f"{again}:")
    stat_loads(p)
    xl = x_loads()
    emit_some(p, xl, opts.get("xahead", 12))
    st(p, "xiss")
    setup(p)
    for j in range(PD):
        rd(j)
    for o in ["v_mov_b32 " + vBAD + ", 0"] + check_ops(0):
        p(o)
    issued = PD
    bounds = sorted(start.values())[1:]
    for j, e in enumerate(seq):
        d = AFR + 4 * (j % NAF)
        acc = vr(e["acc"], 16)
        if opts.get("wait2", 1) and j % 2 == 0 and j + 1 < issued:
            p.wait_regs(ar(AFR + 4 * ((j + 1) % NAF), 4))
        cin = acc if not e["first"] else (vr(MUB, 16) if j == N - 18 else "0")
        p(f"v_mfma_f32_32x32x16_bf16 {acc}, {ar(d,4)}, {e['b']}, {cin}")
        nb = next((b for b in bounds if b > j), None)
        if nb is not None and j == nb - 4:
            p.wait_lg()
            for tau in seg_stages[seq[nb]["seg"]]:
                p.wait_vm(f"st{tau}")
            p("s_barrier")
            if st:
                st(p, f"seg{seq[nb]['seg']}")
        lim = min(j + PD, N - 1)
        if nb is not None and j < nb - 4:
            lim = min(lim, nb - 1)
        emit_some(p, xl, 1)
        if j < 31:
            for o in check_ops(j + 1):
                p(o)
        if j == 31:
            for s_ in range(32, 36):
                for o in check_ops(s_):
                    p(o)
            redo_if_poison(p, vBAD, again, sCNT)
        if j == 4:
            stats(p, None)
        while issued <= lim:
            rd(issued)
            issued += 1
        F.gap(j)
        if opts.get("stj") and j - start[opts["stj"][0]] in opts["stj"][1:]:
            st(p, f"j{j - start[opts['stj'][0]]}")
    assert F.done()
    return nslot


vO8, vOM = f"v{ST+6}", f"v{ST+7}"
sO8, sOM, sG7, sPP = "s4", "s5", "s6", "s7"


def tail_setup():
    a, b, t = 's0', 's1', f"v{ST+8}"
    return [f"s_mov_b32 s{R_C}, s{S_OUT}\ns_mov_b32 s{R_C+1}, s{S_OUT+1}",
            f"s_mov_b32 s{R_C+2}, {2048*1152}\ns_mov_b32 s{R_C+3}, 0x20000",
            f"v_and_b32 {t}, 0x1f0, {vC8T}", f"v_lshrrev_b32 {t}, 1, {t}",
            f"s_lshl_b32 {a}, {sI}, 2", f"s_lshr_b32 {b}, {sMm}, 2", f"s_add_u32 {a}, {a}, {b}",
            f"s_lshl_b32 {a}, {a}, 12", f"s_add_u32 {a}, {a}, {hx(ST5)}",
            f"buffer_load_dword v{MU8+4}, {t}, {WS}, {a} offen sc1",
            f"v_and_b32 {vO8}, 15, v1", f"v_mul_u32_u24 {vO8}, 1152, {vO8}", f"v_lshrrev_b32 {t}, 5, v1",
            f"v_lshl_add_u32 {vO8}, {t}, 3, {vO8}",
            f"v_and_b32 {vOM}, 31, v1", f"v_mul_u32_u24 {vOM}, 1152, {vOM}", f"v_lshl_add_u32 {vOM}, {t}, 4, {vOM}",
            f"s_lshl_b32 {a}, {sI}, 2", f"s_lshr_b32 {b}, {sMm}, 2", f"s_add_u32 {a}, {a}, {b}",
            f"s_lshl_b32 {a}, {a}, 1", f"s_lshr_b32 {b}, {sW}, 1", f"s_add_u32 {a}, {a}, {b}",
            f"s_mul_i32 {a}, {a}, {16*1152}", f"s_and_b32 {b}, {sMm}, 3", f"s_lshl_b32 {b}, {b}, 5",
            f"s_add_u32 {a}, {a}, {b}", f"s_and_b32 {b}, {sW}, 1", f"s_lshl_b32 {b}, {b}, 4",
            f"s_add_u32 {sO8}, {a}, {b}",
            f"s_lshl_b32 {a}, {sI}, 2", f"s_add_u32 {a}, {a}, {sW}", f"s_mul_i32 {a}, {a}, 36864",
            f"s_lshl_b32 {b}, {sMm}, 6", f"s_add_u32 {sOM}, {a}, {b}",
            f"s_xor_b32 {a}, {sMm}, 1", f"s_lshl_b32 {a}, {a}, 11",
            f"s_xor_b32 {a}, {a}, {sSC}", f"s_add_u32 {sPP}, {a}, {sPB}"]


def tail(p, st, nslot, opts):
    nd = ND[0]
    late = list(range(nslot // 2 + 1, 8 - nd))
    acc = vr(ACC[1], 16)

    def addr(r):
        p(f"v_mfma_f32_32x32x16_bf16 {acc}, {vr(ID0,4)}, {r(0)}, {acc}")
        p(f"v_mfma_f32_32x32x16_bf16 {acc}, {vr(ID1,4)}, {r(4)}, {acc}")

    addp = lambda slot: addr(lambda k: ar(PL + 8 * slot + k, 4))
    addv = lambda t: addr(lambda k: vr(LV + 8 * t + k, 4))
    a8 = vr(ACC8, 16)

    def add8(k):
        p(f"v_mfma_f32_32x32x16_bf16 {a8}, {vr(IDX,4)}, {ar(PL8+4*k,4)}, {vr(MU8, 16) if k == 4 else a8}")

    def fetch(g):
        for o in direct_ops(g):
            p(o)

    def partner():
        for k in range(2):
            p(f"buffer_load_dwordx4 {vr(LV+4*k,4)}, {vLN}, {WS}, {sPP} offen offset:{k*1024} sc1")

    def bad():
        regs = [f"v{LV+4*k}" for k in range(2 + 4 * nd)][::-1]
        p(f"v_max_u32 {vBAD}, {regs[0]}, {regs[1]}")
        for k in range(2, len(regs), 2):
            p(f"v_max3_u32 {vBAD}, {regs[k]}, {regs[k+1]}, {vBAD}")

    todo = [15, 16] + list(range(nslot))
    n0 = opts.get("t0", 4)
    for g in late:
        ops = group_ops(p, g, 2 * (g - 1), vFL8)
        for k in range(4):
            if max([1] + [q for q in (2 * k + 1, 2 * k + 2) if q < 8 - nd]) == g:
                ops += c8_load(k)
        for o in ops:
            o() if callable(o) else p(o)
    todo += list(range(nslot, 2 * (7 - nd)))
    fetch(7)
    for s in todo[:n0]:
        addp(s)
    partner()
    for s in todo[n0:]:
        addp(s)
    for k in (4, 3, 0, 1, 2):
        add8(k)
    ok = p.label("tailok")
    bad()
    p(f"v_cmp_eq_u32 vcc, -1, {vBAD}")
    p("s_nop 1")
    p(f"s_cbranch_vccz {ok}")
    sd = p.side_begin()
    poll_data(p, lambda: ([fetch(g) for g in range(8 - nd, 8)], partner()), vBAD, multi=bad)
    p.side_end(sd)
    p(f"{ok}:")
    for t in range(2 * nd, 0, -1):
        addv(t)
    t = ST + 10
    for k in range(4):
        p(f"v_mov_b32 v{t+k}, v{ACC8+k}")
    for k in range(4):
        p(f"v_permlane16_swap_b32 v{ACC8+k}, v{t+k}")
    for k in range(4):
        p(f"v_add_f32 v{ACC8+k}, v{ACC8+k}, v{t+k}")
    addv(0)
    p(f"v_cvt_pk_bf16_f32 v{ACC8}, v{ACC8}, v{ACC8+1}")
    p(f"v_cvt_pk_bf16_f32 v{ACC8+1}, v{ACC8+2}, v{ACC8+3}")
    p("s_mov_b32 exec_lo, 0xffff")
    p("s_mov_b32 exec_hi, 0xffff")
    p(f"buffer_store_dwordx2 {vr(ACC8,2)}, {vO8}, {RC}, {sO8} offen offset:1024{OST[0]}")
    p("s_mov_b64 exec, -1")
    a = ACC[1]
    for h in range(2):
        for k in range(4 * h, 4 * h + 4):
            p(f"v_cvt_pk_bf16_f32 v{CV[0]+k}, v{a+2*k}, v{a+2*k+1}")
        p(f"buffer_store_dwordx4 {vr(CV[0]+4*h,4)}, {vOM}, {RC}, {sOM} offen offset:{32*h}{OST[0]}")


def p6(p, st, opts, left):
    HALF[0] = opts.get("x_half", 1)
    OST[0] = opts.get("ost", "")
    LOCAL[0] = opts.get("x_local", 0)
    ND[0] = opts.get("nd", 1)
    SCR[0] = opts.get("scr", 7)
    NT[0] = " nt" if opts.get("ntld") else ""
    NT[1] = " nt" if opts.get("ntst") else ""
    emit_some(p, left, 99)
    p(f"s_mov_b32 {sCNT}, 0")
    st(p, "p5")
    x_base(p)
    if not opts.get("opt6", 0):
        stat_poll(p)
    st(p, "f5seen")
    nslot = main_loop(p, st, opts)
    st(p, "mlp")
    tail(p, st, nslot, opts)
```

```python
from common import *
from pf import weight_prefetch
from sched import Filler
from sg import gelu_ops, interleave, GK, emit_some

sI, sMm, sC, sFO, sFH, sT0, sT1, sLW, sDA, sDB, sPB, sFL, sT2, sCNT = (
    "s48", "s49", "s50", "s51", "s26", "s27", "s3", "s10", "s56", "s57", "s58", "s59", "s60", "s61")
vLN, vF6, vF68, vH0 = "v2", "v3", "v6", "v5"
AB = 8
DO = 16
vCA, vCB = "v25", "v26"
GT = 27
vHS = 31
ID0, ID1, IDX = 32, 36, 40
vFL, vFL8, vFLb = "v44", "v45", "v62"
ST = 46
ACC = [80, 96, 64]
ACC8 = 240
CV = [184, 192]
XB = 0
HB_ = 112
AFR, NAF = 144, 7
PL = 0
PL8 = 172
SLOT = 36864
PD = NAF - 1
NT = ['', '']
SCR = [7]
HALF = [1]
GX = [8]
ROT = [1]
sRT, sXB2 = 's62', 's63'
ND = [1]
LOCAL = [0]
OST = ['']
sSC = 's67'
sF7 = 's68'
vP2 = 'v7'
sXO, sXB = 's52', 's55'
vBAD = 'v63'
sSB0, sSB1, sGA, sGM, sPA = 's12', 's13', 's14', 's11', 's15'
vONE = 'v31'


def ids(p):
    lg = GX[0].bit_length() - 1
    p(f"s_and_b32 {sMm}, {sL}, {16 // GX[0] - 1}")
    p(f"s_and_b32 {sT0}, {sX}, {GX[0] - 1}")
    p(f"s_lshl_b32 {sT0}, {sT0}, {4 - lg}")
    p(f"s_add_u32 {sMm}, {sMm}, {sT0}")
    p(f"s_lshr_b32 {sI}, {sL}, {4 - lg}")
    p(f"s_lshr_b32 {sT0}, {sX}, {lg}")
    p(f"s_lshl_b32 {sT0}, {sT0}, {lg + 1}")
    p(f"s_add_u32 {sI}, {sI}, {sT0}")
    p(f"s_lshr_b32 {sC}, {sMm}, 1")
    p(f"s_mul_i32 {sFO}, {sMm}, 288")
    p(f"s_bitcmp1_b32 {sMm}, 0")
    p(f"s_cselect_b32 {sT0}, 0, 256")
    p(f"s_cselect_b32 {sT1}, 32, 0")
    p(f"s_add_u32 {sFH}, {sFO}, {sT0}")
    p(f"s_add_u32 {sFO}, {sFO}, {sT1}")
    p(f"s_and_b32 {sRT}, {sMm}, {ROT[0]}")
    p(f"s_mul_i32 {sLW}, {sW}, 9216")
    srd(p, R_A, S_W3, 576 * 9216)
    srd(p, R_B, S_W4, 4608 * 1152)


def dma_pattern(p, kind):
    t, u = (f"v{GT}", f"v{GT+1}") if kind != "w4" else ("v76", "v77")
    if kind == "half":
        p(f"v_lshrrev_b32 {t}, 2, v1")
        p(f"v_mul_u32_u24 {t}, 9216, {t}")
        p(f"v_and_b32 {u}, 3, v1")
        p(f"v_lshl_add_u32 v{DO}, {u}, 4, {t}")
        step = 16 * 9216
    else:
        stride = 9216 if kind == "w3" else 1152
        p(f"v_lshrrev_b32 {t}, 3, v1")
        p(f"v_mul_u32_u24 {t}, {stride}, {t}")
        p(f"v_bfe_u32 {u}, v1, 4, 1")
        p(f"v_lshlrev_b32 {u}, 2, {u}")
        p(f"v_xor_b32 {u}, {u}, v1")
        p(f"v_and_b32 {u}, 7, {u}")
        p(f"v_lshl_add_u32 v{DO}, {u}, 4, {t}")
        step = 8 * stride
    k0 = lambda k: k - 4 if (kind == "w4" and k >= 4) else k
    return [f"v_add_u32 v{DO+k}, {k0(k)*step - (k%4)*1024}, v{DO}" for k in range(1, 9)]


def stage_dma(tau):
    o = []
    slot = (tau % 4) * SLOT
    if tau == 0:
        o += [f"s_lshl_b32 {sDA}, {sRT}, 1", f"s_add_u32 {sDA}, {sDA}, {sW}", f"s_and_b32 {sDA}, {sDA}, 3",
              f"s_mul_i32 {sDA}, {sDA}, {144*9216}", f"s_lshl_b32 {sT0}, {sFH}, 1", f"s_add_u32 {sDA}, {sDA}, {sT0}"]
        so = lambda k: sDA
        r = RA
    elif tau < 9:
        cc, kh = divmod(tau - 1, 2)
        o += [f"s_xor_b32 {sDA}, {sRT}, {kh}", f"s_lshl_b32 {sDA}, {sDA}, 2", f"s_add_u32 {sDA}, {sDA}, {sW}",
              f"s_mul_i32 {sDA}, {sDA}, {72*9216}", f"s_lshl_b32 {sT0}, {sFO}, 1", f"s_add_u32 {sDA}, {sDA}, {sT0}"]
        if cc:
            o += [f"s_add_u32 {sDA}, {sDA}, {cc*128}"]
        so = lambda k: sDA
        r = RA
    else:
        sg = tau - 9
        if sg == 0:
            o += [f"s_mov_b32 {sT0}, {8*128}"]
        else:
            o += [f"s_add_u32 {sT0}, {sC}, {sg}", f"s_and_b32 {sT0}, {sT0}, 7", f"s_lshl_b32 {sT0}, {sT0}, 7"]
        o += [f"s_add_u32 {sDA}, s62, {sT0}", f"s_add_u32 {sDB}, s63, {sT0}"]
        so = lambda k: sDA if k < 4 else sDB
        r = RB
    o = ["\n".join(o)]
    for k in range(9):
        if k % 4 == 0:
            o.append(f"s_add_u32 m0, {sLW}, {slot + k*1024}")
        o.append(f"buffer_load_dwordx4 v{DO+k}, {r}, {so(k)} offen offset:{(k%4)*1024} lds")
    return o


def w4_bases():
    return ["\n".join([f"s_sub_u32 s63, {sFO}, 32", f"s_cmp_eq_u32 {sW}, 0", f"s_cselect_b32 s62, {sFH}, s63",
                       f"s_mul_i32 {sT0}, {sW}, 72", f"s_add_u32 s62, s62, {sT0}", f"s_add_u32 s63, {sFO}, {sT0}",
                       f"s_mul_i32 s62, s62, 1152", f"s_mul_i32 s63, s63, 1152"])]


def emit_list(p, ops, tag):
    last = max(k for k, o in enumerate(ops) if o.startswith("buffer"))
    for k, o in enumerate(ops):
        p(o, tag=tag if k == last else None)


class Rec:
    def __init__(self):
        self.ops = []

    def __call__(self, text, tag=None):
        self.ops.append(text)


def tagged(ops, tag):
    last = max(k for k, o in enumerate(ops) if o.startswith("buffer"))
    return [(o, tag) if k == last else o for k, o in enumerate(ops)]


def prefill_ops():
    r = Rec()
    ids(r)
    o = ["\n".join(r.ops)]
    r = Rec()
    rest = dma_pattern(r, "half")
    o.append("\n".join(r.ops + rest))
    o += tagged(stage_dma(0), "st0")
    r = Rec()
    rest = dma_pattern(r, "w3")
    o.append("\n".join(r.ops + rest))
    for tau in (1, 2):
        o += tagged(stage_dma(tau), f"st{tau}")
    return o


def setup(p):
    t, u, d = f"v{GT}", f"v{GT+1}", f"v{GT+2}"
    p(f"v_bfe_u32 {t}, v1, 4, 1")
    p(f"v_lshlrev_b32 {t}, 5, {t}")
    p(f"v_and_b32 {u}, 1, v1")
    p(f"v_lshl_add_u32 {t}, {u}, 4, {t}")
    p(f"v_bfe_u32 {u}, v1, 1, 1")
    p(f"v_lshl_add_u32 {t}, {u}, 3, {t}")
    p(f"v_bfe_u32 {u}, v1, 2, 2")
    p(f"v_lshrrev_b32 {d}, 5, v1")
    p(f"v_lshl_add_u32 {u}, {d}, 3, {u}")
    p(f"v_lshl_add_u32 {vH0}, {u}, 6, {t}")
    p(f"v_lshl_add_u32 {t}, {u}, 7, {t}")
    p(f"v_bfe_u32 {u}, v1, 3, 1")
    p(f"v_lshl_add_u32 v{AB}, {u}, 6, {t}")
    p(f"v_xor_b32 v{AB+1}, 64, v{AB}")
    for s in range(1, 4):
        p(f"v_add_u32 v{AB+2*s}, {s*SLOT}, v{AB}")
        p(f"v_add_u32 v{AB+2*s+1}, {s*SLOT}, v{AB+1}")
    p(f"v_min_u32 {u}, {16 + 2 * ND[0]}, v1")
    p(f"s_lshl_b32 {sFL}, {sI}, 6")
    p(f"s_add_u32 {sFL}, {sFL}, {sW}")
    p(f"s_lshl_b32 {sFL}, {sFL}, 7")
    p(f"s_add_u32 {sFL}, {sFL}, {F7}")
    p(f"s_lshl_b32 {sF7}, {sMm}, 2")
    p(f"s_add_u32 {sF7}, {sF7}, {sFL}")
    p(f"s_lshl_b32 {sT2}, {sMm}, 9")
    p(f"s_add_u32 {sT0}, {sFL}, {sT2}")
    p(f"v_lshl_add_u32 {vF6}, {u}, 2, {sT0}")
    p(f"v_lshlrev_b32 {vP2}, 9, v1")
    p(f"v_lshrrev_b32 {u}, 1, v1")
    p(f"v_sub_u32 {t}, {sC}, {u}")
    p(f"v_add_u32 {t}, 7, {t}")
    p(f"v_and_b32 {t}, 7, {t}")
    p(f"v_lshlrev_b32 {t}, 10, {t}")
    p(f"v_lshl_add_u32 {t}, {u}, 3, {t}")
    p(f"v_and_b32 {u}, 1, v1")
    p(f"v_lshl_add_u32 {t}, {u}, 9, {t}")
    p(f"s_and_b32 {sT1}, {sMm}, 1")
    p(f"s_lshl_b32 {sT1}, {sT1}, 2")
    p(f"s_add_u32 {sT1}, {sT1}, 68")
    p(f"v_add_u32 {vF68}, {sT1}, {t}")
    p(f"s_xor_b32 {sT2}, {sT2}, 512")
    p(f"s_add_u32 {sT2}, {sT2}, 64")
    p(f"v_writelane_b32 {vF68}, {sT2}, {2 * ND[0]}")
    p(f"s_lshl_b32 {sT0}, {sW}, 1")
    p(f"s_xor_b32 {sT0}, {sT0}, {sI}")
    p(f"s_and_b32 {sT0}, {sT0}, {SCR[0]}")
    p(f"s_lshl_b32 {sSC}, {sT0}, 12")
    p(f"s_mul_i32 {sPB}, {sI}, 72")
    p(f"s_add_u32 {sPB}, {sPB}, {sW}")
    p(f"s_lshl_b32 {sPB}, {sPB}, 15")
    p(f"s_add_u32 {sPB}, {sPB}, {hx(PART)}")
    p(f"s_lshl_b32 {sT0}, {sMm}, 11")
    p(f"s_xor_b32 {sT0}, {sT0}, {sSC}")
    p(f"s_add_u32 {sT0}, {sT0}, {sPB}")
    p(f"s_and_b32 {sT1}, {sMm}, 1")
    p(f"s_lshl_b32 {sT1}, {sT1}, 17")
    p(f"s_add_u32 {sSB1}, {sT0}, {sT1}")
    p(f"s_xor_b32 {sT1}, {sT1}, {1 << 17}")
    p(f"s_add_u32 {sSB0}, {sT0}, {sT1}")
    p(f"s_lshl_b32 {sT0}, {sMm}, 17")
    p(f"s_add_u32 {sPB}, {sPB}, {sT0}")
    p(f"v_mov_b32 {vONE}, 1")


def select_ops():
    t, u, d = f"v{ST+10}", f"v{ST+11}", f"v{ST+12}"
    o = [f"v_and_b32 {t}, 0x13, v1", f"v_bfe_u32 {u}, v1, 2, 1", f"v_lshl_add_u32 {t}, {u}, 3, {t}",
         f"v_bfe_u32 {u}, v1, 3, 1", f"v_lshl_add_u32 {t}, {u}, 2, {t}", f"v_lshrrev_b32 {d}, 5, v1",
         f"v_lshlrev_b32 {d}, 3, {d}", f"v_sub_u32 {t}, {t}, {d}",
         f"v_and_b32 {u}, 31, v1"]
    for src, bases in ((t, ((ID0, 0), (ID1, 8))), (u, ((IDX, 0),))):
        o += [f"v_and_b32 {d}, 1, {src}", f"v_lshlrev_b32 {d}, 4, {d}", f"v_mov_b32 v{ST+13}, 0x3f80",
              f"v_lshlrev_b32 {d}, {d}, v{ST+13}", f"v_ashrrev_i32 {src}, 1, {src}"]
        for base, sub in bases:
            for k in range(4):
                o += [f"v_cmp_eq_u32 s[8:9], {sub+k}, {src}\ns_nop 1\nv_cndmask_b32 v{base+k}, 0, {d}, s[8:9]"]
    return o


def x_base(p):
    p(f"s_lshl_b32 {sT0}, {sI}, 2")
    p(f"s_add_u32 {sT0}, {sT0}, {sW}")
    p(f"s_mul_i32 {sXB}, {sT0}, 36864")
    p(f"s_add_u32 {sXB}, {sXB}, {hx(X1)}")
    p(f"s_mul_i32 {sT0}, {sRT}, 18432")
    p(f"s_sub_u32 {sXB2}, {sXB}, {sT0}")
    p(f"s_add_u32 {sXB}, {sXB}, {sT0}")


def stat_poll(p):
    t = f"v{GT}"
    p(f"s_lshl_b32 {sT0}, {sI}, 2")
    p(f"s_add_u32 {sT0}, {sT0}, {sW}")
    p(f"s_lshl_b32 {sT1}, {sT0}, 12")
    p(f"s_add_u32 {sT1}, {sT1}, {hx(ST5)}")
    p(f"v_lshlrev_b32 {t}, 8, v1")
    p("s_mov_b64 exec, 0xffff")
    poll_data(p, lambda: p(f"buffer_load_dword v{GT+1}, {t}, {WS}, {sT1} offen sc1"), f"v{GT+1}")
    p("s_mov_b64 exec, -1")


def stat_loads(p):
    t = f"v{GT}"
    p(f"s_lshl_b32 {sT0}, {sI}, 2")
    p(f"s_add_u32 {sT0}, {sT0}, {sW}")
    p(f"s_lshl_b32 {sT1}, {sT0}, 12")
    p(f"s_add_u32 {sT1}, {sT1}, {hx(ST5)}")
    p(f"v_and_b32 {t}, 31, v1")
    p(f"v_lshlrev_b32 {t}, 3, {t}")
    p(f"v_lshrrev_b32 v{GT+1}, 5, v1")
    p(f"v_lshl_add_u32 {t}, v{GT+1}, 11, {t}")
    for k in range(8):
        p(f"buffer_load_dwordx2 {vr(ST+2*k,2)}, {t}, {WS}, {sT1} offen offset:{k*256} sc1")


def x_loads():
    o = []
    for s in range(36):
        q = s % 18
        x = f"buffer_load_dwordx4 {ar(XB+4*s,4)}, {vLN}, {WS}, {sXO} offen offset:{(q%4)*1024} sc1"
        if q % 4 == 0:
            x = f"s_add_u32 {sXO}, {sXB if s < 18 else sXB2}, {s*1024}\n" + x
        o.append(x)
    return o


def check_ops(s):
    d, t = XB + 4 * s, ST + 16
    if s % 9 == 8:
        return ([f"v_accvgpr_read_b32 v{GT+k}, a{d+k}" for k in range(4)]
                + [f"v_max3_u32 {vBAD}, v{GT}, v{GT+1}, {vBAD}", f"v_max3_u32 {vBAD}, v{GT+2}, v{GT+3}, {vBAD}"])
    return [f"v_accvgpr_read_b32 v{GT}, a{d}", f"v_max_u32 {vBAD}, v{GT}, {vBAD}"]


vMEAN, vCC = f"v{ST}", "v4"


def stats(p, again):
    R = ST
    p(f"v_max3_u32 {vBAD}, v{R}, v{R+2}, {vBAD}")
    p(f"v_max_u32 {vBAD}, v{R+4}, {vBAD}")
    p(f"v_max3_u32 {vBAD}, v{R+6}, v{R+8}, {vBAD}")
    p(f"v_max3_u32 {vBAD}, v{R+10}, v{R+12}, {vBAD}")
    p(f"v_max_u32 {vBAD}, v{R+14}, {vBAD}")
    if again:
        ok = p.label("statok")
        p(f"v_cmp_eq_u32 vcc, -1, {vBAD}")
        p("s_nop 1")
        p(f"s_cbranch_vccz {ok}")
        sd = p.side_begin()
        p(f"s_add_u32 {sCNT}, {sCNT}, 1")
        p(f"s_cmp_gt_u32 {sCNT}, {SPIN_MAX}")
        p(f"s_cbranch_scc1 {ok}")
        p("s_waitcnt lgkmcnt(0)")
        stat_poll(p)
        p(f"s_branch {again}")
        p.side_end(sd)
        p(f"{ok}:")
    for step in (8, 4, 2):
        for k in range(0, step, 2):
            p(f"v_add_f32 v{R+k+1}, v{R+k+1}, v{R+k+step+1}")
    Q = f"v{R+1}"
    xhalf(p, "v_add_f32", Q, f"v{R+3}")
    p(f"v_mov_b32 v{R+2}, {hx(f2u(EPS))}")
    p(f"v_fmac_f32 v{R+2}, {hx(f2u(1.0/576))}, {Q}")
    p(f"v_rsq_f32 {Q}, v{R+2}")
    p(f"v_mul_f32 {vCC}, v{R+2}, {Q}")
    p(f"v_mul_f32 {vCA}, {hx(f2u(-GK))}, {Q}")
    p(f"v_mul_f32 {Q}, {Q}, {Q}")
    p(f"v_mul_f32 {vCB}, {hx(f2u(0.044715))}, {vCA}")
    p(f"v_mul_f32 {vCB}, {vCB}, {Q}")


def gelu_list(acc, pos):
    o = []
    for e in range(0, 16, 2):
        x0, x1 = f"v{acc+e}", f"v{acc+e+1}"
        t0, t1 = f"v{GT+(e & 2)}", f"v{GT+1+(e & 2)}"
        o += interleave([gelu_ops(x0, t0, vCA, vCB, vCC), gelu_ops(x1, t1, vCA, vCB, vCC)])
        o += [f"v_cvt_pk_bf16_f32 v{HB_+8*pos+e//2}, {x0}, {x1}"]
    return o


def part_store_list(acc, sg, par1, cv):
    o = [f"v_cvt_pk_bf16_f32 v{cv+k}, v{acc+2*k}, v{acc+2*k+1}" for k in range(8)]
    if sg >= 8 - ND[0]:
        o.insert(4, f"v_min_u32 v{cv}, {CLEAN}, v{cv}")
        o.append(f"v_min_u32 v{cv+4}, {CLEAN}, v{cv+4}")
        o = o[:5], o[5:]
    else:
        o = o[:4], o[4:]
    A = "s64"
    base = sSB1 if par1 else sSB0
    if sg == 0:
        q = [f"s_add_u32 {A}, {base}, {8 << 18}"]
    else:
        q = [f"s_add_u32 {A}, {sC}, {sg}", f"s_and_b32 {A}, {A}, 7", f"s_lshl_b32 {A}, {A}, 18",
             f"s_add_u32 {A}, {A}, {base}"]
    o = o[0] + q + [(f"buffer_store_dwordx4 {vr(cv,4)}, {vLN}, {WS}, {A} offen sc1{NT[1]}", None)] + o[1]
    o += [(f"buffer_store_dwordx4 {vr(cv+4,4)}, {vLN}, {WS}, {A} offen offset:1024 sc1{NT[1]}", f"ps{sg}_{par1}")]
    return o


MUB, MU8 = 224, 64
LV = 200


def direct_ops(g):
    A = "s1"
    o = [f"s_add_u32 {A}, {sC}, {8-g}\ns_and_b32 {A}, {A}, 7\ns_lshl_b32 {A}, {A}, 12\ns_xor_b32 {A}, {A}, {sSC}\n"
         f"s_add_u32 {A}, {A}, {sPB}"]
    return o + [f"buffer_load_dwordx4 {vr(LV+8+16*(7-g)+4*k,4)}, {vLN}, {WS}, {A} offen offset:{k*1024} sc1"
                for k in range(4)]


def late_poison():
    V, A = 72, "s0"
    o = [f"v_mov_b32 v{V+k}, -1" for k in range(4)]
    for sg, base in [(g, b) for g in range(8 - ND[0], 8) for b in (sSB0, sSB1)] + [(8, sSB0)]:
        o += [f"s_add_u32 {A}, {sC}, {sg}\ns_and_b32 {A}, {A}, 7\ns_lshl_b32 {A}, {A}, 18\ns_add_u32 {A}, {A}, {base}"]
        o += [f"buffer_store_dwordx4 {vr(V,4)}, {vLN}, {WS}, {A} offen offset:{k*1024} sc1" for k in range(2)]
    return o


def flag_publish(p, val):
    p(f"s_mov_b64 exec, {hx((2 << (2 * ND[0])) - 1)}")
    p(f"buffer_store_dword {vONE}, {vF68}, {WS}, {sFL} offen sc1")
    p("s_mov_b64 exec, -1")


def pair_publish_ops(p, sg, tag):
    o = [f"s_add_u32 {sPA}, {sC}, {sg}", f"s_and_b32 {sPA}, {sPA}, 7", f"s_lshl_b32 {sPA}, {sPA}, 10",
         f"s_add_u32 {sPA}, {sPA}, {sF7}"]

    def fin():
        if tag:
            p.wait_vm(tag)
        if sg == 8:
            p(f"s_and_b32 {sT0}, {sMm}, 1")
            p(f"s_lshr_b32 exec_lo, 2, {sT0}")
            p("s_mov_b32 exec_hi, 0")
        else:
            p("s_mov_b64 exec, 3")
        p(f"buffer_store_dword {vONE}, {vP2}, {WS}, {sPA} offen sc1")
        p("s_mov_b64 exec, -1")
    fin.cost = 24
    return o + [fin]


def flag_load(p, dst, addr):
    p(f"buffer_load_dword {dst}, {addr}, {WS}, 0 offen sc1")


def flag_check(p, reg, addr, val, mask):
    lp, ok = p.label("fc"), p.label("fcok")
    p.wait_regs(reg)
    p(f"{lp}:")
    p(f"v_cmp_gt_u32 vcc, {val}, {reg}")
    p(f"s_and_b32 {sT1}, vcc_lo, {mask}")
    p(f"s_cbranch_scc0 {ok}")
    s = p.side_begin()
    p(f"s_add_u32 {sCNT}, {sCNT}, 1")
    p(f"s_cmp_gt_u32 {sCNT}, {SPIN_MAX}")
    p(f"s_cbranch_scc1 {ok}")
    flag_load(p, reg, addr)
    p("s_waitcnt vmcnt(0)")
    p(f"s_branch {lp}")
    p.side_end(s)
    p(f"{ok}:")


def group_ops(p, g, slot, fl, check=True, load=True):
    o = [f"s_add_u32 {sGA}, {sC}, {8-g}", f"s_and_b32 {sGA}, {sGA}, 7", f"s_lshl_b32 {sGM}, {sGA}, 1",
         f"s_lshl_b32 {sGM}, 3, {sGM}", f"s_lshl_b32 {sGA}, {sGA}, 12", f"s_xor_b32 {sGA}, {sGA}, {sSC}",
         f"s_add_u32 {sGA}, {sGA}, {sPB}" if not LOCAL[0] else f"s_mov_b32 {sGA}, {sXB}"]
    if check:
        chk = lambda: flag_check(p, fl, vF6, 1, sGM)
        chk.cost = 24
        o.append(chk)
    if load:
        for k in range(0, 4, HALF[0]):
            o.append(f"buffer_load_dwordx4 {ar(PL+8*slot+4*k,4)}, {vLN}, {WS}, {sGA} offen offset:{k*1024} sc1{NT[0]}")
    return o


def residual_loads():
    sT0, sT1 = 's0', 's1'
    o = [f"s_lshl_b32 {sT0}, {sI}, 2", f"s_add_u32 {sT0}, {sT0}, {sW}", f"s_mul_i32 {sT0}, {sT0}, 36",
         f"s_lshl_b32 {sT1}, {sMm}, 1", f"s_add_u32 {sT0}, {sT0}, {sT1}", f"s_lshl_b32 {sT0}, {sT0}, 10",
         f"s_add_u32 {sT1}, {sT0}, {hx(HB)}", f"s_add_u32 {sT0}, {sT0}, {hx(X1)}"]
    for j, s in enumerate((sT1, sT0)):
        for k in range(2):
            o.append(f"buffer_load_dwordx4 {ar(PL+8*(15+j)+4*k,4)}, {vLN}, {WS}, {s} offen offset:{k*1024} sc1")
    return o


vC8T, vC8P, vC8A = f"v{ST+2}", f"v{ST+3}", f"v{ST+4}"
sC8, sC8X = "s65", "s66"


def c8_setup():
    sT0, sT1 = 's0', 's1'
    t, u, a = vC8T, vC8P, vC8A
    o = [f"s_and_b32 {sT0}, {sW}, 1", f"s_lshl_b32 {sT0}, {sT0}, 5", f"s_lshr_b32 {sT1}, {sW}, 1",
         f"s_lshl_b32 {sT1}, {sT1}, 4", f"s_add_u32 {sT0}, {sT0}, {sT1}",
         f"v_and_b32 {t}, 15, v1", f"v_add_u32 {t}, {sT0}, {t}", f"v_lshlrev_b32 {t}, 4, {t}",
         f"v_lshrrev_b32 {u}, 5, v1",
         f"v_mov_b32 {a}, {hx(X1-HB)}", f"v_mul_lo_u32 {a}, {u}, {a}", f"v_add_u32 {a}, {a}, {t}",
         f"v_lshl_add_u32 {t}, {u}, 11, {t}",
         f"v_bfe_u32 {u}, v1, 4, 1", f"v_lshl_add_u32 {a}, {u}, 27, {a}",
         f"s_lshl_b32 {sT0}, {sI}, 2", f"s_lshr_b32 {sT1}, {sMm}, 2", f"s_add_u32 {sT0}, {sT0}, {sT1}",
         f"s_mul_i32 {sT0}, {sT0}, 36", f"s_and_b32 {sT1}, {sMm}, 3", f"s_add_u32 {sT0}, {sT0}, {sT1}",
         f"s_add_u32 {sT0}, {sT0}, 32", f"s_lshl_b32 {sT0}, {sT0}, 10", f"s_add_u32 {sT0}, {sT0}, {hx(HB)}",
         f"buffer_load_dwordx4 {ar(PL8+16,4)}, {a}, {WS}, {sT0} offen sc1",
         f"v_sub_u32 {u}, {sC}, {u}",
         f"s_mul_i32 {sT0}, {sI}, 18", f"s_bfe_u32 {sT1}, {sMm}, 0x10001", f"s_add_u32 {sT0}, {sT0}, {sT1}",
         f"s_add_u32 {sT0}, {sT0}, 16", f"s_lshl_b32 {sT0}, {sT0}, 2", f"s_lshr_b32 {sT1}, {sMm}, 2",
         f"s_add_u32 {sT0}, {sT0}, {sT1}", f"s_lshl_b32 {sT0}, {sT0}, 15", f"s_and_b32 {sT1}, {sMm}, 1",
         f"s_lshl_b32 {sT1}, {sT1}, 10", f"s_add_u32 {sT0}, {sT0}, {sT1}", f"s_add_u32 {sC8}, {sT0}, {hx(PART)}",
         f"s_lshr_b32 {sT1}, {sMm}, 2", f"s_lshl_b32 {sT1}, {sT1}, 1", f"s_xor_b32 {sT1}, {sT1}, {sI}",
         f"s_and_b32 {sC8X}, {sT1}, {SCR[0]}"]
    assert OOB == 1 << 27
    return o


def c8_load(k):
    a = vC8A
    return [f"v_add_u32 {a}, {16 - 2*k - 1}, {vC8P}", f"v_and_b32 {a}, 7, {a}", f"v_xor_b32 {a}, {sC8X}, {a}",
            f"v_lshl_add_u32 {a}, {a}, 12, {vC8T}",
            f"buffer_load_dwordx4 {ar(PL8+4*k,4)}, {a}, {WS}, {sC8} offen sc1"]


def build_sequence():
    seq = []
    for s in range(36):
        seq.append(dict(acc=ACC[0], first=s == 0, b=ar(XB + 4 * s, 4), base=vH0, off=(s * 1024, s * 1024 + 256), seg=0))
    for cc in range(4):
        for par in range(2):
            n = 1 + 2 * cc + par
            for s in range(36):
                slot = (1 + 2 * cc + s // 18) % 4
                o = (s % 18) * 2048
                seq.append(dict(acc=ACC[n % 2], first=s == 0, b=ar(XB + 4 * s, 4), base=f"v{AB+2*slot+par}",
                                off=(o, o + 512), seg=1 + cc))
    for sg in range(9):
        slot = (9 + sg) % 4
        if sg == 0:
            order = [(s, c) for s in range(18) for c in range(2)]
            accs = (ACC[1], ACC[2])
        else:
            order = [(s, c) for c in range(2) for s in range(18)]
            accs = (ACC[0], ACC[1])
        for s, c in order:
            seq.append(dict(acc=accs[c], first=s == 0, b=vr(HB_ + 4 * s, 4), base=f"v{AB+2*slot+c}",
                            off=(s * 2048, s * 2048 + 512), seg=5 + sg))
    return seq


def main_loop(p, st, opts):
    seq = build_sequence()
    N = len(seq)
    start = {}
    for j, e in enumerate(seq):
        start.setdefault(e["seg"], j)
    seg_stages = {0: [0], 1: [1, 2], 2: [3, 4], 3: [5, 6], 4: [7, 8]}
    for sg in range(9):
        seg_stages[5 + sg] = [9 + sg]
    dma_after = {1: [4], 2: [5, 6], 3: [7, 8], 4: [9, 10], 5: [11, 12]}
    for k in range(6, 11):
        dma_after[k] = [7 + k]
    swapped = [False]

    def rd(j):
        e = seq[j]
        if e["seg"] >= 5 and not swapped[0]:
            swapped[0] = True
            p(f"s_and_b32 {sT1}, {sMm}, 1")
            p(f"s_xor_b32 {sT1}, {sT1}, 1")
            p(f"s_lshl_b32 {sT1}, {sT1}, 6")
            for r in range(AB, AB + 8):
                p(f"v_xor_b32 v{r}, {sT1}, v{r}")
        d = AFR + 4 * (j % NAF)
        for q in range(2):
            p(f"ds_read_b64_tr_b16 {ar(d+2*q,2)}, {e['base']} offset:{e['off'][q]}")

    F = Filler(p)
    add = F.add
    for n in range(9):
        e = 36 * (n + 1)
        add(e + 2, e + (34 if n < 8 else 29), gelu_list(ACC[n % 2], n))
    for k, taus in dma_after.items():
        ops = []
        for tau in taus:
            if tau == 9:
                r = Rec()
                rest = dma_pattern(r, "w4")
                ops += r.ops + rest + w4_bases()
            ops += tagged(stage_dma(tau), f"st{tau}")
        add(start[k] - 3, start[k] + (opts.get("dma3", 50) if k < 5 else opts.get("dma4", 31)), ops)
    E0 = start[5]
    if opts.get("pf60"):
        pf0 = lambda: weight_prefetch(p, opts, opts["pf60"], V=64)
        add(26, 27, [pf0])
    opts.setdefault("pf6", "4")
    if opts.get("pf6"):
        pf = lambda: weight_prefetch(p, opts, opts["pf6"], V=64)
        pf.cost = 60
        add(start[2] + 55, start[2] + 60, [pf])
    add(E0 + 38, E0 + 45, part_store_list(ACC[1], 0, 0, CV[0]))
    add(E0 + 46, E0 + 52, part_store_list(ACC[2], 0, 1, CV[1]))
    for sg in range(1, 9):
        e = start[5 + sg]
        add(e + 20, e + 28, part_store_list(ACC[0], sg, 0, CV[0]))
        if sg < 8:
            add(e + 38, e + 46, part_store_list(ACC[1], sg, 1, CV[1]))
    add(start[7], start[7] + 30, residual_loads())
    nslot = 0
    LAG = opts.get("lag", ND[0] - 1)
    pubpos, ldpos, chkpos = opts.get("pubpos", 30), opts.get("ldpos", 12), opts.get("chkpos", 28)
    for sg in range(1, 9):
        e = start[5 + sg]
        PL_ = opts.get("publag", 0)
        ps = sg - 1 - PL_
        tag = None if opts.get("x_nopubwait") else f"ps{ps}_1"
        pp = pubpos if sg < 8 else opts.get("pub8", 24)
        if ps < 0 or ps >= 8 - ND[0]:
            pass
        elif ps == 0:
            w0 = lambda tag=tag: p.wait_vm(tag) if tag else None
            w0.cost = 4
            add(e + 30, e + 31, [w0])
            add(e + 40, e + 44, [lambda: flag_publish(p, 1)])
        else:
            o = pair_publish_ops(p, ps, tag)
            add(e + pp - 8, e + pp - 1, o[:-1])
            add(e + pp, e + pp + 1, o[-1:])
        g = sg - 2 - LAG
        if g >= 8 - ND[0]:
            continue
        if g >= 1 and not opts.get("x_nochk"):
            fl = (vFL, vFLb)[g & 1]
            add(e + ldpos, e + ldpos + 1, [lambda fl=fl: flag_load(p, fl, vF6)])
            o = group_ops(p, g, nslot, fl, not opts.get("x_nospin"), not opts.get("x_noload"))
            if g == 1:
                o[3] += f"\ns_or_b32 {sGM}, {sGM}, {hx(((2 << (2 * ND[0])) - 1) << 16)}"
            add(e + chkpos - 12, e + chkpos - 1, o[:7])
            for k in range(4):
                need = max([1] + [q for q in (2 * k + 1, 2 * k + 2) if q < 8 - ND[0]])
                if need == g:
                    o += c8_load(k)
            add(e + chkpos, min(e + chkpos + 9, N - 1), o[7:])
        if g >= 1:
            nslot += 2
    if nslot < 2 * (7 - ND[0]):
        add(N - opts.get("lastld", 14), N - opts.get("lastld", 14) + 1, [lambda: flag_load(p, vFL8, vF6)])
    add(start[6] + 10, start[7] - 6, c8_setup())
    add(start[8], start[8] + 30, tail_setup())
    add(start[opts.get("lps", 1)] + 4, start[opts.get("lps", 1)] + 68, late_poison())
    for q, g in enumerate(range(8 - ND[0], 7)):
        e = start[13] + opts.get("spec0", 0) + q * opts.get("specd", 14)
        add(e, e + 8, direct_ops(g))
    add(start[11] + 4, start[13], select_ops())
    add(start[13], start[13] + 14, [f"v_mov_b32 v{MUB+k}, {vMEAN}" for k in range(16)]
        + [f"v_mul_f32 v{MU8+k}, 0.5, v{MU8+4}" for k in range(4)])
    add(opts.get("st3a", 24), opts.get("st3b", 31), tagged(stage_dma(3), "st3"))

    again = p.label("again6")
    p(f"{again}:")
    xl = x_loads()
    emit_some(p, xl, opts.get("xfirst", 12))
    stat_loads(p)
    emit_some(p, xl, opts.get("xahead", 12) - opts.get("xfirst", 12))
    st(p, "xiss")
    setup(p)
    for j in range(PD):
        rd(j)
    for o in ["v_mov_b32 " + vBAD + ", 0"] + check_ops(0):
        p(o)
    issued = PD
    bounds = sorted(start.values())[1:]
    for j, e in enumerate(seq):
        d = AFR + 4 * (j % NAF)
        acc = vr(e["acc"], 16)
        if opts.get("wait2", 1) and j % 2 == 0 and j + 1 < issued:
            p.wait_regs(ar(AFR + 4 * ((j + 1) % NAF), 4))
        cin = acc if not e["first"] else (vr(MUB, 16) if j == N - 18 else "0")
        p(f"v_mfma_f32_32x32x16_bf16 {acc}, {ar(d,4)}, {e['b']}, {cin}")
        nb = next((b for b in bounds if b > j), None)
        if nb is not None and j == nb - 4:
            p.wait_lg()
            for tau in seg_stages[seq[nb]["seg"]]:
                p.wait_vm(f"st{tau}")
            p("s_barrier")
            if st:
                st(p, f"seg{seq[nb]['seg']}")
        lim = min(j + PD, N - 1)
        if nb is not None and j < nb - 4:
            lim = min(lim, nb - 1)
        emit_some(p, xl, 1)
        if j < 31:
            for o in check_ops(j + 1):
                p(o)
        if j == 31:
            for s_ in range(32, 36):
                for o in check_ops(s_):
                    p(o)
            redo_if_poison(p, vBAD, again, sCNT)
        if j == 8:
            stats(p, None)
        while issued <= lim:
            rd(issued)
            issued += 1
        F.gap(j)
        if opts.get("stj") and j - start[opts["stj"][0]] in opts["stj"][1:]:
            st(p, f"j{j - start[opts['stj'][0]]}")
    assert F.done()
    return nslot


vO8, vOM = f"v{ST+6}", f"v{ST+7}"
sO8, sOM, sG7, sPP = "s4", "s5", "s6", "s7"


def tail_setup():
    a, b, t = 's0', 's1', f"v{ST+8}"
    return [f"s_mov_b32 s{R_C}, s{S_OUT}\ns_mov_b32 s{R_C+1}, s{S_OUT+1}",
            f"s_mov_b32 s{R_C+2}, {2048*1152}\ns_mov_b32 s{R_C+3}, 0x20000",
            f"v_and_b32 {t}, 0x1f0, {vC8T}", f"v_lshrrev_b32 {t}, 1, {t}",
            f"s_lshl_b32 {a}, {sI}, 2", f"s_lshr_b32 {b}, {sMm}, 2", f"s_add_u32 {a}, {a}, {b}",
            f"s_lshl_b32 {a}, {a}, 12", f"s_add_u32 {a}, {a}, {hx(ST5)}",
            f"buffer_load_dword v{MU8+4}, {t}, {WS}, {a} offen sc1",
            f"v_and_b32 {vO8}, 15, v1", f"v_mul_u32_u24 {vO8}, 1152, {vO8}", f"v_lshrrev_b32 {t}, 5, v1",
            f"v_lshl_add_u32 {vO8}, {t}, 3, {vO8}",
            f"v_and_b32 {vOM}, 31, v1", f"v_mul_u32_u24 {vOM}, 1152, {vOM}", f"v_lshl_add_u32 {vOM}, {t}, 4, {vOM}",
            f"s_lshl_b32 {a}, {sI}, 2", f"s_lshr_b32 {b}, {sMm}, 2", f"s_add_u32 {a}, {a}, {b}",
            f"s_lshl_b32 {a}, {a}, 1", f"s_lshr_b32 {b}, {sW}, 1", f"s_add_u32 {a}, {a}, {b}",
            f"s_mul_i32 {a}, {a}, {16*1152}", f"s_and_b32 {b}, {sMm}, 3", f"s_lshl_b32 {b}, {b}, 5",
            f"s_add_u32 {a}, {a}, {b}", f"s_and_b32 {b}, {sW}, 1", f"s_lshl_b32 {b}, {b}, 4",
            f"s_add_u32 {sO8}, {a}, {b}",
            f"s_lshl_b32 {a}, {sI}, 2", f"s_add_u32 {a}, {a}, {sW}", f"s_mul_i32 {a}, {a}, 36864",
            f"s_lshl_b32 {b}, {sMm}, 6", f"s_add_u32 {sOM}, {a}, {b}",
            f"s_xor_b32 {a}, {sMm}, 1", f"s_lshl_b32 {a}, {a}, 11",
            f"s_xor_b32 {a}, {a}, {sSC}", f"s_add_u32 {sPP}, {a}, {sPB}"]


def tail(p, st, nslot, opts):
    nd = ND[0]
    late = list(range(nslot // 2 + 1, 8 - nd))
    acc = vr(ACC[1], 16)

    def addr(r):
        p(f"v_mfma_f32_32x32x16_bf16 {acc}, {vr(ID0,4)}, {r(0)}, {acc}")
        p(f"v_mfma_f32_32x32x16_bf16 {acc}, {vr(ID1,4)}, {r(4)}, {acc}")

    addp = lambda slot: addr(lambda k: ar(PL + 8 * slot + k, 4))
    addv = lambda t: addr(lambda k: vr(LV + 8 * t + k, 4))
    a8 = vr(ACC8, 16)

    def add8(k):
        p(f"v_mfma_f32_32x32x16_bf16 {a8}, {vr(IDX,4)}, {ar(PL8+4*k,4)}, {vr(MU8, 16) if k == 4 else a8}")

    def fetch(g):
        for o in direct_ops(g):
            p(o)

    def partner():
        for k in range(2):
            p(f"buffer_load_dwordx4 {vr(LV+4*k,4)}, {vLN}, {WS}, {sPP} offen offset:{k*1024} sc1")

    def bad():
        regs = [f"v{LV+4*k}" for k in range(2 + 4 * nd)][::-1]
        p(f"v_max_u32 {vBAD}, {regs[0]}, {regs[1]}")
        for k in range(2, len(regs), 2):
            p(f"v_max3_u32 {vBAD}, {regs[k]}, {regs[k+1]}, {vBAD}")

    todo = [15, 16] + list(range(nslot))
    n0 = opts.get("t0", 4)
    for g in late:
        ops = group_ops(p, g, 2 * (g - 1), vFL8)
        for k in range(4):
            if max([1] + [q for q in (2 * k + 1, 2 * k + 2) if q < 8 - nd]) == g:
                ops += c8_load(k)
        for o in ops:
            o() if callable(o) else p(o)
    todo += list(range(nslot, 2 * (7 - nd)))
    fetch(7)
    for s in todo[:n0]:
        addp(s)
    partner()
    for s in todo[n0:]:
        addp(s)
    for k in (4, 3, 0, 1, 2):
        add8(k)
    ok = p.label("tailok")
    bad()
    p(f"v_cmp_eq_u32 vcc, -1, {vBAD}")
    p("s_nop 1")
    p(f"s_cbranch_vccz {ok}")
    sd = p.side_begin()
    poll_data(p, lambda: ([fetch(g) for g in range(8 - nd, 8)], partner()), vBAD, multi=bad)
    p.side_end(sd)
    p(f"{ok}:")
    for t in range(2 * nd, 0, -1):
        addv(t)
    t = ST + 10
    for k in range(4):
        p(f"v_mov_b32 v{t+k}, v{ACC8+k}")
    for k in range(4):
        p(f"v_permlane16_swap_b32 v{ACC8+k}, v{t+k}")
    for k in range(4):
        p(f"v_add_f32 v{ACC8+k}, v{ACC8+k}, v{t+k}")
    addv(0)
    p(f"v_cvt_pk_bf16_f32 v{ACC8}, v{ACC8}, v{ACC8+1}")
    p(f"v_cvt_pk_bf16_f32 v{ACC8+1}, v{ACC8+2}, v{ACC8+3}")
    p("s_mov_b32 exec_lo, 0xffff")
    p("s_mov_b32 exec_hi, 0xffff")
    p(f"buffer_store_dwordx2 {vr(ACC8,2)}, {vO8}, {RC}, {sO8} offen offset:1024{OST[0]}")
    p("s_mov_b64 exec, -1")
    a = ACC[1]
    for h in range(2):
        for k in range(4 * h, 4 * h + 4):
            p(f"v_cvt_pk_bf16_f32 v{CV[0]+k}, v{a+2*k}, v{a+2*k+1}")
        p(f"buffer_store_dwordx4 {vr(CV[0]+4*h,4)}, {vOM}, {RC}, {sOM} offen offset:{32*h}{OST[0]}")


def p6(p, st, opts, left):
    HALF[0] = opts.get("x_half", 1)
    OST[0] = opts.get("ost", "")
    LOCAL[0] = opts.get("x_local", 0)
    ND[0] = opts.get("nd", 1)
    SCR[0] = opts.get("scr", 7)
    NT[0] = " nt" if opts.get("ntld") else ""
    NT[1] = " nt" if opts.get("ntst") else ""
    emit_some(p, left, 99)
    p(f"s_mov_b32 {sCNT}, 0")
    st(p, "p5")
    x_base(p)
    if not opts.get("opt6", 0):
        stat_poll(p)
    st(p, "f5seen")
    nslot = main_loop(p, st, opts)
    st(p, "mlp")
    tail(p, st, nslot, opts)
```
